```python
import torch

def _softmax(x, axis=-1):
    return torch.softmax(x, dim=axis)
def _gelu(x):
    return torch.nn.functional.gelu(x, approximate="tanh")
def _silu(x):
    return torch.nn.functional.silu(x)
def _sigmoid(x):
    return torch.sigmoid(x)
def _layernorm(x, axis=-1, eps=1e-5):
    m = x.mean(dim=axis, keepdim=True)
    v = x.var(dim=axis, keepdim=True, unbiased=False)
    return (x - m) / torch.sqrt(v + eps)
def _scatter_add(tgt, idx, src, axis=0):
    return tgt.clone().index_add_(axis, idx, src)
def _segment_sum(src, seg, n):
    out = torch.zeros((n,) + src.shape[1:], dtype=src.dtype)
    return out.index_add_(0, seg, src)
def _pad(x, pw):
    flat = tuple(v for pair in reversed(pw) for v in pair)
    return torch.nn.functional.pad(x, flat)

kernel_name = 'sequential_preLN__grouped_kv_mqa__glu_gated_swiglu__prompt'

def setup_inputs():

    _w = (lambda a: (lambda t: t.to(torch.bfloat16) if t.is_floating_point() else t)(torch.as_tensor(a)))
    def _A_setup():
        B, S, D, H = 1, 2048, 640, 32
        Dh = D // H
        return {
            "x": _w((lambda *s: torch.randn(*s, dtype=torch.bfloat16) * 0.05)(B, S, D)),
            "wq": _w((lambda *s: torch.randn(*s, dtype=torch.bfloat16) * 0.05)(D, H * Dh)),
            "wk": _w((lambda *s: torch.randn(*s, dtype=torch.bfloat16) * 0.05)(D, Dh)),
            "wv": _w((lambda *s: torch.randn(*s, dtype=torch.bfloat16) * 0.05)(D, Dh)),
            "wo": _w((lambda *s: torch.randn(*s, dtype=torch.bfloat16) * 0.05)(H * Dh, D)),
        }
    _A_in = _A_setup()

    def _B_setup():
        B, S, D, F = 1, 2048, 640, 1536
        return {
            "x": _w((lambda *s: torch.randn(*s, dtype=torch.bfloat16) * 0.05)(B, S, D)),
            "w1": _w((lambda *s: torch.randn(*s, dtype=torch.bfloat16) * 0.4)(D, F) * (2.0 / D) ** 0.5),
            "w3": _w((lambda *s: torch.randn(*s, dtype=torch.bfloat16) * 0.4)(D, F) * (2.0 / D) ** 0.5),
            "w2": _w((lambda *s: torch.randn(*s, dtype=torch.bfloat16) * 0.4)(F, D) * (2.0 / F) ** 0.5),
        }
    _B_in = _B_setup()

    return {
        "A_x": _A_in["x"],
        "A_wq": _A_in["wq"],
        "A_wk": _A_in["wk"],
        "A_wv": _A_in["wv"],
        "A_wo": _A_in["wo"],
        "B_x": _B_in["x"],
        "B_w1": _B_in["w1"],
        "B_w3": _B_in["w3"],
        "B_w2": _B_in["w2"],
    }

def reference(A_x, A_wq, A_wk, A_wv, A_wo, B_x, B_w1, B_w3, B_w2):
    def _A_ref(x, wq, wk, wv, wo):
        B, S, D = x.shape
        H = 32
        Dh = D // H
        q = (lambda x, *d: x.permute(*d))((x @ wq).reshape(B, S, H, Dh), 0, 2, 1, 3)
        k = x @ wk
        v = x @ wv
        scores = torch.einsum("bhqd,bkd->bhqk", q, k) * (Dh ** -0.5)
        p = _softmax(scores, axis=-1)
        o = torch.einsum("bhqk,bkd->bhqd", p, v)
        return (lambda x, *d: x.permute(*d))(o, 0, 2, 1, 3).reshape(B, S, H * Dh) @ wo

    def _B_ref(x, w1, w3, w2):
        gate = torch.einsum("bsd,df->bsf", x, w1)
        up = torch.einsum("bsd,df->bsf", x, w3)
        h = _silu(gate) * up
        out = torch.einsum("bsf,fd->bsd", h, w2)
        return out

    x = A_x
    h = x + _A_ref(_layernorm(x, axis=-1), A_wq, A_wk, A_wv, A_wo)
    h2 = h + _B_ref(_layernorm(h, axis=-1), B_w1, B_w3, B_w2)
    return h2
```

```python
NAME = "sequential_preLN__grouped_kv_mqa__glu_gated_swiglu__prompt"

QF = 0x0000000
KV = 0x0300000
KN = 0x0340000
OF = 0x0400000
WOF = 0x0700000
HF = 0x0800000
ST = 0x0B00000
W13F = 0x0C00000
HHF = 0x1000000
W2F = 0x1600000
WS_USED = 0x1800000
OOB = 0x40000000

SRD3 = "0x00020000"
LOG2E = 1.4426950408889634


def f32(x):
    import struct
    return "0x%08x" % struct.unpack("<I", struct.pack("<f", x))[0]


def vr(a, n=1):
    return f"v{a}" if n == 1 else f"v[{a}:{a + n - 1}]"


def sr(a, n=1):
    return f"s{a}" if n == 1 else f"s[{a}:{a + n - 1}]"


class Asm:
    def __init__(self):
        self.lines = []

    def __call__(self, text):
        for ln in text.strip("\n").split("\n"):
            ln = ln.strip()
            if not ln:
                continue
            if ln.endswith(":") or ln.startswith("."):
                self.lines.append(ln)
            else:
                self.lines.append("    " + ln)

    def text(self):
        return "\n".join(self.lines) + "\n"

    def begin(self, name):
        self(f"""
.text
.globl {name}
.p2align 8
.type {name},@function
{name}:""")

    def end(self, name, vgprs, sgprs=96):
        self(f"""
.section .rodata,"a"
.p2align 6
.amdhsa_kernel {name}
.amdhsa_next_free_vgpr {vgprs}
.amdhsa_next_free_sgpr {sgprs}
.amdhsa_accum_offset {(vgprs + 3) // 4 * 4}
.amdhsa_group_segment_fixed_size 0
.amdhsa_kernarg_size 96
.amdhsa_user_sgpr_count 2
.amdhsa_user_sgpr_kernarg_segment_ptr 1
.amdhsa_system_sgpr_workgroup_id_x 1
.amdhsa_float_denorm_mode_32 3
.end_amdhsa_kernel""")

    def srd(self, d, ptr, nbytes):
        self(f"""
s_mov_b32 s{d}, s{ptr}
s_mov_b32 s{d + 1}, s{ptr + 1}
s_mov_b32 s{d + 2}, {nbytes}
s_mov_b32 s{d + 3}, {SRD3}""")

    def dma(self, voff, srd, soff, m0, imm=0):
        if m0 is not None:
            self(f"s_mov_b32 m0, {m0}")
            self("s_nop 0")
        o = f" offset:{imm}" if imm else ""
        self(f"buffer_load_dwordx4 v{voff}, s[{srd}:{srd + 3}], {soff} offen{o} lds")

    def wave_max(self, v):
        for m in ("row_shr:1", "row_shr:2", "row_shr:4", "row_shr:8"):
            self("s_nop 1")
            self(f"v_max_f32_dpp v{v}, v{v}, v{v} {m} row_mask:0xf bank_mask:0xf")
        self("s_nop 1")
        self(f"v_max_f32_dpp v{v}, v{v}, v{v} row_bcast:15 row_mask:0xa bank_mask:0xf")
        self("s_nop 1")
        self(f"v_max_f32_dpp v{v}, v{v}, v{v} row_bcast:31 row_mask:0xc bank_mask:0xf")

    def half_sum(self, v, t):
        self(f"v_mov_b32 v{t}, v{v}")
        self("s_nop 1")
        self(f"v_permlane32_swap_b32 v{v}, v{t}")
        self("s_nop 1")
        self(f"v_add_f32 v{v}, v{v}, v{t}")

    def half_max(self, v, t):
        self(f"v_mov_b32 v{t}, v{v}")
        self("s_nop 1")
        self(f"v_permlane32_swap_b32 v{v}, v{t}")
        self("s_nop 1")
        self(f"v_max_f32 v{v}, v{v}, v{t}")

    def ids(self, s_wave, v_lane, s_rb, s_cb, t0, t1):
        self(f"""
v_lshrrev_b32 v1, 6, v0
v_and_b32 v{v_lane}, 63, v0
v_readfirstlane_b32 s{s_wave}, v1
s_and_b32 s{t0}, s2, 7
s_lshr_b32 s{t1}, s2, 3
s_lshl_b32 s{s_rb}, s{t0}, 2
s_and_b32 s{t0}, s{t1}, 3
s_add_u32 s{s_rb}, s{s_rb}, s{t0}
s_lshr_b32 s{s_cb}, s{t1}, 2""")


def mfma(d, a, b, c):
    cs = c if isinstance(c, str) else vr(c, 16)
    return f"v_mfma_f32_32x32x16_bf16 {vr(d, 16)}, {vr(a, 4)}, {vr(b, 4)}, {cs}"


def mfma8(d, a, b, c):
    cs = c if isinstance(c, str) else vr(c, 16)
    return f"v_mfma_f32_32x32x8_bf16 {vr(d, 16)}, {vr(a, 2)}, {vr(b, 2)}, {cs}"
```

```python
import sys
from common import *
from k1 import gen_k1
from k2 import gen_k2
from k35 import gen_k35
from k4 import gen_k4

HEADER = open("cdna_kernels/" + NAME + ".s.ref").read().split("; Override launch geometry")[0]

def build(kernels, out):
    txt = HEADER
    for name, (body, block, lds) in kernels:
        txt += f"; @launch kernel={name} grid=(256,1,1) block=({block},1,1) lds={lds}\n"
    txt += '.amdgcn_target "amdgcn-amd-amdhsa--gfx950"\n'
    seen = set()
    for name, (body, block, lds) in kernels:
        if name not in seen:
            txt += body
            seen.add(name)
    open(out, "w").write(txt)

if __name__ == "__main__":
    ks = [("qkv_kernel", gen_k1("qkv_kernel")),
          ("attn_kernel", gen_k2("attn_kernel")),
          ("oproj_kernel", gen_k35("oproj_kernel", 3)),
          ("ffn1_kernel", gen_k4("ffn1_kernel")),
          ("ffn2_kernel", gen_k35("ffn2_kernel", 5))]
    build(ks, sys.argv[1] if len(sys.argv) > 1 else "cdna_kernels/" + NAME + ".s")
```

```python
from common import *

LDS_XN = 0
LDS_WR = 81920
LDS_KVW = 131072
K1_LDS = 163840
QSCALE = 20 ** -0.5 * LOG2E


def gen_k1(name):
    a = Asm()
    a.begin(name)
    S_W, S_RB, S_CB = 32, 33, 34
    X, WQ, WKV, WS = 16, 20, 24, 28
    LANE = 2
    XR = 16
    a(f"""
s_cmp_ge_u32 s2, 256
s_cbranch_scc1 {name}_end
s_load_dwordx8 s[4:11], s[0:1], 0
s_load_dwordx2 s[12:13], s[0:1], 88""")
    a.ids(S_W, LANE, S_RB, S_CB, 35, 36)
    a(f"""
s_lshl_b32 s35, s{S_RB}, 6
s_lshl_b32 s36, s{S_W}, 3
s_add_u32 s35, s35, s36
v_lshrrev_b32 v3, 3, v{LANE}
v_and_b32 v4, 7, v{LANE}
v_add_u32 v5, s35, v3
v_mul_u32_u24 v5, 1280, v5
v_lshl_add_u32 v5, v4, 4, v5
s_waitcnt lgkmcnt(0)""")
    a.srd(X, 4, 2048 * 1280)
    for i in range(10):
        a(f"buffer_load_dwordx4 {vr(XR + 4 * i, 4)}, v5, s[{X}:{X + 3}], 0 offen offset:{128 * i}")
    a.srd(WQ, 6, 640 * 1280)
    a(f"""
s_cmp_eq_u32 s{S_CB}, 1
s_cselect_b32 s8, s10, s8
s_cselect_b32 s9, s11, s9""")
    a.srd(WKV, 8, 640 * 40)
    a.srd(WS, 12, WS_USED)
    a(f"""
s_mul_i32 s37, s{S_W}, 192
s_mul_i32 s38, s{S_CB}, 160
s_mul_i32 s39, s{S_W}, 3072
s_add_u32 s39, s39, {LDS_WR}
s_add_u32 s40, s38, {128 * 1280}""")
    for i in range(3):
        a(f"""
v_add_u32 v6, s37, v{LANE}
v_add_u32 v6, {64 * i}, v6
v_mul_u32_u24 v7, 43691, v6
v_lshrrev_b32 v7, 19, v7
v_mul_u32_u24 v8, 12, v7
v_sub_u32 v8, v6, v8
v_mul_u32_u24 v7, 1280, v7
v_lshl_add_u32 v{9 + i}, v8, 4, v7""")
    for dc in range(2):
        for i in range(3):
            a(f"s_add_u32 s41, s39, {dc * 24576 + i * 1024}")
            a.dma(9 + i, WQ, f"s{38 if dc == 0 else 40}", "s41")
    a(f"""
v_lshlrev_b32 v12, 4, v{LANE}
s_lshl_b32 s42, s{S_W}, 12
s_add_u32 s41, s42, {LDS_KVW}""")
    for i in range(4):
        a.dma(12, WKV, "s42", "s41" if i == 0 else None, imm=1024 * i)
    SA, SB, QA, QB = 56, 57, 58, 59
    a(f"""
v_mov_b32 v{SA}, 0
v_mov_b32 v{SB}, 0
v_mov_b32 v{QA}, 0
v_mov_b32 v{QB}, 0
s_mov_b32 s43, 0x3f803f80""")
    for i in range(10):
        a(f"s_waitcnt vmcnt({19 - i})")
        for j in range(4):
            r = XR + 4 * i + j
            s, q = (SA, QA) if j % 2 == 0 else (SB, QB)
            a(f"v_dot2_f32_bf16 v{s}, v{r}, s43, v{s}")
            a(f"v_dot2_f32_bf16 v{q}, v{r}, v{r}, v{q}")
    WREG = 64
    a(f"""
s_cmp_lt_u32 s{S_W}, 4
s_cbranch_scc1 {name}_noload
s_sub_u32 s44, s{S_W}, 4
s_mul_i32 s44, s44, 192""")
    for i in range(3):
        a(f"""
v_add_u32 v6, s44, v{LANE}
v_add_u32 v6, {64 * i}, v6
v_mul_u32_u24 v7, 43691, v6
v_lshrrev_b32 v7, 19, v7
v_mul_u32_u24 v8, 12, v7
v_sub_u32 v8, v6, v8
v_mul_u32_u24 v7, 1280, v7
v_lshl_add_u32 v{9 + i}, v8, 4, v7""")
    for c in range(4, 10):
        a(f"s_add_u32 s41, s38, {c * 64 * 1280}")
        for i in range(3):
            a(f"buffer_load_dwordx4 {vr(WREG + 4 * (3 * (c - 4) + i), 4)}, v{9 + i}, s[{WQ}:{WQ + 3}], s41 offen")
    a(f"{name}_noload:")
    a(f"""
s_nop 2
v_add_f32 v{SA}, v{SA}, v{SB}
v_add_f32 v{QA}, v{QA}, v{QB}""")
    for m in ("quad_perm:[1,0,3,2]", "quad_perm:[2,3,0,1]", "row_half_mirror"):
        a(f"""
s_nop 1
v_add_f32_dpp v{SA}, v{SA}, v{SA} {m} row_mask:0xf bank_mask:0xf
v_add_f32_dpp v{QA}, v{QA}, v{QA} {m} row_mask:0xf bank_mask:0xf""")
    RS, NB = 60, 61
    a(f"""
s_nop 0
v_mul_f32 v{SA}, {f32(1 / 640)}, v{SA}
v_mul_f32 v{QA}, {f32(1 / 640)}, v{QA}
v_fma_f32 v{QA}, -v{SA}, v{SA}, v{QA}
v_max_f32 v{QA}, 0, v{QA}
v_add_f32 v{QA}, {f32(1e-5)}, v{QA}
v_rsq_f32 v{RS}, v{QA}
s_nop 0
v_mul_f32 v{NB}, v{SA}, v{RS}
v_sub_f32 v{NB}, 0, v{NB}""")
    a(f"""
s_lshr_b32 s45, s{S_W}, 2
s_mul_i32 s45, s45, 40960
s_and_b32 s46, s{S_W}, 3
s_lshl_b32 s46, s46, 7
s_add_u32 s45, s45, s46
v_xor_b32 v6, v3, v4
v_lshlrev_b32 v6, 4, v6
v_lshlrev_b32 v7, 9, v4
v_add3_u32 v13, v6, v7, s45""")
    for i in range(10):
        for j in range(4):
            r = XR + 4 * i + j
            t = 56 + 2 * (j % 2)
            a(f"""
v_lshlrev_b32 v{t}, 16, v{r}
v_and_b32 v{t + 1}, 0xffff0000, v{r}
v_pk_fma_f32 v[{t}:{t + 1}], v[{t}:{t + 1}], v[{RS}:{RS + 1}], v[{RS}:{RS + 1}] op_sel:[0,0,1] op_sel_hi:[1,0,1]
v_cvt_pk_bf16_f32 v{r}, v{t}, v{t + 1}""")
        a(f"ds_write_b128 v13, {vr(XR + 4 * i, 4)} offset:{4096 * i}")
    a(f"""
s_cmp_lt_u32 s{S_W}, 4
s_cbranch_scc1 {name}_compute""")
    a(f"""
s_sub_u32 s44, s{S_W}, 4
s_mul_i32 s44, s44, 3072
s_add_u32 s44, s44, {LDS_WR}
v_lshlrev_b32 v6, 4, v{LANE}
v_add_u32 v6, s44, v6
s_waitcnt vmcnt(18) lgkmcnt(0)
s_barrier
s_barrier""")
    for k in range(2, 10):
        a("s_barrier")
        c = k + 2
        if c < 10:
            a(f"s_waitcnt vmcnt({18 - 3 * (c - 3)})")
            for i in range(3):
                a(f"ds_write_b128 v6, {vr(WREG + 4 * (3 * (c - 4) + i), 4)} offset:{(c % 4) * 12288 + i * 1024}")
            a("s_waitcnt lgkmcnt(0)")
    a("s_endpgm")
    a(f"{name}_compute:")
    BA = 4
    WA, KA = 8, 9
    H, TOK = 10, 11
    ACC0, ACC1 = 16, 32
    BUF = 48
    a(f"""
s_and_b32 s44, s{S_W}, 1
s_lshr_b32 s45, s{S_W}, 1
v_lshrrev_b32 v{H}, 5, v{LANE}
v_and_b32 v{TOK}, 31, v{LANE}
s_mul_i32 s46, s44, 40960
v_and_b32 v12, 24, v{TOK}
v_and_b32 v13, 7, v{TOK}
v_lshlrev_b32 v14, 9, v{H}""")
    for q in range(4):
        a(f"""
v_or_b32 v15, {2 * q}, v{H}
v_xor_b32 v15, v15, v13
v_or_b32 v15, v15, v12
v_lshl_add_u32 v15, v15, 4, v14
v_add_u32 v15, s46, v15
v_add_u32 v{BA + q}, {1024 * q}, v15""")
    a(f"""
v_bfe_u32 v12, v{LANE}, 2, 2
v_lshl_add_u32 v12, v{H}, 3, v12
v_bfe_u32 v13, v{LANE}, 4, 1
v_lshlrev_b32 v13, 5, v13
v_and_b32 v14, 3, v{LANE}
v_lshl_add_u32 v13, v14, 3, v13
v_mul_u32_u24 v14, 192, v12
v_add_u32 v14, v14, v13
s_lshl_b32 s46, s45, 7
s_add_u32 s46, s46, {LDS_WR}
v_add_u32 v{WA}, s46, v14
v_mul_u32_u24 v14, 40, v12
v_add_u32 v14, v14, v13
v_add_u32 v{KA}, {LDS_KVW}, v14""")
    for r in range(ACC0, ACC0 + 32):
        a(f"v_mov_b32 v{r}, 0")
    a(f"""
s_waitcnt vmcnt(0) lgkmcnt(0)
s_barrier
s_cmp_eq_u32 s45, 0
s_cbranch_scc1 {name}_m01
s_cmp_eq_u32 s{S_CB}, 0
s_cbranch_scc1 {name}_mk
s_cmp_eq_u32 s{S_CB}, 1
s_cbranch_scc1 {name}_mv
s_branch {name}_mq""")

    def reads(s, kind):
        b = BUF + 12 * (s % 4)
        c, sg = divmod(s, 4)
        wo = (c % 4) * 12288 + sg * 3072
        n = 0
        a(f"ds_read_b128 {vr(b + 8, 4)}, v{BA + s % 4} offset:{c * 4096}")
        a(f"ds_read_b64_tr_b16 {vr(b, 2)}, v{WA} offset:{wo}")
        a(f"ds_read_b64_tr_b16 {vr(b + 2, 2)}, v{WA} offset:{wo + 768}")
        n = 3
        if kind == "m01":
            a(f"ds_read_b64_tr_b16 {vr(b + 4, 2)}, v{WA} offset:{wo + 64}")
            a(f"ds_read_b64_tr_b16 {vr(b + 6, 2)}, v{WA} offset:{wo + 64 + 768}")
            n = 5
        elif kind in ("k", "v"):
            a(f"ds_read_b64_tr_b16 {vr(b + 4, 2)}, v{KA} offset:{s * 640}")
            a(f"ds_read_b64_tr_b16 {vr(b + 6, 2)}, v{KA} offset:{s * 640 + 160}")
            n = 5
        return n

    def mainloop(kind):
        n = reads(0, kind)
        reads(1, kind)
        for s in range(40):
            b = BUF + 12 * (s % 4)
            if s + 2 < 40:
                if (s + 2) % 4 == 0:
                    a("s_barrier")
                reads(s + 2, kind)
                a(f"s_waitcnt lgkmcnt({2 * n})")
            else:
                a(f"s_waitcnt lgkmcnt({n * (39 - s)})")
            a(mfma(ACC0, b, b + 8, ACC0))
            if kind in ("m01", "k"):
                a(mfma(ACC1, b + 4, b + 8, ACC1))
            elif kind == "v":
                a(mfma(ACC1, b + 8, b + 4, ACC1))
        a("s_nop 7\ns_nop 7")

    def qoff(cg):
        return (cg // 5) * 98304 + [0, 512, 8, 520, 1024][cg % 5]

    def qstore(tiles):
        a(f"""
s_lshl_b32 s47, s{S_CB}, 8
s_lshl_b32 s48, s{S_RB}, 1
s_add_u32 s47, s47, s48
s_add_u32 s47, s47, s44
s_mul_i32 s47, s47, 1536
s_add_u32 s47, s47, {QF}
v_lshlrev_b32 v12, 4, v{TOK}
v_xor_b32 v13, 1, v{H}
s_mov_b32 s50, {f32(QSCALE)}""")
        k = 0
        for acc, m, groups in tiles:
            for g in range(groups):
                lo, up = qoff(8 * m + 2 * g), qoff(8 * m + 2 * g + 1)
                base = min(lo, up)
                sel = H if up > lo else 13
                r = acc + 4 * g
                t = 4 + 2 * (k % 2)
                k += 1
                a(f"""
s_mov_b32 s49, {abs(up - lo)}
v_mul_f32 v{r}, s50, v{r}
v_mul_f32 v{r + 1}, s50, v{r + 1}
v_mul_f32 v{r + 2}, s50, v{r + 2}
v_mul_f32 v{r + 3}, s50, v{r + 3}
v_mad_u32_u24 v14, v{sel}, s49, v12
s_add_u32 s49, s47, {base}
v_cvt_pk_bf16_f32 v{t}, v{r}, v{r + 1}
v_cvt_pk_bf16_f32 v{t + 1}, v{r + 2}, v{r + 3}
buffer_store_dwordx2 {vr(t, 2)}, v14, s[{WS}:{WS + 3}], s49 offen""")

    def kt_base():
        a(f"""
s_lshl_b32 s51, s{S_RB}, 1
s_add_u32 s51, s51, s44
s_mul_i32 s52, s51, 3072
s_add_u32 s52, s52, {KV}
s_lshl_b32 s51, s51, 2
s_add_u32 s51, s51, {KN}
v_lshlrev_b32 v8, 4, v{LANE}""")

    a(f"{name}_m01:")
    mainloop("m01")
    qstore([(ACC0, 0, 4), (ACC1, 1, 4)])
    a("s_endpgm")

    a(f"{name}_mq:")
    mainloop("q")
    qstore([(ACC0, 2, 2)])
    a("s_endpgm")

    a(f"{name}_mk:")
    mainloop("k")
    qstore([(ACC0, 2, 2)])
    kt_base()
    for j in range(6):
        a(f"v_cvt_pk_bf16_f32 v{48 + j}, v{ACC1 + 2 * j}, v{ACC1 + 2 * j + 1}")
    a(f"""
buffer_store_dwordx4 v[48:51], v8, s[{WS}:{WS + 3}], s52 offen
v_lshrrev_b32 v12, 4, v{TOK}
v_lshlrev_b32 v12, 9, v12
v_and_b32 v13, 15, v{TOK}
v_lshl_add_u32 v12, v13, 3, v12
v_add_u32 v12, {1024 + 336}, v12
v_lshl_add_u32 v12, v{H}, 30, v12
v_mul_f32 v56, v{ACC1 + 8}, v{ACC1 + 8}
buffer_store_dwordx2 v[52:53], v12, s[{WS}:{WS + 3}], s52 offen""")
    for j in range(9, 12):
        a(f"v_fmac_f32 v56, v{ACC1 + j}, v{ACC1 + j}")
    a(f"""
v_cmp_eq_u32 s[54:55], 0, v{H}
s_nop 1
v_cndmask_b32 v56, 0, v56, s[54:55]""")
    for j in range(8):
        a(f"v_fmac_f32 v56, v{ACC1 + j}, v{ACC1 + j}")
    a.half_sum(56, 57)
    a.wave_max(56)
    a(f"""
v_mov_b32 v12, 0
s_mov_b32 exec_lo, 0
s_mov_b32 exec_hi, 0x80000000
buffer_store_dword v56, v12, s[{WS}:{WS + 3}], s51 offen
s_endpgm""")

    a(f"{name}_mv:")
    mainloop("v")
    qstore([(ACC0, 2, 2)])
    kt_base()
    a(f"""
v_max3_f32 v56, |v{ACC1}|, |v{ACC1 + 1}|, |v{ACC1 + 2}|""")
    for j in range(3, 15, 2):
        a(f"v_max3_f32 v56, |v{ACC1 + j}|, |v{ACC1 + j + 1}|, v56")
    a(f"""
v_max_f32 v56, |v{ACC1 + 15}|, v56
v_cmp_gt_u32 s[54:55], 20, v{TOK}
v_mov_b32 v57, 0x3f803f80""")
    for j in range(8):
        a(f"v_cvt_pk_bf16_f32 v{48 + j}, v{ACC1 + 2 * j}, v{ACC1 + 2 * j + 1}")
    a(f"v_cndmask_b32 v56, 0, v56, s[54:55]")
    for j in range(8):
        a(f"v_cndmask_b32 v{48 + j}, v57, v{48 + j}, s[54:55]")
    a.wave_max(56)
    a(f"""
v_mov_b32 v12, 0
s_mov_b32 exec_lo, 0x001fffff
s_mov_b32 exec_hi, 0x001fffff
buffer_store_dwordx4 v[48:51], v8, s[{WS}:{WS + 3}], s52 offen offset:1024
buffer_store_dwordx4 v[52:55], v8, s[{WS}:{WS + 3}], s52 offen offset:2048
s_mov_b32 exec_lo, 0
s_mov_b32 exec_hi, 0x80000000
buffer_store_dword v56, v12, s[{WS}:{WS + 3}], s51 offen offset:256""")
    a(f"{name}_end:")
    a("s_endpgm")
    a.end(name, 136)
    return a.text(), 512, K1_LDS
```

```python
from common import *

RING_HALF = 49152
LDS_PS = 98304
LDS_MISC = LDS_PS + 40960
K2_LDS = LDS_MISC + 256 + 2048
SAFE_BOUND = 80.0 / 1.03
SAFE_V = 2.0 ** 30


def gen_k2(name, prio=True):
    a = Asm()
    a.begin(name)
    WS, WT = 4, 8
    S_W, S_RB, S_CB = 32, 33, 34
    S_HALF, S_SLOT, S_SRC, S_T, S_DST = 35, 36, 37, 38, 39
    S_IDX = 40
    LANE, VA, VK4, VL16, VA0, VK40, H, TOK = 2, 3, 4, 5, 6, 7, 8, 9
    QA, QB = 16, 22
    S0, S1 = 32, 48
    P = 64
    OA, OB = 72, 88
    CA, CB = 104, 120
    KB = [136, 142]
    VB = [148, 156]
    T = 164
    a(f"""
s_cmp_ge_u32 s2, 256
s_cbranch_scc1 {name}_end
s_load_dwordx2 s[12:13], s[0:1], 88
s_load_dwordx2 s[14:15], s[0:1], 32
s_load_dwordx4 s[16:19], s[0:1], 48
s_load_dwordx2 s[20:21], s[0:1], 64""")
    a.ids(S_W, LANE, S_RB, S_CB, 41, 42)
    a(f"""
v_lshrrev_b32 v{H}, 5, v{LANE}
v_and_b32 v{TOK}, 31, v{LANE}
v_lshlrev_b32 v{VL16}, 4, v{LANE}
s_lshr_b32 s{S_HALF}, s{S_W}, 2
s_and_b32 s41, s{S_W}, 3
s_lshl_b32 s42, s{S_CB}, 2
s_add_u32 s42, s42, s41
s_lshl_b32 s43, s42, 6
s_lshl_b32 s44, s{S_RB}, 1
s_add_u32 s43, s43, s44
s_add_u32 s45, s43, s{S_HALF}
s_xor_b32 s46, s{S_HALF}, 1
s_add_u32 s46, s43, s46
s_mul_i32 s45, s45, 1536
s_mul_i32 s46, s46, 1536
s_add_u32 s45, s45, {QF}
s_add_u32 s46, s46, {QF}
v_lshlrev_b32 v10, 4, v{TOK}
v_lshl_add_u32 v10, v{H}, 30, v10
v_lshlrev_b32 v11, 2, v{LANE}
s_waitcnt lgkmcnt(0)""")
    a.srd(WS, 12, WS_USED)
    a(f"""
s_mov_b32 s47, {KN}
buffer_load_dwordx4 {vr(QA, 4)}, v{VL16}, s[{WS}:{WS + 3}], s45 offen
buffer_load_dwordx2 {vr(QA + 4, 2)}, v10, s[{WS}:{WS + 3}], s45 offen offset:1024
buffer_load_dwordx4 {vr(QB, 4)}, v{VL16}, s[{WS}:{WS + 3}], s46 offen
buffer_load_dwordx2 {vr(QB + 4, 2)}, v10, s[{WS}:{WS + 3}], s46 offen offset:1024
buffer_load_dword v12, v11, s[{WS}:{WS + 3}], s47 offen
buffer_load_dword v13, v11, s[{WS}:{WS + 3}], s47 offen offset:256
s_lshl_b32 s{S_SRC}, s{S_HALF}, 5
s_add_u32 s{S_SRC}, s{S_SRC}, s41
s_mul_i32 s{S_SRC}, s{S_SRC}, 3072
s_add_u32 s{S_SRC}, s{S_SRC}, {KV}
s_mul_i32 s{S_DST}, s{S_HALF}, {RING_HALF}
s_mul_i32 s48, s41, 3072
s_add_u32 s{S_DST}, s{S_DST}, s48""")

    def stage_dma(dst):
        for i in range(3):
            a.dma(VL16, WS, f"s{S_SRC}", dst if i == 0 else None, imm=1024 * i)

    for st in range(3):
        a(f"s_add_u32 s48, s{S_DST}, {st * 12288}")
        stage_dma("s48")
        a(f"s_add_u32 s{S_SRC}, s{S_SRC}, 12288")
    a(f"""
s_mul_i32 s48, s{S_HALF}, {RING_HALF}
v_add_u32 v{VA0}, s48, v{VL16}
v_lshrrev_b32 v14, 4, v{TOK}
v_lshlrev_b32 v14, 9, v14
v_and_b32 v15, 15, v{TOK}
v_lshl_add_u32 v14, v15, 3, v14
s_add_u32 s48, s48, {1024 + 336}
v_add_u32 v{VK40}, s48, v14
v_mov_b32 v{VA}, v{VA0}
v_mov_b32 v{VK4}, v{VK40}""")
    for r in list(range(OA, OA + 32)) + list(range(CA, CA + 32)) + list(range(P + 4, P + 8)) + list(range(VB[1] + 4, VB[1] + 8)):
        a(f"v_mov_b32 v{r}, 0")
    a(f"""
s_waitcnt vmcnt(9)
v_mov_b32 v14, 0
v_mov_b32 v15, 0""")
    for j in range(6):
        a(f"v_dot2_f32_bf16 v14, v{QA + j}, v{QA + j}, v14")
        a(f"v_dot2_f32_bf16 v15, v{QB + j}, v{QB + j}, v15")
    a.wave_max(12)
    a.wave_max(13)
    a.half_sum(14, T)
    a.half_sum(15, T)
    a(f"""
s_nop 0
v_readlane_b32 s48, v12, 63
v_readlane_b32 s49, v13, 63
v_max_f32 v14, v14, v15
v_mov_b32 v{T}, {f32(SAFE_BOUND ** 2)}
v_mov_b32 v{T + 1}, {f32(SAFE_V)}
v_mul_f32 v14, s48, v14
v_mov_b32 v15, s49
v_cmp_nle_f32 s[50:51], v14, v{T}
v_cmp_nle_f32 s[52:53], v15, v{T + 1}""")
    a(f"""
s_nop 3
s_or_b64 s[50:51], s[50:51], s[52:53]
s_cselect_b32 s50, 1, 0
v_mov_b32 v14, s50
s_lshl_b32 s51, s{S_W}, 2
s_add_u32 s51, s51, {LDS_MISC}
v_mov_b32 v15, s51
ds_write_b32 v15, v14
s_waitcnt vmcnt(6) lgkmcnt(0)
s_barrier
v_mov_b32 v15, {LDS_MISC}
ds_read_b128 {vr(T, 4)}, v15
ds_read_b128 {vr(T + 4, 4)}, v15 offset:16
ds_read_b128 {vr(KB[0], 4)}, v{VA}
ds_read_b64 {vr(KB[0] + 4, 2)}, v{VK4}
ds_read_b128 {vr(VB[0], 4)}, v{VA} offset:1024
ds_read_b128 {vr(VB[0] + 4, 4)}, v{VA} offset:2048""")
    a(f"""
s_lshr_b32 s{S_IDX}, s2, 3
s_and_b32 s48, s2, 7
s_lshl_b32 s48, s48, 5
s_add_u32 s{S_IDX}, s{S_IDX}, s48
s_mul_i32 s54, s{S_W}, 5120
s_add_u32 s54, s54, {LDS_PS}
v_lshrrev_b32 v10, 2, v{LANE}
v_and_b32 v11, 3, v{LANE}
s_cmp_ge_u32 s{S_IDX}, 96
s_cbranch_scc1 {name}_ps_ld_b
v_and_b32 v12, 1, v11
v_lshlrev_b32 v12, 4, v12
v_mul_u32_u24 v13, 3072, v10
v_add_u32 v12, v12, v13
s_mul_i32 s55, s{S_W}, {5 * 49152}
s_lshl_b32 s56, s{S_IDX}, 5
s_add_u32 s55, s55, s56
v_add_u32 v12, s55, v12
v_cmp_lt_u32 s[56:57], 1, v11
v_mov_b32 v{T + 8}, s16
v_mov_b32 v{T + 9}, s17
v_mov_b32 v{T + 10}, s18
v_mov_b32 v{T + 11}, s19
v_cndmask_b32 v{T + 8}, v{T + 8}, v{T + 10}, s[56:57]
v_cndmask_b32 v{T + 9}, v{T + 9}, v{T + 11}, s[56:57]
v_add_co_u32 v{T + 8}, vcc, v{T + 8}, v12
s_nop 1
v_addc_co_u32 v{T + 9}, vcc, 0, v{T + 9}, vcc""")
    for i in range(5):
        a(f"""
s_add_u32 s55, s54, {1024 * i}
s_mov_b32 m0, s55
s_nop 0
global_load_lds_dwordx4 {vr(T + 8, 2)}, off""")
        if i < 4:
            a(f"""
v_add_co_u32 v{T + 8}, vcc, 49152, v{T + 8}
s_nop 1
v_addc_co_u32 v{T + 9}, vcc, 0, v{T + 9}, vcc""")
    a(f"""
s_branch {name}_ps_ld_done
{name}_ps_ld_b:
s_sub_u32 s55, s{S_IDX}, 96
s_cmp_ge_u32 s55, 136
s_cbranch_scc1 {name}_ps_ld_done
s_cmp_ge_u32 s55, 40
s_cbranch_scc1 {name}_ps_ld_w2
s_mov_b32 s{WT + 2}, {640 * 1280}
s_cmp_ge_u32 s55, 32
s_cbranch_scc1 {name}_ps_ld_rem
s_mul_i32 s56, s55, 20
v_add_u32 v10, s56, v10
s_branch {name}_ps_ld_go
{name}_ps_ld_rem:
s_sub_u32 s56, s55, 32
s_lshl_b32 s56, s56, 2
v_bfe_u32 v12, v10, 2, 1
v_lshlrev_b32 v12, 1, v12
v_lshrrev_b32 v13, 3, v10
v_add3_u32 v12, v12, v13, s56
v_mul_u32_u24 v12, 20, v12
v_and_b32 v10, 3, v10
v_add3_u32 v10, v10, v12, 16
s_branch {name}_ps_ld_go
{name}_ps_ld_w2:
s_mov_b32 s14, s20
s_mov_b32 s15, s21
s_mov_b32 s{WT + 2}, {1536 * 1280}
s_sub_u32 s56, s55, 40
s_lshl_b32 s56, s56, 4
v_add_u32 v10, s56, v10
{name}_ps_ld_go:
s_mov_b32 s{WT}, s14
s_mov_b32 s{WT + 1}, s15
s_mov_b32 s{WT + 3}, {SRD3}
v_mul_u32_u24 v10, 1280, v10
v_lshl_add_u32 v10, v11, 4, v10
s_mul_i32 s56, s{S_W}, 160""")
    for i in range(3):
        a(f"s_add_u32 s55, s54, {1024 * i}")
        a.dma(10, WT, "s56", "s55")
        if i < 2:
            a("s_add_u32 s56, s56, 64")
    a(f"{name}_ps_ld_done:")
    a(f"""
s_waitcnt lgkmcnt(4)
v_or3_b32 v{T}, v{T}, v{T + 1}, v{T + 2}
v_or3_b32 v{T + 3}, v{T + 3}, v{T + 4}, v{T + 5}
v_or3_b32 v{T}, v{T}, v{T + 6}, v{T + 7}
v_or_b32 v{T}, v{T}, v{T + 3}
s_nop 0
v_readfirstlane_b32 s48, v{T}
s_nop 3
s_cmp_lg_u32 s48, 0
s_cbranch_scc1 {name}_truemax
{name}_start:
s_waitcnt lgkmcnt(0)
{mfma(S0, KB[0], QA, CA)}
{mfma8(S0, KB[0] + 4, QA + 4, S0)}
s_mov_b32 s{S_T}, 0
s_mov_b32 s{S_SLOT}, 0
s_nop 7
s_nop 3""")

    def job(cur, nxt, q, c, kb, o_cur, v_cur, o_prev, v_prev, mid=None, pre=None):
        if pre:
            a(pre)
        a(mfma(nxt, kb, q, c))
        for j in range(0, 4):
            a(f"v_exp_f32 v{cur + j}, v{cur + j}")
        a(mfma(o_prev, v_prev + 4, P + 4, o_prev))
        if mid:
            mid()
        for j in range(4, 8):
            a(f"v_exp_f32 v{cur + j}, v{cur + j}")
        a(mfma8(nxt, kb + 4, q + 4, nxt))
        for j in range(0, 4):
            a(f"v_cvt_pk_bf16_f32 v{P + j}, v{cur + 2 * j}, v{cur + 2 * j + 1}")
        for j in range(8, 12):
            a(f"v_exp_f32 v{cur + j}, v{cur + j}")
        a(mfma(o_cur, v_cur, P, o_cur))
        for j in range(12, 16):
            a(f"v_exp_f32 v{cur + j}, v{cur + j}")
        for j in range(4, 8):
            a(f"v_cvt_pk_bf16_f32 v{P + j}, v{cur + 2 * j}, v{cur + 2 * j + 1}")

    def tile_reads(buf, off):
        a(f"""
ds_read_b128 {vr(KB[buf], 4)}, v{VA} offset:{off}
ds_read_b64 {vr(KB[buf] + 4, 2)}, v{VK4} offset:{off}
ds_read_b128 {vr(VB[buf], 4)}, v{VA} offset:{off + 1024}
ds_read_b128 {vr(VB[buf] + 4, 4)}, v{VA} offset:{off + 2048}""")

    a(".p2align 6")
    a(f"{name}_loop:")
    a(f"""
s_cmp_eq_u32 s{S_T}, 3
s_cbranch_scc1 {name}_ps_store
{name}_ps_back:
s_cmp_eq_u32 s{S_T}, 4
s_cbranch_scc1 {name}_ps_fin
{name}_fin_back:""")
    for u in range(4):
        b, nb = u % 2, (u + 1) % 2

        def mid(u=u, nb=nb):
            if u < 3:
                tile_reads(nb, (u + 1) * 3072)
            else:
                a(f"""
s_add_u32 s{S_SLOT}, s{S_SLOT}, 12288
s_cmp_eq_u32 s{S_SLOT}, {RING_HALF}
s_cselect_b32 s{S_SLOT}, 0, s{S_SLOT}
v_add_u32 v{VA}, s{S_SLOT}, v{VA0}
v_add_u32 v{VK4}, s{S_SLOT}, v{VK40}
s_waitcnt vmcnt(3)
s_barrier""")
                tile_reads(nb, 0)
                a(f"""
s_add_u32 s48, s{S_SLOT}, {2 * 12288}
s_cmp_ge_u32 s48, {RING_HALF}
s_cselect_b32 s49, {RING_HALF}, 0
s_sub_u32 s48, s48, s49
s_add_u32 s48, s48, s{S_DST}
s_cmp_ge_u32 s{S_T}, 5
s_cselect_b32 s{S_SRC}, {OOB}, s{S_SRC}""")
                stage_dma("s48")
                a(f"s_add_u32 s{S_SRC}, s{S_SRC}, 12288")

        job(S0, S1, QB, CB, KB[b], OA, VB[b], OB, VB[nb], mid=mid, pre="s_setprio 1" if prio else None)
        job(S1, S0, QA, CA, KB[nb], OB, VB[b], OA, VB[b], pre=("s_setprio 0\n" if prio else "") + "s_waitcnt lgkmcnt(0)")
    a(f"""
s_add_u32 s{S_T}, s{S_T}, 1
s_cmp_lt_u32 s{S_T}, 8
s_cbranch_scc1 {name}_loop
s_nop 0
{mfma(OB, VB[1] + 4, P + 4, OB)}""")
    a(f"""
s_mul_i32 s54, s{S_W}, 5120
s_add_u32 s54, s54, {LDS_PS}
s_xor_b32 s55, s{S_W}, 4
s_mul_i32 s55, s55, 5120
s_add_u32 s55, s55, {LDS_PS}
v_add_u32 v10, s54, v{VL16}
v_add_u32 v11, s55, v{VL16}
s_lshl_b32 s45, s{S_RB}, 1
s_add_u32 s45, s45, s{S_HALF}
s_mul_i32 s45, s45, 40
s_add_u32 s46, s45, s42
s_lshl_b32 s46, s46, 10
s_add_u32 s46, s46, {OF}
s_add_u32 s45, s45, s{S_CB}
s_add_u32 s45, s45, 32
s_lshl_b32 s45, s45, 10
s_lshl_b32 s47, s41, 8
s_and_b32 s47, s47, 512
s_add_u32 s45, s45, s47
s_lshl_b32 s47, s41, 3
s_and_b32 s47, s47, 8
s_add_u32 s45, s45, s47
s_add_u32 s45, s45, {OF}
v_lshlrev_b32 v12, 4, v{TOK}
v_lshl_add_u32 v12, v{H}, 30, v12
s_nop 1""")
    for j in range(3):
        a(f"ds_write_b128 v10, {vr(OB + 4 * j, 4)} offset:{1024 * j}")
    a("s_waitcnt lgkmcnt(0)\ns_barrier")
    for j in range(3):
        a(f"ds_read_b128 {vr(T + 4 * j, 4)}, v11 offset:{1024 * j}")
    a("s_waitcnt lgkmcnt(0)")
    for j in range(12):
        a(f"v_add_f32 v{OA + j}, v{OA + j}, v{T + j}")
    a(f"""
v_mov_b32 v14, v{OA + 8}
v_mov_b32 v15, v{OA + 8}
s_nop 1
v_permlane32_swap_b32 v14, v15
s_nop 1
v_rcp_f32 v15, v15
s_nop 0""")
    for j in range(12):
        a(f"v_mul_f32 v{OA + j}, v{OA + j}, v15")
    for j in range(6):
        a(f"v_cvt_pk_bf16_f32 v{T + j}, v{OA + 2 * j}, v{OA + 2 * j + 1}")
    a(f"""
buffer_store_dwordx4 {vr(T, 4)}, v{VL16}, s[{WS}:{WS + 3}], s46 offen
buffer_store_dwordx2 {vr(T + 4, 2)}, v12, s[{WS}:{WS + 3}], s45 offen
s_endpgm""")

    def tr_addr():
        a(f"""
v_bfe_u32 v10, v{LANE}, 2, 2
v_lshl_add_u32 v10, v{H}, 2, v10
v_lshlrev_b32 v10, 6, v10
v_bfe_u32 v11, v{LANE}, 4, 1
v_lshl_add_u32 v10, v11, 5, v10
v_and_b32 v11, 3, v{LANE}
v_lshl_add_u32 v10, v11, 3, v10
v_add_u32 v10, s54, v10""")

    def tr_reads(n):
        for i in range(n):
            a(f"ds_read_b64_tr_b16 {vr(T + 4 * i, 2)}, v10 offset:{1024 * i}")
            a(f"ds_read_b64_tr_b16 {vr(T + 4 * i + 2, 2)}, v10 offset:{1024 * i + 512}")

    CS = T + 20
    a(f"""
{name}_ps_store:
s_waitcnt vmcnt(3)
s_cmp_ge_u32 s{S_IDX}, 96
s_cbranch_scc1 {name}_ps_st_b""")
    tr_addr()
    tr_reads(5)
    a(f"""
s_mul_i32 s55, s{S_IDX}, 43691
s_lshr_b32 s55, s55, 18
s_mul_i32 s56, s55, 6
s_sub_u32 s56, s{S_IDX}, s56
s_mul_i32 s55, s55, 41
s_mul_i32 s57, s{S_W}, 5
s_add_u32 s57, s57, s55
s_mul_i32 s57, s57, 6144
s_lshl_b32 s56, s56, 10
s_add_u32 s57, s57, s56
s_add_u32 s57, s57, {W13F}
v_mov_b32 v{CS + 4}, 0x3f803f80
v_mov_b32 v{CS + 5}, 0x3f803f80
s_waitcnt lgkmcnt(0)""")
    for i in range(5):
        a(f"buffer_store_dwordx4 {vr(T + 4 * i, 4)}, v{VL16}, s[{WS}:{WS + 3}], s57 offen")
        if i < 4:
            a("s_add_u32 s57, s57, 6144")
        c0 = "0" if i == 0 else vr(CS, 4)
        a(f"v_mfma_f32_4x4x4_16b_bf16 {vr(CS, 4)}, {vr(CS + 4, 2)}, {vr(T + 4 * i, 2)}, {c0}")
        a("s_nop 1")
        a(f"v_mfma_f32_4x4x4_16b_bf16 {vr(CS, 4)}, {vr(CS + 4, 2)}, {vr(T + 4 * i + 2, 2)}, {vr(CS, 4)}")
        a("s_nop 1")
    a(f"""
s_lshl_b32 s55, s{S_W}, 8
s_add_u32 s55, s55, {LDS_MISC + 256}
v_lshl_add_u32 v10, v{LANE}, 2, s55
s_nop 4
ds_write_b32 v10, v{CS}
s_waitcnt lgkmcnt(0)
s_branch {name}_ps_back
{name}_ps_st_b:
s_sub_u32 s55, s{S_IDX}, 96
s_cmp_ge_u32 s55, 136
s_cbranch_scc1 {name}_ps_back""")
    tr_addr()
    tr_reads(3)
    a(f"""
s_cmp_ge_u32 s55, 40
s_cselect_b32 s56, 96, 40
s_cselect_b32 s57, 40, 0
s_mov_b32 s58, {WOF}
s_cselect_b32 s58, {W2F}, s58
s_mul_i32 s56, s56, s{S_W}
s_sub_u32 s55, s55, s57
s_add_u32 s56, s56, s55
s_mul_i32 s56, s56, 2560
s_add_u32 s56, s56, s58
v_and_b32 v11, 15, v{LANE}
v_lshl_add_u32 v11, v{H}, 4, v11
v_lshlrev_b32 v11, 4, v11
v_bfe_u32 v12, v{LANE}, 4, 1
v_lshl_add_u32 v11, v12, 30, v11
s_waitcnt lgkmcnt(0)
buffer_store_dwordx4 {vr(T, 4)}, v{VL16}, s[{WS}:{WS + 3}], s56 offen
buffer_store_dwordx4 {vr(T + 4, 4)}, v{VL16}, s[{WS}:{WS + 3}], s56 offen offset:1024
buffer_store_dwordx4 {vr(T + 8, 4)}, v11, s[{WS}:{WS + 3}], s56 offen offset:2048
s_branch {name}_ps_back""")
    a(f"""
{name}_ps_fin:
s_cmp_ge_u32 s{S_IDX}, 96
s_cbranch_scc1 {name}_fin_back
s_cmp_lg_u32 s{S_W}, 0
s_cbranch_scc1 {name}_fin_back
v_lshlrev_b32 v10, 2, v{LANE}
v_add_u32 v10, {LDS_MISC + 256}, v10""")
    for i in range(8):
        a(f"ds_read_b32 v{T + i}, v10 offset:{256 * i}")
    a(f"""
s_mul_i32 s55, s{S_IDX}, 43691
s_lshr_b32 s55, s55, 18
s_mul_i32 s56, s55, 6
s_sub_u32 s56, s{S_IDX}, s56
s_mul_i32 s55, s55, 41
s_add_u32 s55, s55, 40
s_mul_i32 s55, s55, 6144
s_lshl_b32 s56, s56, 10
s_add_u32 s55, s55, s56
s_add_u32 s55, s55, {W13F}
s_waitcnt lgkmcnt(0)""")
    for i in range(1, 8):
        a(f"v_add_f32 v{T}, v{T}, v{T + i}")
    a.half_sum(T, T + 1)
    a(f"""
v_cvt_pk_bf16_f32 v{T + 4}, v{T}, v{T}
v_cmp_eq_u32 s[56:57], 0, v{H}
v_and_b32 v{T + 1}, 0xffff0000, v{T + 4}
v_sub_f32 v{T + 1}, v{T}, v{T + 1}
v_mov_b32 v{T + 6}, 0
v_mov_b32 v{T + 7}, 0
v_cvt_pk_bf16_f32 v{T + 5}, v{T + 1}, v{T + 6}
v_cndmask_b32 v{T + 4}, 0, v{T + 4}, s[56:57]
v_cndmask_b32 v{T + 5}, 0, v{T + 5}, s[56:57]
buffer_store_dwordx4 {vr(T + 4, 4)}, v{VL16}, s[{WS}:{WS + 3}], s55 offen
s_branch {name}_fin_back""")
    MA, MB = T + 8, T + 9
    a(f"""
{name}_truemax:
v_mov_b32 v{MA}, 0xff800000
v_mov_b32 v{MB}, 0xff800000
s_mul_i32 s48, s{S_HALF}, {RING_HALF}
v_subrev_u32 v10, s48, v{VK40}
s_mov_b32 s48, {KV}
{name}_tm_loop:
buffer_load_dwordx4 {vr(T, 4)}, v{VL16}, s[{WS}:{WS + 3}], s48 offen
buffer_load_dwordx2 {vr(T + 4, 2)}, v10, s[{WS}:{WS + 3}], s48 offen
s_waitcnt vmcnt(0)
{mfma(S0, T, QA, "0")}
{mfma(S1, T, QB, "0")}
{mfma8(S0, T + 4, QA + 4, S0)}
{mfma8(S1, T + 4, QB + 4, S1)}
s_nop 7
s_nop 7""")
    for j in range(8):
        a(f"v_max3_f32 v{MA}, v{S0 + 2 * j}, v{S0 + 2 * j + 1}, v{MA}")
        a(f"v_max3_f32 v{MB}, v{S1 + 2 * j}, v{S1 + 2 * j + 1}, v{MB}")
    a(f"""
s_add_u32 s48, s48, 3072
s_cmp_lt_u32 s48, {KV + 64 * 3072}
s_cbranch_scc1 {name}_tm_loop""")
    a.half_max(MA, T)
    a.half_max(MB, T)
    for j in range(16):
        a(f"v_sub_f32 v{CA + j}, 0, v{MA}")
        a(f"v_sub_f32 v{CB + j}, 0, v{MB}")
    a(f"""
s_nop 1
s_branch {name}_start""")
    a(f"{name}_end:")
    a("s_endpgm")
    a.end(name, 208)
    return a.text(), 512, K2_LDS
```

```python
from common import *

SLOT = 36864
NSLOT = 4
LDS_RED = SLOT * NSLOT
K35_LDS = LDS_RED + 512


def gen_k35(name, which):
    NK = 40 if which == 3 else 96
    NC = NK // 8
    ACT, WF = (OF, WOF) if which == 3 else (HHF, W2F)
    a = Asm()
    a.begin(name)
    WS, EX = 4, 8
    S_W, S_RB, S_CB = 32, 33, 34
    LANE, VL16, H, TOK = 2, 3, 4, 5
    a(f"""
s_cmp_ge_u32 s2, 256
s_cbranch_scc1 {name}_end
s_load_dwordx2 s[12:13], s[0:1], 88
s_load_dwordx2 s[14:15], s[0:1], {0 if which == 3 else 72}""")
    a.ids(S_W, LANE, S_RB, S_CB, 35, 36)
    a(f"""
v_lshlrev_b32 v{VL16}, 4, v{LANE}
s_waitcnt lgkmcnt(0)""")
    a.srd(WS, 12, WS_USED)
    a(f"""
s_cmp_lt_u32 s{S_W}, 4
s_cbranch_scc1 {name}_compute""")
    S_N0, S_N1, S_WS, S_L0, S_LW, S_SLOT, S_C = 40, 41, 42, 43, 44, 45, 46
    a(f"""
s_sub_u32 s35, s{S_W}, 4
s_lshl_b32 s36, s{S_RB}, 1
s_mul_i32 s36, s36, {NK}
s_lshl_b32 s37, s35, 1
s_add_u32 s36, s36, s37
s_lshl_b32 s36, s36, 10
s_add_u32 s{S_N0}, s36, {ACT}
s_add_u32 s{S_N1}, s{S_N0}, {NK * 1024}
s_mul_i32 s36, s{S_CB}, {NK * 2560}
s_mul_i32 s37, s35, 5120
s_add_u32 s36, s36, s37
s_add_u32 s{S_WS}, s36, {WF}
s_lshl_b32 s{S_L0}, s35, 11
s_add_u32 s{S_LW}, s37, 16384
s_mov_b32 s{S_SLOT}, 0""")

    def issue():
        a(f"s_add_u32 s36, s{S_SLOT}, s{S_L0}")
        a.dma(VL16, WS, f"s{S_N0}", "s36")
        a.dma(VL16, WS, f"s{S_N0}", None, imm=1024)
        a("s_add_u32 s36, s36, 8192")
        a.dma(VL16, WS, f"s{S_N1}", "s36")
        a.dma(VL16, WS, f"s{S_N1}", None, imm=1024)
        a(f"s_add_u32 s36, s{S_SLOT}, s{S_LW}")
        a.dma(VL16, WS, f"s{S_WS}", "s36")
        for i in range(1, 4):
            a.dma(VL16, WS, f"s{S_WS}", None, imm=1024 * i)
        a(f"s_add_u32 s36, s36, 4096\ns_add_u32 s37, s{S_WS}, 4096")
        a.dma(VL16, WS, "s37", "s36")
        a(f"""
s_add_u32 s{S_N0}, s{S_N0}, 8192
s_add_u32 s{S_N1}, s{S_N1}, 8192
s_add_u32 s{S_WS}, s{S_WS}, 20480
s_add_u32 s{S_SLOT}, s{S_SLOT}, {SLOT}
s_cmp_eq_u32 s{S_SLOT}, {SLOT * NSLOT}
s_cselect_b32 s{S_SLOT}, 0, s{S_SLOT}""")

    for _ in range(NSLOT - 1):
        issue()
    a(f"""
s_waitcnt vmcnt({9 * (NSLOT - 2)})
s_barrier
s_mov_b32 s{S_C}, {NSLOT - 1}
{name}_ld_loop:
s_waitcnt vmcnt({9 * (NSLOT - 3)})
s_barrier
s_cmp_ge_u32 s{S_C}, {NC}
s_cselect_b32 s{S_N0}, {OOB}, s{S_N0}
s_cselect_b32 s{S_N1}, {OOB}, s{S_N1}
s_cselect_b32 s{S_WS}, {OOB}, s{S_WS}""")
    issue()
    a(f"""
s_add_u32 s{S_C}, s{S_C}, 1
s_cmp_lt_u32 s{S_C}, {NC + NSLOT - 1}
s_cbranch_scc1 {name}_ld_loop
s_endpgm""")
    a(f"{name}_compute:")
    S_WN, S_WM, S_TT = 40, 41, 42
    VA0, VB0, VA, VB = 6, 7, 8, 9
    RES = 16
    ACC = [32, 48]
    BUF = 64
    a(f"""
s_and_b32 s{S_WN}, s{S_W}, 1
s_lshr_b32 s{S_WM}, s{S_W}, 1
s_lshl_b32 s{S_TT}, s{S_RB}, 1
s_add_u32 s{S_TT}, s{S_TT}, s{S_WN}
v_lshrrev_b32 v{H}, 5, v{LANE}
v_and_b32 v{TOK}, 31, v{LANE}
s_lshl_b32 s36, s{S_WN}, 13
v_add_u32 v{VB0}, s36, v{VL16}""")
    if which == 3:
        a.srd(EX, 14, 2048 * 1280)
        a(f"""
s_lshl_b32 s36, s{S_TT}, 5
v_add_u32 v10, s36, v{TOK}
v_mul_u32_u24 v10, 1280, v10
v_lshl_add_u32 v10, v{H}, 3, v10
s_mul_i32 s37, s{S_CB}, 160
s_lshl_b32 s36, s{S_WM}, 7
s_add_u32 s37, s37, s36""")
    else:
        a.srd(EX, 14, 2048 * 1280)
        a(f"""
s_mul_i32 s37, s{S_TT}, 40
s_mul_i32 s36, s{S_CB}, 5
s_add_u32 s37, s37, s36
s_lshl_b32 s36, s{S_WM}, 2
s_add_u32 s37, s37, s36
s_lshl_b32 s37, s37, 10
s_add_u32 s37, s37, {HF}""")
    for r in range(ACC[0], ACC[0] + 32):
        a(f"v_mov_b32 v{r}, 0")
    a(f"""
s_cmp_eq_u32 s{S_WM}, 0
s_cbranch_scc0 {name}_rem""")

    def res_loads(n16):
        if which == 3:
            for g in range(2 * n16):
                a(f"buffer_load_dwordx2 {vr(RES + 2 * g, 2)}, v10, s[{EX}:{EX + 3}], s37 offen offset:{16 * g}")
        else:
            for j in range(n16):
                a(f"buffer_load_dwordx4 {vr(RES + 4 * j, 4)}, v{VL16}, s[{WS}:{WS + 3}], s37 offen offset:{1024 * j}")

    def reads(s, nt):
        b = BUF + 12 * (s % 4)
        sg = s % 8
        a(f"ds_read_b128 {vr(b + 8, 4)}, v{VB} offset:{sg * 1024}")
        for m in range(nt):
            a(f"ds_read_b128 {vr(b + 4 * m, 4)}, v{VA} offset:{sg * 2560 + m * 1024}")

    def mainloop(nt, tag):
        S_SLOT2, S_CNT = 43, 44
        a(f"""
v_mov_b32 v{VA}, v{VA0}
v_mov_b32 v{VB}, v{VB0}
s_mov_b32 s{S_SLOT2}, 0
s_mov_b32 s{S_CNT}, 0
s_barrier""")
        for s in range(3):
            reads(s, nt)
        a(f".p2align 6\n{name}_loop_{tag}:")
        for s in range(8):
            b = BUF + 12 * (s % 4)
            if s == 5:
                a(f"""
s_add_u32 s{S_SLOT2}, s{S_SLOT2}, {SLOT}
s_cmp_eq_u32 s{S_SLOT2}, {SLOT * NSLOT}
s_cselect_b32 s{S_SLOT2}, 0, s{S_SLOT2}
v_add_u32 v{VA}, s{S_SLOT2}, v{VA0}
v_add_u32 v{VB}, s{S_SLOT2}, v{VB0}
s_barrier""")
            reads(s + 3, nt)
            a(f"s_waitcnt lgkmcnt({3 * (nt + 1)})")
            for m in range(nt):
                a(mfma(ACC[m], b + 4 * m, b + 8, ACC[m]))
        a(f"""
s_add_u32 s{S_CNT}, s{S_CNT}, 1
s_cmp_lt_u32 s{S_CNT}, {NC}
s_cbranch_scc1 {name}_loop_{tag}
s_waitcnt vmcnt(0) lgkmcnt(0)
s_nop 7
s_nop 3""")

    def add_res(nreg):
        for j in range(nreg // 2):
            r, t = ACC[0] + 2 * j, 12 + 2 * (j % 2)
            a(f"""
v_lshlrev_b32 v{t}, 16, v{RES + j}
v_and_b32 v{t + 1}, 0xffff0000, v{RES + j}
v_pk_add_f32 v[{r}:{r + 1}], v[{r}:{r + 1}], v[{t}:{t + 1}]""")

    def pack(nreg):
        for j in range(nreg // 2):
            a(f"v_cvt_pk_bf16_f32 v{BUF + j}, v{ACC[0] + 2 * j}, v{ACC[0] + 2 * j + 1}")

    def stats(nreg):
        a(f"""
v_pk_mul_f32 v[12:13], v[{ACC[0]}:{ACC[0] + 1}], v[{ACC[0]}:{ACC[0] + 1}]
v_mov_b32 v14, v{ACC[0]}
v_mov_b32 v15, v{ACC[0] + 1}""")
        for j in range(1, nreg // 2):
            r = ACC[0] + 2 * j
            a(f"v_pk_fma_f32 v[12:13], v[{r}:{r + 1}], v[{r}:{r + 1}], v[12:13]")
            a(f"v_pk_add_f32 v[14:15], v[14:15], v[{r}:{r + 1}]")
        a(f"""
v_add_f32 v11, v12, v13
v_add_f32 v10, v14, v15""")
        a.half_sum(10, 12)
        a.half_sum(11, 12)

    def epilogue(nreg):
        add_res(nreg)
        pack(nreg)
        if which == 3:
            a(f"""
s_mul_i32 s37, s{S_TT}, 40
s_mul_i32 s36, s{S_CB}, 5
s_add_u32 s37, s37, s36
s_lshl_b32 s36, s{S_WM}, 2
s_add_u32 s37, s37, s36
s_lshl_b32 s37, s37, 10
s_add_u32 s37, s37, {HF}""")
            for j in range(nreg // 8):
                a(f"buffer_store_dwordx4 {vr(BUF + 4 * j, 4)}, v{VL16}, s[{WS}:{WS + 3}], s37 offen offset:{1024 * j}")
            stats(nreg)
            a(f"""
s_lshl_b32 s36, s{S_WN}, 8
s_add_u32 s36, s36, {LDS_RED}
v_lshl_add_u32 v12, v{TOK}, 3, s36""")
            if nreg == 8:
                a("ds_write_b64 v12, v[10:11]\ns_waitcnt lgkmcnt(0)\ns_barrier")
            else:
                a(f"""
s_lshl_b32 s36, s{S_TT}, 11
s_lshl_b32 s37, s{S_CB}, 3
s_add_u32 s36, s36, s37
s_add_u32 s36, s36, {ST}
v_lshlrev_b32 v13, 6, v{TOK}
v_lshl_add_u32 v13, v{H}, 30, v13
s_barrier
ds_read_b64 v[14:15], v12
s_waitcnt lgkmcnt(0)
v_pk_add_f32 v[10:11], v[10:11], v[14:15]
buffer_store_dwordx2 v[10:11], v13, s[{WS}:{WS + 3}], s36 offen""")
        else:
            a(f"""
s_lshl_b32 s36, s{S_TT}, 5
v_add_u32 v10, s36, v{TOK}
v_mul_u32_u24 v10, 1280, v10
v_lshl_add_u32 v10, v{H}, 4, v10
s_mul_i32 s37, s{S_CB}, 160
s_lshl_b32 s36, s{S_WM}, 7
s_add_u32 s37, s37, s36""")
            for j in range(nreg // 8):
                r = BUF + 4 * j
                a(f"""
v_permlane32_swap_b32 v{r}, v{r + 2}
v_permlane32_swap_b32 v{r + 1}, v{r + 3}
buffer_store_dwordx4 {vr(r, 4)}, v10, s[{EX}:{EX + 3}], s37 offen offset:{32 * j}""")
        a("s_endpgm")

    a(f"v_add_u32 v{VA0}, 16384, v{VL16}")
    res_loads(4)
    mainloop(2, "a")
    epilogue(32)
    a(f"""
{name}_rem:
v_and_b32 v11, 15, v{LANE}
v_lshl_add_u32 v11, v{H}, 4, v11
v_lshlrev_b32 v11, 4, v11
v_add_u32 v{VA0}, {16384 + 2048}, v11""")
    res_loads(1)
    mainloop(1, "b")
    epilogue(8)
    a(f"{name}_end:")
    a("s_endpgm")
    a.end(name, 112)
    return a.text(), 512, K35_LDS
```

```python
from common import *

SLOT = 20480
NSLOT = 7
NC = 20
LDS_ST = SLOT * NSLOT
K4_LDS = LDS_ST + 1024


def gen_k4(name):
    a = Asm()
    a.begin(name)
    WS = 4
    S_W, S_RB, S_FB = 32, 33, 34
    LANE, VL16, H, TOK = 2, 3, 4, 5
    a(f"""
s_cmp_ge_u32 s2, 256
s_cbranch_scc1 {name}_end
s_load_dwordx2 s[12:13], s[0:1], 88
v_lshrrev_b32 v1, 6, v0
v_and_b32 v{LANE}, 63, v0
v_readfirstlane_b32 s{S_W}, v1
s_and_b32 s35, s2, 7
s_lshr_b32 s36, s2, 3
s_lshl_b32 s{S_RB}, s35, 1
s_and_b32 s35, s36, 1
s_add_u32 s{S_RB}, s{S_RB}, s35
s_lshr_b32 s{S_FB}, s36, 1
v_lshlrev_b32 v{VL16}, 4, v{LANE}
s_waitcnt lgkmcnt(0)""")
    a.srd(WS, 12, WS_USED)
    a(f"""
s_cmp_lt_u32 s{S_W}, 4
s_cbranch_scc1 {name}_compute""")
    S_N, S_WS, S_L0, S_LW, S_SLOT, S_C = 40, 41, 42, 43, 44, 45
    a(f"""
s_sub_u32 s35, s{S_W}, 4
s_lshl_b32 s36, s{S_RB}, 2
s_add_u32 s36, s36, s35
s_mul_i32 s36, s36, {40 * 1024}
s_add_u32 s{S_N}, s36, {HF}
s_mul_i32 s36, s{S_FB}, {41 * 6144}
s_mul_i32 s37, s35, 3072
s_add_u32 s36, s36, s37
s_add_u32 s{S_WS}, s36, {W13F}
s_lshl_b32 s{S_L0}, s35, 11
s_add_u32 s{S_LW}, s37, 8192
s_mov_b32 s{S_SLOT}, 0""")

    def issue():
        a(f"s_add_u32 s36, s{S_SLOT}, s{S_LW}")
        a.dma(VL16, WS, f"s{S_WS}", "s36")
        a.dma(VL16, WS, f"s{S_WS}", None, imm=1024)
        a.dma(VL16, WS, f"s{S_WS}", None, imm=2048)
        a(f"s_add_u32 s36, s{S_SLOT}, s{S_L0}")
        a.dma(VL16, WS, f"s{S_N}", "s36")
        a.dma(VL16, WS, f"s{S_N}", None, imm=1024)
        a(f"""
s_add_u32 s{S_N}, s{S_N}, 2048
s_add_u32 s{S_WS}, s{S_WS}, 12288
s_add_u32 s{S_SLOT}, s{S_SLOT}, {SLOT}
s_cmp_eq_u32 s{S_SLOT}, {SLOT * NSLOT}
s_cselect_b32 s{S_SLOT}, 0, s{S_SLOT}""")

    for _ in range(NSLOT - 1):
        issue()
    a(f"""
s_waitcnt vmcnt({5 * (NSLOT - 2)})
s_barrier
s_mov_b32 s{S_C}, {NSLOT - 1}
{name}_ld_loop:
s_waitcnt vmcnt({5 * (NSLOT - 3)})
s_barrier
s_cmp_ge_u32 s{S_C}, {NC}
s_cselect_b32 s{S_N}, {OOB}, s{S_N}
s_cselect_b32 s{S_WS}, {OOB}, s{S_WS}""")
    issue()
    a(f"""
s_add_u32 s{S_C}, s{S_C}, 1
s_cmp_lt_u32 s{S_C}, {NC + NSLOT - 1}
s_cbranch_scc1 {name}_ld_loop
s_endpgm""")
    a(f"{name}_compute:")
    S_WN, S_WM, S_SLOT2, S_CNT = 40, 41, 42, 43
    VA0, VB0, VA, VB = 6, 7, 8, 9
    EXT = 16
    ST0 = 28
    BUF = [48, 68]
    ACC = 96
    a(f"""
s_and_b32 s{S_WN}, s{S_W}, 1
s_lshr_b32 s{S_WM}, s{S_W}, 1
v_lshrrev_b32 v{H}, 5, v{LANE}
v_and_b32 v{TOK}, 31, v{LANE}
s_lshl_b32 s36, s{S_RB}, 2
s_add_u32 s36, s36, s{S_W}
s_lshl_b32 s36, s36, 11
s_add_u32 s36, s36, {ST}
v_lshlrev_b32 v10, 6, v{TOK}
v_lshl_add_u32 v10, v{H}, 5, v10
buffer_load_dwordx4 {vr(ST0, 4)}, v10, s[{WS}:{WS + 3}], s36 offen
buffer_load_dwordx4 {vr(ST0 + 4, 4)}, v10, s[{WS}:{WS + 3}], s36 offen offset:16
s_mul_i32 s36, s{S_FB}, 41
s_add_u32 s36, s36, 40
s_mul_i32 s36, s36, 6144
s_mul_i32 s37, s{S_WM}, 3072
s_add_u32 s36, s36, s37
s_add_u32 s36, s36, {W13F}""")
    for m in range(3):
        a(f"buffer_load_dwordx4 {vr(EXT + 4 * m, 4)}, v{VL16}, s[{WS}:{WS + 3}], s36 offen offset:{1024 * m}")
    a(f"""
s_add_u32 s37, s37, 8192
v_add_u32 v{VA0}, s37, v{VL16}
s_lshl_b32 s37, s{S_WN}, 12
v_add_u32 v{VB0}, s37, v{VL16}
v_mov_b32 v{VA}, v{VA0}
v_mov_b32 v{VB}, v{VB0}""")
    for r in range(ACC, ACC + 96):
        a(f"v_mov_b32 v{r}, 0")
    a(f"""
s_waitcnt vmcnt(3)
v_pk_add_f32 v[{ST0}:{ST0 + 1}], v[{ST0}:{ST0 + 1}], v[{ST0 + 2}:{ST0 + 3}]
v_pk_add_f32 v[{ST0 + 4}:{ST0 + 5}], v[{ST0 + 4}:{ST0 + 5}], v[{ST0 + 6}:{ST0 + 7}]
v_pk_add_f32 v[10:11], v[{ST0}:{ST0 + 1}], v[{ST0 + 4}:{ST0 + 5}]""")
    a.half_sum(10, 12)
    a.half_sum(11, 12)
    a(f"""
v_mul_f32 v10, {f32(1 / 640)}, v10
v_mul_f32 v11, {f32(1 / 640)}, v11
v_fma_f32 v11, -v10, v10, v11
v_max_f32 v11, 0, v11
v_add_f32 v11, {f32(1e-5)}, v11
v_rsq_f32 v11, v11
s_lshl_b32 s36, s{S_W}, 8
s_add_u32 s36, s36, {LDS_ST}
v_lshl_add_u32 v12, v{TOK}, 3, s36
ds_write_b64 v12, v[10:11]
s_lshl_b32 s36, s{S_WN}, 9
s_add_u32 s36, s36, {LDS_ST}
v_lshl_add_u32 v12, v{TOK}, 3, s36
s_mov_b32 s{S_SLOT2}, 0
s_mov_b32 s{S_CNT}, 0
s_waitcnt lgkmcnt(0)
s_barrier
ds_read_b64 v[{ST0}:{ST0 + 1}], v12
ds_read_b64 v[{ST0 + 2}:{ST0 + 3}], v12 offset:256""")

    def rd(buf, sg):
        b = BUF[buf]
        return [f"ds_read_b128 {vr(b, 4)}, v{VA} offset:{sg * 6144}",
                f"ds_read_b128 {vr(b + 12, 4)}, v{VB} offset:{sg * 1024}",
                f"ds_read_b128 {vr(b + 16, 4)}, v{VB} offset:{2048 + sg * 1024}",
                f"ds_read_b128 {vr(b + 4, 4)}, v{VA} offset:{sg * 6144 + 1024}",
                f"ds_read_b128 {vr(b + 8, 4)}, v{VA} offset:{sg * 6144 + 2048}"]

    def mm(buf):
        b = BUF[buf]
        return [mfma(ACC + 16 * (2 * m + n), b + 4 * m, b + 12 + 4 * n, ACC + 16 * (2 * m + n))
                for m in range(3) for n in range(2)]

    for x in rd(0, 0):
        a(x)
    a(f".p2align 6\n{name}_loop:")
    a("s_waitcnt lgkmcnt(0)")
    m, r = mm(0), rd(1, 1)
    for i in range(6):
        a(m[i])
        if i < 5:
            a(r[i])
    a(f"""
s_add_u32 s{S_SLOT2}, s{S_SLOT2}, {SLOT}
s_cmp_eq_u32 s{S_SLOT2}, {SLOT * NSLOT}
s_cselect_b32 s{S_SLOT2}, 0, s{S_SLOT2}
v_add_u32 v{VA}, s{S_SLOT2}, v{VA0}
v_add_u32 v{VB}, s{S_SLOT2}, v{VB0}
s_waitcnt lgkmcnt(0)""")
    m, r = mm(1), rd(0, 0)
    a(m[0])
    a("s_barrier")
    for i in range(1, 6):
        a(r[i - 1])
        a(m[i])
    a(f"""
s_add_u32 s{S_CNT}, s{S_CNT}, 1
s_cmp_lt_u32 s{S_CNT}, {NC}
s_cbranch_scc1 {name}_loop
s_waitcnt vmcnt(0) lgkmcnt(0)""")
    BX = BUF[0]
    for n in range(2):
        mean = ST0 + 2 * n
        b = BX + 4 * n
        a(f"""
v_cvt_pk_bf16_f32 v12, v{mean}, v{mean}
v_and_b32 v13, 0xffff0000, v12
v_sub_f32 v13, v13, v{mean}
v_xor_b32 v12, 0x80008000, v12
v_cvt_pk_bf16_f32 v13, v13, v13
v_mov_b32 v{b + 1}, v12
v_mov_b32 v{b + 2}, 0
v_mov_b32 v{b + 3}, 0
v_and_b32 v12, 0xffff, v12
v_lshlrev_b32 v13, 16, v13
v_or_b32 v{b}, v12, v13""")
    a("s_nop 1")
    for mi in range(3):
        for n in range(2):
            d = ACC + 16 * (2 * mi + n)
            a(mfma(d, EXT + 4 * mi, BX + 4 * n, d))
    C = [16, 20]
    for n in range(2):
        rs = ST0 + 2 * n + 1
        a(f"""
v_rcp_f32 v{C[n] + 2}, v{rs}
v_mul_f32 v{C[n]}, {f32(-LOG2E)}, v{rs}
v_mul_f32 v{C[n] + 2}, {f32(-LOG2E)}, v{C[n] + 2}""")
    a(f"""
s_lshl_b32 s36, s{S_RB}, 2
s_lshl_b32 s37, s{S_WN}, 1
s_add_u32 s36, s36, s37
s_mul_i32 s36, s36, 96
s_mul_i32 s37, s{S_FB}, 6
s_add_u32 s36, s36, s37
s_mul_i32 s37, s{S_WM}, 3
s_add_u32 s36, s36, s37
s_lshl_b32 s36, s36, 10
s_add_u32 s36, s36, {HHF}
s_add_u32 s37, s36, {96 * 1024}
s_nop 3""")
    k = 0
    for mi in range(3):
        for n in range(2):
            d = ACC + 16 * (2 * mi + n)
            o = 48 + 4 * (k % 4)
            k += 1
            c1, kk = C[n], C[n] + 2
            for j in range(4):
                g, u = d + 2 * j, d + 8 + 2 * j
                a(f"v_pk_mul_f32 v[{g}:{g + 1}], v[{g}:{g + 1}], v[{c1}:{c1 + 1}] op_sel_hi:[1,0]")
            for j in range(4):
                g, t = d + 2 * j, 64 + 2 * j
                a(f"v_exp_f32 v{t}, v{g}\nv_exp_f32 v{t + 1}, v{g + 1}")
            for j in range(4):
                g, u = d + 2 * j, d + 8 + 2 * j
                a(f"v_pk_mul_f32 v[{g}:{g + 1}], v[{g}:{g + 1}], v[{u}:{u + 1}]")
            for j in range(4):
                t = 64 + 2 * j
                a(f"v_pk_fma_f32 v[{t}:{t + 1}], v[{t}:{t + 1}], v[{kk}:{kk + 1}], v[{kk}:{kk + 1}] op_sel_hi:[1,0,0]")
            for j in range(8):
                a(f"v_rcp_f32 v{64 + j}, v{64 + j}")
            for j in range(4):
                g, t = d + 2 * j, 64 + 2 * j
                a(f"v_pk_mul_f32 v[{g}:{g + 1}], v[{g}:{g + 1}], v[{t}:{t + 1}]")
            for j in range(4):
                g = d + 2 * j
                a(f"v_cvt_pk_bf16_f32 v{o + j}, v{g}, v{g + 1}")
            a(f"buffer_store_dwordx4 {vr(o, 4)}, v{VL16}, s[{WS}:{WS + 3}], s{36 + n} offen offset:{1024 * mi}")
    a(f"{name}_end:")
    a("s_endpgm")
    a.end(name, 192)
    return a.text(), 512, K4_LDS
```

```python
from gen import *
def empty(name):
    a = Asm(); a.begin(name); a("s_endpgm"); a.end(name, 8, 16); return a.text(), 64, 0
k1=("qkv_kernel", gen_k1("qkv_kernel")); k2=("attn_kernel", gen_k2("attn_kernel")); k3=("oproj_kernel", gen_k35("oproj_kernel", 3))
k4=("ffn1_kernel", gen_k4("ffn1_kernel")); k5=("ffn2_kernel", gen_k35("ffn2_kernel", 5)); e=("nop_kernel", empty("nop_kernel"))
build([k1,k2,k3,k4,k5,e], "va.s")
build([k1,k2,k3,k4,k5,e,e,e,e], "vb.s")
build([k1,k2,k2,k3,k4,k5], "vc.s")
build([e,k1,k2,k3,k4,k5], "vd.s")
build([k1,k1,k2,k3,k4,k5], "ve.s")
build([k1,k2,k3,k4,k4,k5,k5], "vf.s")
```

```python
NAME = "sequential_preLN__grouped_kv_mqa__glu_gated_swiglu__prompt"

QF = 0x0000000
KV = 0x0300000
KN = 0x0340000
OF = 0x0400000
WOF = 0x0700000
HF = 0x0800000
ST = 0x0B00000
W13F = 0x0C00000
HHF = 0x1000000
W2F = 0x1600000
WS_USED = 0x1800000
OOB = 0x40000000

SRD3 = "0x00020000"
LOG2E = 1.4426950408889634


def f32(x):
    import struct
    return "0x%08x" % struct.unpack("<I", struct.pack("<f", x))[0]


def vr(a, n=1):
    return f"v{a}" if n == 1 else f"v[{a}:{a + n - 1}]"


def sr(a, n=1):
    return f"s{a}" if n == 1 else f"s[{a}:{a + n - 1}]"


DIAG = 0x2000000
STAMPS = False
PROBE = None
STAMP_S = 64


class Asm:
    def __init__(self):
        self.lines = []
        self.nstamp = 0

    def stamp(self, i, real=False):
        if not STAMPS:
            return
        op = "s_memrealtime" if real else "s_memtime"
        self(f"{op} s[{STAMP_S + 2 * i}:{STAMP_S + 2 * i + 1}]\ns_waitcnt lgkmcnt(0)")

    def stamp_out(self, kidx, s_wave, n, ws_ptr=12):
        if not STAMPS:
            return
        self(f"""
s_mov_b64 exec, -1
s_mov_b32 s92, s{ws_ptr}
s_mov_b32 s93, s{ws_ptr + 1}
s_mov_b32 s94, 0x4000000
s_mov_b32 s95, {SRD3}
s_lshl_b32 s90, s2, 3
s_add_u32 s90, s90, s{s_wave}
s_lshl_b32 s90, s90, 6
s_add_u32 s90, s90, {DIAG + kidx * 0x20000}
v_mov_b32 v0, 0""")
        for i in range(n):
            self(f"v_mov_b32 v1, s{STAMP_S + 2 * i}\nbuffer_store_dword v1, v0, s[92:95], s90 offen offset:{4 * i}")

    def __call__(self, text):
        for ln in text.strip("\n").split("\n"):
            ln = ln.strip()
            if not ln:
                continue
            if ln.endswith(":") or ln.startswith("."):
                self.lines.append(ln)
            else:
                self.lines.append("    " + ln)

    def text(self):
        return "\n".join(self.lines) + "\n"

    def begin(self, name):
        self(f"""
.text
.globl {name}
.p2align 8
.type {name},@function
{name}:""")

    def end(self, name, vgprs, sgprs=96):
        self(f"""
.section .rodata,"a"
.p2align 6
.amdhsa_kernel {name}
.amdhsa_next_free_vgpr {vgprs}
.amdhsa_next_free_sgpr {sgprs}
.amdhsa_accum_offset {(vgprs + 3) // 4 * 4}
.amdhsa_group_segment_fixed_size 0
.amdhsa_kernarg_size 96
.amdhsa_user_sgpr_count 2
.amdhsa_user_sgpr_kernarg_segment_ptr 1
.amdhsa_system_sgpr_workgroup_id_x 1
.amdhsa_float_denorm_mode_32 3
.end_amdhsa_kernel""")

    def srd(self, d, ptr, nbytes):
        self(f"""
s_mov_b32 s{d}, s{ptr}
s_mov_b32 s{d + 1}, s{ptr + 1}
s_mov_b32 s{d + 2}, {nbytes}
s_mov_b32 s{d + 3}, {SRD3}""")

    def dma(self, voff, srd, soff, m0, imm=0):
        if m0 is not None:
            self(f"s_mov_b32 m0, {m0}")
            self("s_nop 0")
        o = f" offset:{imm}" if imm else ""
        self(f"buffer_load_dwordx4 v{voff}, s[{srd}:{srd + 3}], {soff} offen{o} lds")

    def wave_max(self, v):
        for m in ("row_shr:1", "row_shr:2", "row_shr:4", "row_shr:8"):
            self("s_nop 1")
            self(f"v_max_f32_dpp v{v}, v{v}, v{v} {m} row_mask:0xf bank_mask:0xf")
        self("s_nop 1")
        self(f"v_max_f32_dpp v{v}, v{v}, v{v} row_bcast:15 row_mask:0xa bank_mask:0xf")
        self("s_nop 1")
        self(f"v_max_f32_dpp v{v}, v{v}, v{v} row_bcast:31 row_mask:0xc bank_mask:0xf")

    def half_sum(self, v, t):
        self(f"v_mov_b32 v{t}, v{v}")
        self("s_nop 1")
        self(f"v_permlane32_swap_b32 v{v}, v{t}")
        self("s_nop 1")
        self(f"v_add_f32 v{v}, v{v}, v{t}")

    def half_max(self, v, t):
        self(f"v_mov_b32 v{t}, v{v}")
        self("s_nop 1")
        self(f"v_permlane32_swap_b32 v{v}, v{t}")
        self("s_nop 1")
        self(f"v_max_f32 v{v}, v{v}, v{t}")

    def ids(self, s_wave, v_lane, s_rb, s_cb, t0, t1):
        self(f"""
v_lshrrev_b32 v1, 6, v0
v_and_b32 v{v_lane}, 63, v0
v_readfirstlane_b32 s{s_wave}, v1
s_and_b32 s{t0}, s2, 7
s_lshr_b32 s{t1}, s2, 3
s_lshl_b32 s{s_rb}, s{t0}, 2
s_and_b32 s{t0}, s{t1}, 3
s_add_u32 s{s_rb}, s{s_rb}, s{t0}
s_lshr_b32 s{s_cb}, s{t1}, 2""")


def mfma(d, a, b, c):
    cs = c if isinstance(c, str) else vr(c, 16)
    return f"v_mfma_f32_32x32x16_bf16 {vr(d, 16)}, {vr(a, 4)}, {vr(b, 4)}, {cs}"


def mfma8(d, a, b, c):
    cs = c if isinstance(c, str) else vr(c, 16)
    return f"v_mfma_f32_32x32x8_bf16 {vr(d, 16)}, {vr(a, 2)}, {vr(b, 2)}, {cs}"
```

```python
from common import *
import common

LDS_XN = 0
LDS_WR = 81920
LDS_KVW = 131072
K1_LDS = 163840
QSCALE = 20 ** -0.5 * LOG2E


def gen_k1(name):
    a = Asm()
    a.begin(name)
    S_W, S_RB, S_CB = 32, 33, 34
    X, WQ, WKV, WS = 16, 20, 24, 28
    LANE = 2
    XR = 16
    a(f"""
s_cmp_ge_u32 s2, 256
s_cbranch_scc1 {name}_end
s_load_dwordx8 s[4:11], s[0:1], 0
s_load_dwordx2 s[12:13], s[0:1], 88""")
    a.stamp(0)
    a.stamp(1, True)
    a.ids(S_W, LANE, S_RB, S_CB, 35, 36)
    a(f"""
s_lshl_b32 s35, s{S_RB}, 6
s_lshl_b32 s36, s{S_W}, 3
s_add_u32 s35, s35, s36
v_lshrrev_b32 v3, 3, v{LANE}
v_and_b32 v4, 7, v{LANE}
v_add_u32 v5, s35, v3
v_mul_u32_u24 v5, 1280, v5
v_lshl_add_u32 v5, v4, 4, v5
s_waitcnt lgkmcnt(0)""")
    a.srd(X, 4, 2048 * 1280)
    for i in range(10):
        a(f"buffer_load_dwordx4 {vr(XR + 4 * i, 4)}, v5, s[{X}:{X + 3}], 0 offen offset:{128 * i}")
    a.srd(WQ, 6, 640 * 1280)
    a(f"""
s_cmp_eq_u32 s{S_CB}, 1
s_cselect_b32 s8, s10, s8
s_cselect_b32 s9, s11, s9""")
    a.srd(WKV, 8, 640 * 40)
    a.srd(WS, 12, WS_USED)
    a(f"""
s_mul_i32 s37, s{S_W}, 192
s_mul_i32 s38, s{S_CB}, 160
s_mul_i32 s39, s{S_W}, 3072
s_add_u32 s39, s39, {LDS_WR}
s_add_u32 s40, s38, {128 * 1280}""")
    for i in range(3):
        a(f"""
v_add_u32 v6, s37, v{LANE}
v_add_u32 v6, {64 * i}, v6
v_mul_u32_u24 v7, 43691, v6
v_lshrrev_b32 v7, 19, v7
v_mul_u32_u24 v8, 12, v7
v_sub_u32 v8, v6, v8
v_mul_u32_u24 v7, 1280, v7
v_lshl_add_u32 v{9 + i}, v8, 4, v7""")
    for dc in range(2):
        for i in range(3):
            a(f"s_add_u32 s41, s39, {dc * 24576 + i * 1024}")
            a.dma(9 + i, WQ, f"s{38 if dc == 0 else 40}", "s41")
    a(f"""
v_lshlrev_b32 v12, 4, v{LANE}
s_lshl_b32 s42, s{S_W}, 12
s_add_u32 s41, s42, {LDS_KVW}""")
    for i in range(4):
        a.dma(12, WKV, "s42", "s41" if i == 0 else None, imm=1024 * i)
    SA, SB, QA, QB = 56, 57, 58, 59
    a(f"""
v_mov_b32 v{SA}, 0
v_mov_b32 v{SB}, 0
v_mov_b32 v{QA}, 0
v_mov_b32 v{QB}, 0
s_mov_b32 s43, 0x3f803f80""")
    for i in range(10):
        a(f"s_waitcnt vmcnt({19 - i})")
        for j in range(4):
            r = XR + 4 * i + j
            s, q = (SA, QA) if j % 2 == 0 else (SB, QB)
            a(f"v_dot2_f32_bf16 v{s}, v{r}, s43, v{s}")
            a(f"v_dot2_f32_bf16 v{q}, v{r}, v{r}, v{q}")
    WREG = 64
    a(f"""
s_cmp_lt_u32 s{S_W}, 4
s_cbranch_scc1 {name}_noload
s_sub_u32 s44, s{S_W}, 4
s_mul_i32 s44, s44, 192""")
    for i in range(3):
        a(f"""
v_add_u32 v6, s44, v{LANE}
v_add_u32 v6, {64 * i}, v6
v_mul_u32_u24 v7, 43691, v6
v_lshrrev_b32 v7, 19, v7
v_mul_u32_u24 v8, 12, v7
v_sub_u32 v8, v6, v8
v_mul_u32_u24 v7, 1280, v7
v_lshl_add_u32 v{9 + i}, v8, 4, v7""")
    for c in range(4, 10):
        a(f"s_add_u32 s41, s38, {c * 64 * 1280}")
        for i in range(3):
            a(f"buffer_load_dwordx4 {vr(WREG + 4 * (3 * (c - 4) + i), 4)}, v{9 + i}, s[{WQ}:{WQ + 3}], s41 offen")
    a(f"{name}_noload:")
    a(f"""
s_nop 2
v_add_f32 v{SA}, v{SA}, v{SB}
v_add_f32 v{QA}, v{QA}, v{QB}""")
    for m in ("quad_perm:[1,0,3,2]", "quad_perm:[2,3,0,1]", "row_half_mirror"):
        a(f"""
s_nop 1
v_add_f32_dpp v{SA}, v{SA}, v{SA} {m} row_mask:0xf bank_mask:0xf
v_add_f32_dpp v{QA}, v{QA}, v{QA} {m} row_mask:0xf bank_mask:0xf""")
    RS, NB = 60, 61
    a(f"""
s_nop 0
v_mul_f32 v{SA}, {f32(1 / 640)}, v{SA}
v_mul_f32 v{QA}, {f32(1 / 640)}, v{QA}
v_fma_f32 v{QA}, -v{SA}, v{SA}, v{QA}
v_max_f32 v{QA}, 0, v{QA}
v_add_f32 v{QA}, {f32(1e-5)}, v{QA}
v_rsq_f32 v{RS}, v{QA}
s_nop 0
v_mul_f32 v{NB}, v{SA}, v{RS}
v_sub_f32 v{NB}, 0, v{NB}""")
    a(f"""
s_lshr_b32 s45, s{S_W}, 2
s_mul_i32 s45, s45, 40960
s_and_b32 s46, s{S_W}, 3
s_lshl_b32 s46, s46, 7
s_add_u32 s45, s45, s46
v_xor_b32 v6, v3, v4
v_lshlrev_b32 v6, 4, v6
v_lshlrev_b32 v7, 9, v4
v_add3_u32 v13, v6, v7, s45""")
    for i in range(10):
        for j in range(4):
            r = XR + 4 * i + j
            t = 56 + 2 * (j % 2)
            a(f"""
v_lshlrev_b32 v{t}, 16, v{r}
v_and_b32 v{t + 1}, 0xffff0000, v{r}
v_pk_fma_f32 v[{t}:{t + 1}], v[{t}:{t + 1}], v[{RS}:{RS + 1}], v[{RS}:{RS + 1}] op_sel:[0,0,1] op_sel_hi:[1,0,1]
v_cvt_pk_bf16_f32 v{r}, v{t}, v{t + 1}""")
        a(f"ds_write_b128 v13, {vr(XR + 4 * i, 4)} offset:{4096 * i}")
    a(f"""
s_cmp_lt_u32 s{S_W}, 4
s_cbranch_scc1 {name}_compute""")
    a(f"""
s_sub_u32 s44, s{S_W}, 4
s_mul_i32 s44, s44, 3072
s_add_u32 s44, s44, {LDS_WR}
v_lshlrev_b32 v6, 4, v{LANE}
v_add_u32 v6, s44, v6
s_waitcnt vmcnt(18) lgkmcnt(0)
s_barrier
s_barrier""")
    for k in range(2, 10):
        a("s_barrier")
        c = k + 2
        if c < 10:
            a(f"s_waitcnt vmcnt({18 - 3 * (c - 3)})")
            for i in range(3):
                a(f"ds_write_b128 v6, {vr(WREG + 4 * (3 * (c - 4) + i), 4)} offset:{(c % 4) * 12288 + i * 1024}")
            a("s_waitcnt lgkmcnt(0)")
    a("s_endpgm")
    a(f"{name}_compute:")
    BA = 4
    WA, KA = 8, 9
    H, TOK = 10, 11
    ACC0, ACC1 = 16, 32
    BUF = 48
    a(f"""
s_and_b32 s44, s{S_W}, 1
s_lshr_b32 s45, s{S_W}, 1
v_lshrrev_b32 v{H}, 5, v{LANE}
v_and_b32 v{TOK}, 31, v{LANE}
s_mul_i32 s46, s44, 40960
v_and_b32 v12, 24, v{TOK}
v_and_b32 v13, 7, v{TOK}
v_lshlrev_b32 v14, 9, v{H}""")
    for q in range(4):
        a(f"""
v_or_b32 v15, {2 * q}, v{H}
v_xor_b32 v15, v15, v13
v_or_b32 v15, v15, v12
v_lshl_add_u32 v15, v15, 4, v14
v_add_u32 v15, s46, v15
v_add_u32 v{BA + q}, {1024 * q}, v15""")
    a(f"""
v_bfe_u32 v12, v{LANE}, 2, 2
v_lshl_add_u32 v12, v{H}, 3, v12
v_bfe_u32 v13, v{LANE}, 4, 1
v_lshlrev_b32 v13, 5, v13
v_and_b32 v14, 3, v{LANE}
v_lshl_add_u32 v13, v14, 3, v13
v_mul_u32_u24 v14, 192, v12
v_add_u32 v14, v14, v13
s_lshl_b32 s46, s45, 7
s_add_u32 s46, s46, {LDS_WR}
v_add_u32 v{WA}, s46, v14
v_mul_u32_u24 v14, 40, v12
v_add_u32 v14, v14, v13
v_add_u32 v{KA}, {LDS_KVW}, v14""")
    for r in range(ACC0, ACC0 + 32):
        a(f"v_mov_b32 v{r}, 0")
    a(f"""
s_waitcnt vmcnt(0) lgkmcnt(0)
s_barrier
s_cmp_eq_u32 s45, 0
s_cbranch_scc1 {name}_m01
s_cmp_eq_u32 s{S_CB}, 0
s_cbranch_scc1 {name}_mk
s_cmp_eq_u32 s{S_CB}, 1
s_cbranch_scc1 {name}_mv
s_branch {name}_mq""")

    def reads(s, kind):
        b = BUF + 12 * (s % 4)
        c, sg = divmod(s, 4)
        wo = (c % 4) * 12288 + sg * 3072
        n = 0
        a(f"ds_read_b128 {vr(b + 8, 4)}, v{BA + s % 4} offset:{c * 4096}")
        a(f"ds_read_b64_tr_b16 {vr(b, 2)}, v{WA} offset:{wo}")
        a(f"ds_read_b64_tr_b16 {vr(b + 2, 2)}, v{WA} offset:{wo + 768}")
        n = 3
        if kind == "m01":
            a(f"ds_read_b64_tr_b16 {vr(b + 4, 2)}, v{WA} offset:{wo + 64}")
            a(f"ds_read_b64_tr_b16 {vr(b + 6, 2)}, v{WA} offset:{wo + 64 + 768}")
            n = 5
        elif kind in ("k", "v"):
            a(f"ds_read_b64_tr_b16 {vr(b + 4, 2)}, v{KA} offset:{s * 640}")
            a(f"ds_read_b64_tr_b16 {vr(b + 6, 2)}, v{KA} offset:{s * 640 + 160}")
            n = 5
        return n

    def mainloop(kind):
        a.stamp(2)
        n = reads(0, kind)
        reads(1, kind)
        for s in range(40):
            b = BUF + 12 * (s % 4)
            if s + 2 < 40:
                if (s + 2) % 4 == 0:
                    a("s_barrier")
                reads(s + 2, kind)
                a(f"s_waitcnt lgkmcnt({2 * n})")
            else:
                a(f"s_waitcnt lgkmcnt({n * (39 - s)})")
            a(mfma(ACC0, b, b + 8, ACC0))
            if kind in ("m01", "k"):
                a(mfma(ACC1, b + 4, b + 8, ACC1))
            elif kind == "v":
                a(mfma(ACC1, b + 8, b + 4, ACC1))
        a("s_nop 7\ns_nop 7")
        a.stamp(3)

    def qoff(cg):
        return (cg // 5) * 98304 + [0, 512, 8, 520, 1024][cg % 5]

    def qstore(tiles):
        a(f"""
s_lshl_b32 s47, s{S_CB}, 8
s_lshl_b32 s48, s{S_RB}, 1
s_add_u32 s47, s47, s48
s_add_u32 s47, s47, s44
s_mul_i32 s47, s47, 1536
s_add_u32 s47, s47, {QF}
v_lshlrev_b32 v12, 4, v{TOK}
v_xor_b32 v13, 1, v{H}
s_mov_b32 s50, {f32(QSCALE)}""")
        k = 0
        for acc, m, groups in tiles:
            for g in range(groups):
                lo, up = qoff(8 * m + 2 * g), qoff(8 * m + 2 * g + 1)
                base = min(lo, up)
                sel = H if up > lo else 13
                r = acc + 4 * g
                t = 4 + 2 * (k % 2)
                k += 1
                a(f"""
s_mov_b32 s49, {abs(up - lo)}
v_mul_f32 v{r}, s50, v{r}
v_mul_f32 v{r + 1}, s50, v{r + 1}
v_mul_f32 v{r + 2}, s50, v{r + 2}
v_mul_f32 v{r + 3}, s50, v{r + 3}
v_mad_u32_u24 v14, v{sel}, s49, v12
s_add_u32 s49, s47, {base}
v_cvt_pk_bf16_f32 v{t}, v{r}, v{r + 1}
v_cvt_pk_bf16_f32 v{t + 1}, v{r + 2}, v{r + 3}
buffer_store_dwordx2 {vr(t, 2)}, v14, s[{WS}:{WS + 3}], s49 offen""")

    def kt_base():
        a(f"""
s_lshl_b32 s51, s{S_RB}, 1
s_add_u32 s51, s51, s44
s_mul_i32 s52, s51, 3072
s_add_u32 s52, s52, {KV}
s_lshl_b32 s51, s51, 2
s_add_u32 s51, s51, {KN}
v_lshlrev_b32 v8, 4, v{LANE}""")

    a(f"{name}_m01:")
    mainloop("m01")
    qstore([(ACC0, 0, 4), (ACC1, 1, 4)])
    if common.STAMPS:
        a("s_waitcnt vmcnt(0)")
    a.stamp(4)
    a.stamp(5, True)
    a.stamp_out(0, S_W, 6)
    a("s_endpgm")

    a(f"{name}_mq:")
    mainloop("q")
    qstore([(ACC0, 2, 2)])
    a("s_endpgm")

    a(f"{name}_mk:")
    mainloop("k")
    qstore([(ACC0, 2, 2)])
    kt_base()
    for j in range(6):
        a(f"v_cvt_pk_bf16_f32 v{48 + j}, v{ACC1 + 2 * j}, v{ACC1 + 2 * j + 1}")
    a(f"""
buffer_store_dwordx4 v[48:51], v8, s[{WS}:{WS + 3}], s52 offen
v_lshrrev_b32 v12, 4, v{TOK}
v_lshlrev_b32 v12, 9, v12
v_and_b32 v13, 15, v{TOK}
v_lshl_add_u32 v12, v13, 3, v12
v_add_u32 v12, {1024 + 336}, v12
v_lshl_add_u32 v12, v{H}, 30, v12
v_mul_f32 v56, v{ACC1 + 8}, v{ACC1 + 8}
buffer_store_dwordx2 v[52:53], v12, s[{WS}:{WS + 3}], s52 offen""")
    for j in range(9, 12):
        a(f"v_fmac_f32 v56, v{ACC1 + j}, v{ACC1 + j}")
    a(f"""
v_cmp_eq_u32 s[54:55], 0, v{H}
s_nop 1
v_cndmask_b32 v56, 0, v56, s[54:55]""")
    for j in range(8):
        a(f"v_fmac_f32 v56, v{ACC1 + j}, v{ACC1 + j}")
    a.half_sum(56, 57)
    a.wave_max(56)
    a(f"""
v_mov_b32 v12, 0
s_mov_b32 exec_lo, 0
s_mov_b32 exec_hi, 0x80000000
buffer_store_dword v56, v12, s[{WS}:{WS + 3}], s51 offen
s_endpgm""")

    a(f"{name}_mv:")
    mainloop("v")
    qstore([(ACC0, 2, 2)])
    kt_base()
    a(f"""
v_max3_f32 v56, |v{ACC1}|, |v{ACC1 + 1}|, |v{ACC1 + 2}|""")
    for j in range(3, 15, 2):
        a(f"v_max3_f32 v56, |v{ACC1 + j}|, |v{ACC1 + j + 1}|, v56")
    a(f"""
v_max_f32 v56, |v{ACC1 + 15}|, v56
v_cmp_gt_u32 s[54:55], 20, v{TOK}
v_mov_b32 v57, 0x3f803f80""")
    for j in range(8):
        a(f"v_cvt_pk_bf16_f32 v{48 + j}, v{ACC1 + 2 * j}, v{ACC1 + 2 * j + 1}")
    a(f"v_cndmask_b32 v56, 0, v56, s[54:55]")
    for j in range(8):
        a(f"v_cndmask_b32 v{48 + j}, v57, v{48 + j}, s[54:55]")
    a.wave_max(56)
    a(f"""
v_mov_b32 v12, 0
s_mov_b32 exec_lo, 0x001fffff
s_mov_b32 exec_hi, 0x001fffff
buffer_store_dwordx4 v[48:51], v8, s[{WS}:{WS + 3}], s52 offen offset:1024
buffer_store_dwordx4 v[52:55], v8, s[{WS}:{WS + 3}], s52 offen offset:2048
s_mov_b32 exec_lo, 0
s_mov_b32 exec_hi, 0x80000000
buffer_store_dword v56, v12, s[{WS}:{WS + 3}], s51 offen offset:256""")
    a(f"{name}_end:")
    a("s_endpgm")
    a.end(name, 136)
    return a.text(), 512, K1_LDS
```

```python
from common import *
import common

RING_HALF = 49152
LDS_PS = 98304
LDS_MISC = LDS_PS + 40960
K2_LDS = LDS_MISC + 256 + 2048
SAFE_BOUND = 80.0 / 1.03
SAFE_V = 2.0 ** 30


def gen_k2(name, prio=True):
    a = Asm()
    a.begin(name)
    WS, WT = 4, 8
    S_W, S_RB, S_CB = 32, 33, 34
    S_HALF, S_SLOT, S_SRC, S_T, S_DST = 35, 36, 37, 38, 39
    S_IDX = 40
    LANE, VA, VK4, VL16, VA0, VK40, H, TOK = 2, 3, 4, 5, 6, 7, 8, 9
    QA, QB = 16, 22
    S0, S1 = 32, 48
    P = 64
    OA, OB = 72, 88
    CA, CB = 104, 120
    KB = [136, 142]
    VB = [148, 156]
    T = 164
    a(f"""
s_cmp_ge_u32 s2, 256
s_cbranch_scc1 {name}_end
s_load_dwordx2 s[12:13], s[0:1], 88
s_load_dwordx2 s[14:15], s[0:1], 32
s_load_dwordx4 s[16:19], s[0:1], 48
s_load_dwordx2 s[20:21], s[0:1], 64""")
    a.stamp(0)
    a.stamp(1, True)
    a.ids(S_W, LANE, S_RB, S_CB, 41, 42)
    a(f"""
v_lshrrev_b32 v{H}, 5, v{LANE}
v_and_b32 v{TOK}, 31, v{LANE}
v_lshlrev_b32 v{VL16}, 4, v{LANE}
s_lshr_b32 s{S_HALF}, s{S_W}, 2
s_and_b32 s41, s{S_W}, 3
s_lshl_b32 s42, s{S_CB}, 2
s_add_u32 s42, s42, s41
s_lshl_b32 s43, s42, 6
s_lshl_b32 s44, s{S_RB}, 1
s_add_u32 s43, s43, s44
s_add_u32 s45, s43, s{S_HALF}
s_xor_b32 s46, s{S_HALF}, 1
s_add_u32 s46, s43, s46
s_mul_i32 s45, s45, 1536
s_mul_i32 s46, s46, 1536
s_add_u32 s45, s45, {QF}
s_add_u32 s46, s46, {QF}
v_lshlrev_b32 v10, 4, v{TOK}
v_lshl_add_u32 v10, v{H}, 30, v10
v_lshlrev_b32 v11, 2, v{LANE}
s_waitcnt lgkmcnt(0)""")
    a.srd(WS, 12, WS_USED)
    a(f"""
s_mov_b32 s47, {KN}
buffer_load_dwordx4 {vr(QA, 4)}, v{VL16}, s[{WS}:{WS + 3}], s45 offen
buffer_load_dwordx2 {vr(QA + 4, 2)}, v10, s[{WS}:{WS + 3}], s45 offen offset:1024
buffer_load_dwordx4 {vr(QB, 4)}, v{VL16}, s[{WS}:{WS + 3}], s46 offen
buffer_load_dwordx2 {vr(QB + 4, 2)}, v10, s[{WS}:{WS + 3}], s46 offen offset:1024
buffer_load_dword v12, v11, s[{WS}:{WS + 3}], s47 offen
buffer_load_dword v13, v11, s[{WS}:{WS + 3}], s47 offen offset:256
s_lshl_b32 s{S_SRC}, s{S_HALF}, 5
s_add_u32 s{S_SRC}, s{S_SRC}, s41
s_mul_i32 s{S_SRC}, s{S_SRC}, 3072
s_add_u32 s{S_SRC}, s{S_SRC}, {KV}
s_mul_i32 s{S_DST}, s{S_HALF}, {RING_HALF}
s_mul_i32 s48, s41, 3072
s_add_u32 s{S_DST}, s{S_DST}, s48""")

    def stage_dma(dst):
        for i in range(3):
            a.dma(VL16, WS, f"s{S_SRC}", dst if i == 0 else None, imm=1024 * i)

    for st in range(3):
        a(f"s_add_u32 s48, s{S_DST}, {st * 12288}")
        stage_dma("s48")
        a(f"s_add_u32 s{S_SRC}, s{S_SRC}, 12288")
    a(f"""
s_mul_i32 s48, s{S_HALF}, {RING_HALF}
v_add_u32 v{VA0}, s48, v{VL16}
v_lshrrev_b32 v14, 4, v{TOK}
v_lshlrev_b32 v14, 9, v14
v_and_b32 v15, 15, v{TOK}
v_lshl_add_u32 v14, v15, 3, v14
s_add_u32 s48, s48, {1024 + 336}
v_add_u32 v{VK40}, s48, v14
v_mov_b32 v{VA}, v{VA0}
v_mov_b32 v{VK4}, v{VK40}""")
    for r in list(range(OA, OA + 32)) + list(range(CA, CA + 32)) + list(range(P + 4, P + 8)) + list(range(VB[1] + 4, VB[1] + 8)):
        a(f"v_mov_b32 v{r}, 0")
    a(f"""
s_waitcnt vmcnt(9)
v_mov_b32 v14, 0
v_mov_b32 v15, 0""")
    for j in range(6):
        a(f"v_dot2_f32_bf16 v14, v{QA + j}, v{QA + j}, v14")
        a(f"v_dot2_f32_bf16 v15, v{QB + j}, v{QB + j}, v15")
    a.wave_max(12)
    a.wave_max(13)
    a.half_sum(14, T)
    a.half_sum(15, T)
    a(f"""
s_nop 0
v_readlane_b32 s48, v12, 63
v_readlane_b32 s49, v13, 63
v_max_f32 v14, v14, v15
v_mov_b32 v{T}, {f32(SAFE_BOUND ** 2)}
v_mov_b32 v{T + 1}, {f32(SAFE_V)}
v_mul_f32 v14, s48, v14
v_mov_b32 v15, s49
v_cmp_nle_f32 s[50:51], v14, v{T}
v_cmp_nle_f32 s[52:53], v15, v{T + 1}""")
    a(f"""
s_nop 3
s_or_b64 s[50:51], s[50:51], s[52:53]
s_cselect_b32 s50, 1, 0
v_mov_b32 v14, s50
s_lshl_b32 s51, s{S_W}, 2
s_add_u32 s51, s51, {LDS_MISC}
v_mov_b32 v15, s51
ds_write_b32 v15, v14
s_waitcnt vmcnt(6) lgkmcnt(0)
s_barrier
v_mov_b32 v15, {LDS_MISC}
ds_read_b128 {vr(T, 4)}, v15
ds_read_b128 {vr(T + 4, 4)}, v15 offset:16
ds_read_b128 {vr(KB[0], 4)}, v{VA}
ds_read_b64 {vr(KB[0] + 4, 2)}, v{VK4}
ds_read_b128 {vr(VB[0], 4)}, v{VA} offset:1024
ds_read_b128 {vr(VB[0] + 4, 4)}, v{VA} offset:2048""")
    a(f"""
s_lshr_b32 s{S_IDX}, s2, 3
s_and_b32 s48, s2, 7
s_lshl_b32 s48, s48, 5
s_add_u32 s{S_IDX}, s{S_IDX}, s48
s_mul_i32 s54, s{S_W}, 5120
s_add_u32 s54, s54, {LDS_PS}
v_lshrrev_b32 v10, 2, v{LANE}
v_and_b32 v11, 3, v{LANE}
s_cmp_ge_u32 s{S_IDX}, 96
s_cbranch_scc1 {name}_ps_ld_b
v_and_b32 v12, 1, v11
v_lshlrev_b32 v12, 4, v12
v_mul_u32_u24 v13, 3072, v10
v_add_u32 v12, v12, v13
s_mul_i32 s55, s{S_W}, {5 * 49152}
s_lshl_b32 s56, s{S_IDX}, 5
s_add_u32 s55, s55, s56
v_add_u32 v12, s55, v12
v_cmp_lt_u32 s[56:57], 1, v11
v_mov_b32 v{T + 8}, s16
v_mov_b32 v{T + 9}, s17
v_mov_b32 v{T + 10}, s18
v_mov_b32 v{T + 11}, s19
v_cndmask_b32 v{T + 8}, v{T + 8}, v{T + 10}, s[56:57]
v_cndmask_b32 v{T + 9}, v{T + 9}, v{T + 11}, s[56:57]
v_add_co_u32 v{T + 8}, vcc, v{T + 8}, v12
s_nop 1
v_addc_co_u32 v{T + 9}, vcc, 0, v{T + 9}, vcc""")
    for i in range(5):
        a(f"""
s_add_u32 s55, s54, {1024 * i}
s_mov_b32 m0, s55
s_nop 0
global_load_lds_dwordx4 {vr(T + 8, 2)}, off""")
        if i < 4:
            a(f"""
v_add_co_u32 v{T + 8}, vcc, 49152, v{T + 8}
s_nop 1
v_addc_co_u32 v{T + 9}, vcc, 0, v{T + 9}, vcc""")
    a(f"""
s_branch {name}_ps_ld_done
{name}_ps_ld_b:
s_sub_u32 s55, s{S_IDX}, 96
s_cmp_ge_u32 s55, 136
s_cbranch_scc1 {name}_ps_ld_done
s_cmp_ge_u32 s55, 40
s_cbranch_scc1 {name}_ps_ld_w2
s_mov_b32 s{WT + 2}, {640 * 1280}
s_cmp_ge_u32 s55, 32
s_cbranch_scc1 {name}_ps_ld_rem
s_mul_i32 s56, s55, 20
v_add_u32 v10, s56, v10
s_branch {name}_ps_ld_go
{name}_ps_ld_rem:
s_sub_u32 s56, s55, 32
s_lshl_b32 s56, s56, 2
v_bfe_u32 v12, v10, 2, 1
v_lshlrev_b32 v12, 1, v12
v_lshrrev_b32 v13, 3, v10
v_add3_u32 v12, v12, v13, s56
v_mul_u32_u24 v12, 20, v12
v_and_b32 v10, 3, v10
v_add3_u32 v10, v10, v12, 16
s_branch {name}_ps_ld_go
{name}_ps_ld_w2:
s_mov_b32 s14, s20
s_mov_b32 s15, s21
s_mov_b32 s{WT + 2}, {1536 * 1280}
s_sub_u32 s56, s55, 40
s_lshl_b32 s56, s56, 4
v_add_u32 v10, s56, v10
{name}_ps_ld_go:
s_mov_b32 s{WT}, s14
s_mov_b32 s{WT + 1}, s15
s_mov_b32 s{WT + 3}, {SRD3}
v_mul_u32_u24 v10, 1280, v10
v_lshl_add_u32 v10, v11, 4, v10
s_mul_i32 s56, s{S_W}, 160""")
    for i in range(3):
        a(f"s_add_u32 s55, s54, {1024 * i}")
        a.dma(10, WT, "s56", "s55")
        if i < 2:
            a("s_add_u32 s56, s56, 64")
    a(f"{name}_ps_ld_done:")
    a(f"""
s_waitcnt lgkmcnt(4)
v_or3_b32 v{T}, v{T}, v{T + 1}, v{T + 2}
v_or3_b32 v{T + 3}, v{T + 3}, v{T + 4}, v{T + 5}
v_or3_b32 v{T}, v{T}, v{T + 6}, v{T + 7}
v_or_b32 v{T}, v{T}, v{T + 3}
s_nop 0
v_readfirstlane_b32 s48, v{T}
s_nop 3
s_cmp_lg_u32 s48, 0
s_cbranch_scc1 {name}_truemax
{name}_start:
s_waitcnt lgkmcnt(0)
{mfma(S0, KB[0], QA, CA)}
{mfma8(S0, KB[0] + 4, QA + 4, S0)}
s_mov_b32 s{S_T}, 0
s_mov_b32 s{S_SLOT}, 0
s_nop 7
s_nop 3""")

    def job(cur, nxt, q, c, kb, o_cur, v_cur, o_prev, v_prev, mid=None, pre=None):
        if pre:
            a(pre)
        a(mfma(nxt, kb, q, c))
        for j in range(0, 4):
            a(f"v_exp_f32 v{cur + j}, v{cur + j}")
        a(mfma(o_prev, v_prev + 4, P + 4, o_prev))
        if mid:
            mid()
        for j in range(4, 8):
            a(f"v_exp_f32 v{cur + j}, v{cur + j}")
        a(mfma8(nxt, kb + 4, q + 4, nxt))
        for j in range(0, 4):
            a(f"v_cvt_pk_bf16_f32 v{P + j}, v{cur + 2 * j}, v{cur + 2 * j + 1}")
        for j in range(8, 12):
            a(f"v_exp_f32 v{cur + j}, v{cur + j}")
        a(mfma(o_cur, v_cur, P, o_cur))
        for j in range(12, 16):
            a(f"v_exp_f32 v{cur + j}, v{cur + j}")
        for j in range(4, 8):
            a(f"v_cvt_pk_bf16_f32 v{P + j}, v{cur + 2 * j}, v{cur + 2 * j + 1}")

    def tile_reads(buf, off):
        a(f"""
ds_read_b128 {vr(KB[buf], 4)}, v{VA} offset:{off}
ds_read_b64 {vr(KB[buf] + 4, 2)}, v{VK4} offset:{off}
ds_read_b128 {vr(VB[buf], 4)}, v{VA} offset:{off + 1024}
ds_read_b128 {vr(VB[buf] + 4, 4)}, v{VA} offset:{off + 2048}""")

    a.stamp(2)
    a(".p2align 6")
    a(f"{name}_loop:")
    a(f"""
s_cmp_eq_u32 s{S_T}, 3
s_cbranch_scc1 {name}_ps_store
{name}_ps_back:
s_cmp_eq_u32 s{S_T}, 4
s_cbranch_scc1 {name}_ps_fin
{name}_fin_back:""")
    for u in range(4):
        b, nb = u % 2, (u + 1) % 2

        def mid(u=u, nb=nb):
            if u < 3:
                tile_reads(nb, (u + 1) * 3072)
            else:
                a(f"""
s_add_u32 s{S_SLOT}, s{S_SLOT}, 12288
s_cmp_eq_u32 s{S_SLOT}, {RING_HALF}
s_cselect_b32 s{S_SLOT}, 0, s{S_SLOT}
v_add_u32 v{VA}, s{S_SLOT}, v{VA0}
v_add_u32 v{VK4}, s{S_SLOT}, v{VK40}
s_waitcnt vmcnt(3)
s_barrier""")
                tile_reads(nb, 0)
                a(f"""
s_add_u32 s48, s{S_SLOT}, {2 * 12288}
s_cmp_ge_u32 s48, {RING_HALF}
s_cselect_b32 s49, {RING_HALF}, 0
s_sub_u32 s48, s48, s49
s_add_u32 s48, s48, s{S_DST}
s_cmp_ge_u32 s{S_T}, 5
s_cselect_b32 s{S_SRC}, {OOB}, s{S_SRC}""")
                stage_dma("s48")
                a(f"s_add_u32 s{S_SRC}, s{S_SRC}, 12288")

        job(S0, S1, QB, CB, KB[b], OA, VB[b], OB, VB[nb], mid=mid, pre="s_setprio 1" if prio else None)
        job(S1, S0, QA, CA, KB[nb], OB, VB[b], OA, VB[b], pre=("s_setprio 0\n" if prio else "") + "s_waitcnt lgkmcnt(0)")
    a(f"""
s_add_u32 s{S_T}, s{S_T}, 1
s_cmp_lt_u32 s{S_T}, 8
s_cbranch_scc1 {name}_loop
s_nop 0
{mfma(OB, VB[1] + 4, P + 4, OB)}""")
    a.stamp(3)
    a(f"""
s_mul_i32 s54, s{S_W}, 5120
s_add_u32 s54, s54, {LDS_PS}
s_xor_b32 s55, s{S_W}, 4
s_mul_i32 s55, s55, 5120
s_add_u32 s55, s55, {LDS_PS}
v_add_u32 v10, s54, v{VL16}
v_add_u32 v11, s55, v{VL16}
s_lshl_b32 s45, s{S_RB}, 1
s_add_u32 s45, s45, s{S_HALF}
s_mul_i32 s45, s45, 40
s_add_u32 s46, s45, s42
s_lshl_b32 s46, s46, 10
s_add_u32 s46, s46, {OF}
s_add_u32 s45, s45, s{S_CB}
s_add_u32 s45, s45, 32
s_lshl_b32 s45, s45, 10
s_lshl_b32 s47, s41, 8
s_and_b32 s47, s47, 512
s_add_u32 s45, s45, s47
s_lshl_b32 s47, s41, 3
s_and_b32 s47, s47, 8
s_add_u32 s45, s45, s47
s_add_u32 s45, s45, {OF}
v_lshlrev_b32 v12, 4, v{TOK}
v_lshl_add_u32 v12, v{H}, 30, v12
s_nop 1""")
    for j in range(3):
        a(f"ds_write_b128 v10, {vr(OB + 4 * j, 4)} offset:{1024 * j}")
    a("s_waitcnt lgkmcnt(0)\ns_barrier")
    for j in range(3):
        a(f"ds_read_b128 {vr(T + 4 * j, 4)}, v11 offset:{1024 * j}")
    a("s_waitcnt lgkmcnt(0)")
    for j in range(12):
        a(f"v_add_f32 v{OA + j}, v{OA + j}, v{T + j}")
    a(f"""
v_mov_b32 v14, v{OA + 8}
v_mov_b32 v15, v{OA + 8}
s_nop 1
v_permlane32_swap_b32 v14, v15
s_nop 1
v_rcp_f32 v15, v15
s_nop 0""")
    for j in range(12):
        a(f"v_mul_f32 v{OA + j}, v{OA + j}, v15")
    for j in range(6):
        a(f"v_cvt_pk_bf16_f32 v{T + j}, v{OA + 2 * j}, v{OA + 2 * j + 1}")
    a(f"""
buffer_store_dwordx4 {vr(T, 4)}, v{VL16}, s[{WS}:{WS + 3}], s46 offen
buffer_store_dwordx2 {vr(T + 4, 2)}, v12, s[{WS}:{WS + 3}], s45 offen""")
    if common.STAMPS:
        a("s_waitcnt vmcnt(0)")
    a.stamp(4)
    a.stamp(5, True)
    a.stamp_out(1, S_W, 6)
    a("s_endpgm")

    def tr_addr():
        a(f"""
v_bfe_u32 v10, v{LANE}, 2, 2
v_lshl_add_u32 v10, v{H}, 2, v10
v_lshlrev_b32 v10, 6, v10
v_bfe_u32 v11, v{LANE}, 4, 1
v_lshl_add_u32 v10, v11, 5, v10
v_and_b32 v11, 3, v{LANE}
v_lshl_add_u32 v10, v11, 3, v10
v_add_u32 v10, s54, v10""")

    def tr_reads(n):
        for i in range(n):
            a(f"ds_read_b64_tr_b16 {vr(T + 4 * i, 2)}, v10 offset:{1024 * i}")
            a(f"ds_read_b64_tr_b16 {vr(T + 4 * i + 2, 2)}, v10 offset:{1024 * i + 512}")

    CS = T + 20
    a(f"""
{name}_ps_store:
s_waitcnt vmcnt(3)
s_cmp_ge_u32 s{S_IDX}, 96
s_cbranch_scc1 {name}_ps_st_b""")
    tr_addr()
    tr_reads(5)
    a(f"""
s_mul_i32 s55, s{S_IDX}, 43691
s_lshr_b32 s55, s55, 18
s_mul_i32 s56, s55, 6
s_sub_u32 s56, s{S_IDX}, s56
s_mul_i32 s55, s55, 41
s_mul_i32 s57, s{S_W}, 5
s_add_u32 s57, s57, s55
s_mul_i32 s57, s57, 6144
s_lshl_b32 s56, s56, 10
s_add_u32 s57, s57, s56
s_add_u32 s57, s57, {W13F}
v_mov_b32 v{CS + 4}, 0x3f803f80
v_mov_b32 v{CS + 5}, 0x3f803f80
s_waitcnt lgkmcnt(0)""")
    for i in range(5):
        a(f"buffer_store_dwordx4 {vr(T + 4 * i, 4)}, v{VL16}, s[{WS}:{WS + 3}], s57 offen")
        if i < 4:
            a("s_add_u32 s57, s57, 6144")
        c0 = "0" if i == 0 else vr(CS, 4)
        a(f"v_mfma_f32_4x4x4_16b_bf16 {vr(CS, 4)}, {vr(CS + 4, 2)}, {vr(T + 4 * i, 2)}, {c0}")
        a("s_nop 1")
        a(f"v_mfma_f32_4x4x4_16b_bf16 {vr(CS, 4)}, {vr(CS + 4, 2)}, {vr(T + 4 * i + 2, 2)}, {vr(CS, 4)}")
        a("s_nop 1")
    a(f"""
s_lshl_b32 s55, s{S_W}, 8
s_add_u32 s55, s55, {LDS_MISC + 256}
v_lshl_add_u32 v10, v{LANE}, 2, s55
s_nop 4
ds_write_b32 v10, v{CS}
s_waitcnt lgkmcnt(0)
s_branch {name}_ps_back
{name}_ps_st_b:
s_sub_u32 s55, s{S_IDX}, 96
s_cmp_ge_u32 s55, 136
s_cbranch_scc1 {name}_ps_back""")
    tr_addr()
    tr_reads(3)
    a(f"""
s_cmp_ge_u32 s55, 40
s_cselect_b32 s56, 96, 40
s_cselect_b32 s57, 40, 0
s_mov_b32 s58, {WOF}
s_cselect_b32 s58, {W2F}, s58
s_mul_i32 s56, s56, s{S_W}
s_sub_u32 s55, s55, s57
s_add_u32 s56, s56, s55
s_mul_i32 s56, s56, 2560
s_add_u32 s56, s56, s58
v_and_b32 v11, 15, v{LANE}
v_lshl_add_u32 v11, v{H}, 4, v11
v_lshlrev_b32 v11, 4, v11
v_bfe_u32 v12, v{LANE}, 4, 1
v_lshl_add_u32 v11, v12, 30, v11
s_waitcnt lgkmcnt(0)
buffer_store_dwordx4 {vr(T, 4)}, v{VL16}, s[{WS}:{WS + 3}], s56 offen
buffer_store_dwordx4 {vr(T + 4, 4)}, v{VL16}, s[{WS}:{WS + 3}], s56 offen offset:1024
buffer_store_dwordx4 {vr(T + 8, 4)}, v11, s[{WS}:{WS + 3}], s56 offen offset:2048
s_branch {name}_ps_back""")
    a(f"""
{name}_ps_fin:
s_cmp_ge_u32 s{S_IDX}, 96
s_cbranch_scc1 {name}_fin_back
s_cmp_lg_u32 s{S_W}, 0
s_cbranch_scc1 {name}_fin_back
v_lshlrev_b32 v10, 2, v{LANE}
v_add_u32 v10, {LDS_MISC + 256}, v10""")
    for i in range(8):
        a(f"ds_read_b32 v{T + i}, v10 offset:{256 * i}")
    a(f"""
s_mul_i32 s55, s{S_IDX}, 43691
s_lshr_b32 s55, s55, 18
s_mul_i32 s56, s55, 6
s_sub_u32 s56, s{S_IDX}, s56
s_mul_i32 s55, s55, 41
s_add_u32 s55, s55, 40
s_mul_i32 s55, s55, 6144
s_lshl_b32 s56, s56, 10
s_add_u32 s55, s55, s56
s_add_u32 s55, s55, {W13F}
s_waitcnt lgkmcnt(0)""")
    for i in range(1, 8):
        a(f"v_add_f32 v{T}, v{T}, v{T + i}")
    a.half_sum(T, T + 1)
    a(f"""
v_cvt_pk_bf16_f32 v{T + 4}, v{T}, v{T}
v_cmp_eq_u32 s[56:57], 0, v{H}
v_and_b32 v{T + 1}, 0xffff0000, v{T + 4}
v_sub_f32 v{T + 1}, v{T}, v{T + 1}
v_mov_b32 v{T + 6}, 0
v_mov_b32 v{T + 7}, 0
v_cvt_pk_bf16_f32 v{T + 5}, v{T + 1}, v{T + 6}
v_cndmask_b32 v{T + 4}, 0, v{T + 4}, s[56:57]
v_cndmask_b32 v{T + 5}, 0, v{T + 5}, s[56:57]
buffer_store_dwordx4 {vr(T + 4, 4)}, v{VL16}, s[{WS}:{WS + 3}], s55 offen
s_branch {name}_fin_back""")
    MA, MB = T + 8, T + 9
    a(f"""
{name}_truemax:
v_mov_b32 v{MA}, 0xff800000
v_mov_b32 v{MB}, 0xff800000
s_mul_i32 s48, s{S_HALF}, {RING_HALF}
v_subrev_u32 v10, s48, v{VK40}
s_mov_b32 s48, {KV}
{name}_tm_loop:
buffer_load_dwordx4 {vr(T, 4)}, v{VL16}, s[{WS}:{WS + 3}], s48 offen
buffer_load_dwordx2 {vr(T + 4, 2)}, v10, s[{WS}:{WS + 3}], s48 offen
s_waitcnt vmcnt(0)
{mfma(S0, T, QA, "0")}
{mfma(S1, T, QB, "0")}
{mfma8(S0, T + 4, QA + 4, S0)}
{mfma8(S1, T + 4, QB + 4, S1)}
s_nop 7
s_nop 7""")
    for j in range(8):
        a(f"v_max3_f32 v{MA}, v{S0 + 2 * j}, v{S0 + 2 * j + 1}, v{MA}")
        a(f"v_max3_f32 v{MB}, v{S1 + 2 * j}, v{S1 + 2 * j + 1}, v{MB}")
    a(f"""
s_add_u32 s48, s48, 3072
s_cmp_lt_u32 s48, {KV + 64 * 3072}
s_cbranch_scc1 {name}_tm_loop""")
    a.half_max(MA, T)
    a.half_max(MB, T)
    for j in range(16):
        a(f"v_sub_f32 v{CA + j}, 0, v{MA}")
        a(f"v_sub_f32 v{CB + j}, 0, v{MB}")
    a(f"""
s_nop 1
s_branch {name}_start""")
    a(f"{name}_end:")
    a("s_endpgm")
    a.end(name, 208)
    return a.text(), 512, K2_LDS
```

```python
from common import *
import common

SLOT = 36864
NSLOT = 4
LDS_RED = SLOT * NSLOT
K35_LDS = LDS_RED + 512


def gen_k35(name, which):
    NK = 40 if which == 3 else 96
    NC = NK // 8
    ACT, WF = (OF, WOF) if which == 3 else (HHF, W2F)
    a = Asm()
    a.begin(name)
    WS, EX = 4, 8
    S_W, S_RB, S_CB = 32, 33, 34
    LANE, VL16, H, TOK = 2, 3, 4, 5
    a(f"""
s_cmp_ge_u32 s2, 256
s_cbranch_scc1 {name}_end
s_load_dwordx2 s[12:13], s[0:1], 88
s_load_dwordx2 s[14:15], s[0:1], {0 if which == 3 else 72}""")
    a.stamp(0)
    a.stamp(1, True)
    a.ids(S_W, LANE, S_RB, S_CB, 35, 36)
    a(f"""
v_lshlrev_b32 v{VL16}, 4, v{LANE}
s_waitcnt lgkmcnt(0)""")
    a.srd(WS, 12, WS_USED)
    a(f"""
s_cmp_lt_u32 s{S_W}, 4
s_cbranch_scc1 {name}_compute""")
    S_N0, S_N1, S_WS, S_L0, S_LW, S_SLOT, S_C = 40, 41, 42, 43, 44, 45, 46
    a(f"""
s_sub_u32 s35, s{S_W}, 4
s_lshl_b32 s36, s{S_RB}, 1
s_mul_i32 s36, s36, {NK}
s_lshl_b32 s37, s35, 1
s_add_u32 s36, s36, s37
s_lshl_b32 s36, s36, 10
s_add_u32 s{S_N0}, s36, {ACT}
s_add_u32 s{S_N1}, s{S_N0}, {NK * 1024}
s_mul_i32 s36, s{S_CB}, {NK * 2560}
s_mul_i32 s37, s35, 5120
s_add_u32 s36, s36, s37
s_add_u32 s{S_WS}, s36, {WF}
s_lshl_b32 s{S_L0}, s35, 11
s_add_u32 s{S_LW}, s37, 16384
s_mov_b32 s{S_SLOT}, 0""")

    def issue():
        a(f"s_add_u32 s36, s{S_SLOT}, s{S_L0}")
        a.dma(VL16, WS, f"s{S_N0}", "s36")
        a.dma(VL16, WS, f"s{S_N0}", None, imm=1024)
        a("s_add_u32 s36, s36, 8192")
        a.dma(VL16, WS, f"s{S_N1}", "s36")
        a.dma(VL16, WS, f"s{S_N1}", None, imm=1024)
        a(f"s_add_u32 s36, s{S_SLOT}, s{S_LW}")
        a.dma(VL16, WS, f"s{S_WS}", "s36")
        for i in range(1, 4):
            a.dma(VL16, WS, f"s{S_WS}", None, imm=1024 * i)
        a(f"s_add_u32 s36, s36, 4096\ns_add_u32 s37, s{S_WS}, 4096")
        a.dma(VL16, WS, "s37", "s36")
        a(f"""
s_add_u32 s{S_N0}, s{S_N0}, 8192
s_add_u32 s{S_N1}, s{S_N1}, 8192
s_add_u32 s{S_WS}, s{S_WS}, 20480
s_add_u32 s{S_SLOT}, s{S_SLOT}, {SLOT}
s_cmp_eq_u32 s{S_SLOT}, {SLOT * NSLOT}
s_cselect_b32 s{S_SLOT}, 0, s{S_SLOT}""")

    for _ in range(NSLOT - 1):
        issue()
    a(f"""
s_waitcnt vmcnt({9 * (NSLOT - 2)})
s_barrier
s_mov_b32 s{S_C}, {NSLOT - 1}
{name}_ld_loop:
s_waitcnt vmcnt({9 * (NSLOT - 3)})
s_barrier
s_cmp_ge_u32 s{S_C}, {NC}
s_cselect_b32 s{S_N0}, {OOB}, s{S_N0}
s_cselect_b32 s{S_N1}, {OOB}, s{S_N1}
s_cselect_b32 s{S_WS}, {OOB}, s{S_WS}""")
    issue()
    a(f"""
s_add_u32 s{S_C}, s{S_C}, 1
s_cmp_lt_u32 s{S_C}, {NC + NSLOT - 1}
s_cbranch_scc1 {name}_ld_loop
s_endpgm""")
    a(f"{name}_compute:")
    S_WN, S_WM, S_TT = 40, 41, 42
    VA0, VB0, VA, VB = 6, 7, 8, 9
    RES = 16
    ACC = [32, 48]
    BUF = 64
    a(f"""
s_and_b32 s{S_WN}, s{S_W}, 1
s_lshr_b32 s{S_WM}, s{S_W}, 1
s_lshl_b32 s{S_TT}, s{S_RB}, 1
s_add_u32 s{S_TT}, s{S_TT}, s{S_WN}
v_lshrrev_b32 v{H}, 5, v{LANE}
v_and_b32 v{TOK}, 31, v{LANE}
s_lshl_b32 s36, s{S_WN}, 13
v_add_u32 v{VB0}, s36, v{VL16}""")
    if which == 3:
        a.srd(EX, 14, 2048 * 1280)
        a(f"""
s_lshl_b32 s36, s{S_TT}, 5
v_add_u32 v10, s36, v{TOK}
v_mul_u32_u24 v10, 1280, v10
v_lshl_add_u32 v10, v{H}, 3, v10
s_mul_i32 s37, s{S_CB}, 160
s_lshl_b32 s36, s{S_WM}, 7
s_add_u32 s37, s37, s36""")
    else:
        a.srd(EX, 14, 2048 * 1280)
        a(f"""
s_mul_i32 s37, s{S_TT}, 40
s_mul_i32 s36, s{S_CB}, 5
s_add_u32 s37, s37, s36
s_lshl_b32 s36, s{S_WM}, 2
s_add_u32 s37, s37, s36
s_lshl_b32 s37, s37, 10
s_add_u32 s37, s37, {HF}""")
    for r in range(ACC[0], ACC[0] + 32):
        a(f"v_mov_b32 v{r}, 0")
    a(f"""
s_cmp_eq_u32 s{S_WM}, 0
s_cbranch_scc0 {name}_rem""")

    def res_loads(n16):
        if which == 3:
            for g in range(2 * n16):
                a(f"buffer_load_dwordx2 {vr(RES + 2 * g, 2)}, v10, s[{EX}:{EX + 3}], s37 offen offset:{16 * g}")
        else:
            for j in range(n16):
                a(f"buffer_load_dwordx4 {vr(RES + 4 * j, 4)}, v{VL16}, s[{WS}:{WS + 3}], s37 offen offset:{1024 * j}")

    def reads(s, nt):
        b = BUF + 12 * (s % 4)
        sg = s % 8
        a(f"ds_read_b128 {vr(b + 8, 4)}, v{VB} offset:{sg * 1024}")
        for m in range(nt):
            a(f"ds_read_b128 {vr(b + 4 * m, 4)}, v{VA} offset:{sg * 2560 + m * 1024}")

    def mainloop(nt, tag):
        S_SLOT2, S_CNT = 43, 44
        a(f"""
v_mov_b32 v{VA}, v{VA0}
v_mov_b32 v{VB}, v{VB0}
s_mov_b32 s{S_SLOT2}, 0
s_mov_b32 s{S_CNT}, 0
s_barrier""")
        a.stamp(2)
        for s in range(3):
            reads(s, nt)
        a(f".p2align 6\n{name}_loop_{tag}:")
        for s in range(8):
            b = BUF + 12 * (s % 4)
            if s == 5:
                a(f"""
s_add_u32 s{S_SLOT2}, s{S_SLOT2}, {SLOT}
s_cmp_eq_u32 s{S_SLOT2}, {SLOT * NSLOT}
s_cselect_b32 s{S_SLOT2}, 0, s{S_SLOT2}
v_add_u32 v{VA}, s{S_SLOT2}, v{VA0}
v_add_u32 v{VB}, s{S_SLOT2}, v{VB0}
s_barrier""")
            reads(s + 3, nt)
            a(f"s_waitcnt lgkmcnt({3 * (nt + 1)})")
            for m in range(nt):
                a(mfma(ACC[m], b + 4 * m, b + 8, ACC[m]))
        a(f"""
s_add_u32 s{S_CNT}, s{S_CNT}, 1
s_cmp_lt_u32 s{S_CNT}, {NC}
s_cbranch_scc1 {name}_loop_{tag}
s_waitcnt vmcnt(0) lgkmcnt(0)
s_nop 7
s_nop 3""")
        a.stamp(3)

    def add_res(nreg):
        for j in range(nreg // 2):
            r, t = ACC[0] + 2 * j, 12 + 2 * (j % 2)
            a(f"""
v_lshlrev_b32 v{t}, 16, v{RES + j}
v_and_b32 v{t + 1}, 0xffff0000, v{RES + j}
v_pk_add_f32 v[{r}:{r + 1}], v[{r}:{r + 1}], v[{t}:{t + 1}]""")

    def pack(nreg):
        for j in range(nreg // 2):
            a(f"v_cvt_pk_bf16_f32 v{BUF + j}, v{ACC[0] + 2 * j}, v{ACC[0] + 2 * j + 1}")

    def stats(nreg):
        a(f"""
v_pk_mul_f32 v[12:13], v[{ACC[0]}:{ACC[0] + 1}], v[{ACC[0]}:{ACC[0] + 1}]
v_mov_b32 v14, v{ACC[0]}
v_mov_b32 v15, v{ACC[0] + 1}""")
        for j in range(1, nreg // 2):
            r = ACC[0] + 2 * j
            a(f"v_pk_fma_f32 v[12:13], v[{r}:{r + 1}], v[{r}:{r + 1}], v[12:13]")
            a(f"v_pk_add_f32 v[14:15], v[14:15], v[{r}:{r + 1}]")
        a(f"""
v_add_f32 v11, v12, v13
v_add_f32 v10, v14, v15""")
        a.half_sum(10, 12)
        a.half_sum(11, 12)

    def epilogue(nreg):
        add_res(nreg)
        pack(nreg)
        if which == 3:
            a(f"""
s_mul_i32 s37, s{S_TT}, 40
s_mul_i32 s36, s{S_CB}, 5
s_add_u32 s37, s37, s36
s_lshl_b32 s36, s{S_WM}, 2
s_add_u32 s37, s37, s36
s_lshl_b32 s37, s37, 10
s_add_u32 s37, s37, {HF}""")
            for j in range(nreg // 8):
                a(f"buffer_store_dwordx4 {vr(BUF + 4 * j, 4)}, v{VL16}, s[{WS}:{WS + 3}], s37 offen offset:{1024 * j}")
            stats(nreg)
            a(f"""
s_lshl_b32 s36, s{S_WN}, 8
s_add_u32 s36, s36, {LDS_RED}
v_lshl_add_u32 v12, v{TOK}, 3, s36""")
            if nreg == 8:
                a("ds_write_b64 v12, v[10:11]\ns_waitcnt lgkmcnt(0)\ns_barrier")
            else:
                a(f"""
s_lshl_b32 s36, s{S_TT}, 11
s_lshl_b32 s37, s{S_CB}, 3
s_add_u32 s36, s36, s37
s_add_u32 s36, s36, {ST}
v_lshlrev_b32 v13, 6, v{TOK}
v_lshl_add_u32 v13, v{H}, 30, v13
s_barrier
ds_read_b64 v[14:15], v12
s_waitcnt lgkmcnt(0)
v_pk_add_f32 v[10:11], v[10:11], v[14:15]
buffer_store_dwordx2 v[10:11], v13, s[{WS}:{WS + 3}], s36 offen""")
        else:
            a(f"""
s_lshl_b32 s36, s{S_TT}, 5
v_add_u32 v10, s36, v{TOK}
v_mul_u32_u24 v10, 1280, v10
v_lshl_add_u32 v10, v{H}, 4, v10
s_mul_i32 s37, s{S_CB}, 160
s_lshl_b32 s36, s{S_WM}, 7
s_add_u32 s37, s37, s36""")
            for j in range(nreg // 8):
                r = BUF + 4 * j
                a(f"""
v_permlane32_swap_b32 v{r}, v{r + 2}
v_permlane32_swap_b32 v{r + 1}, v{r + 3}
buffer_store_dwordx4 {vr(r, 4)}, v10, s[{EX}:{EX + 3}], s37 offen offset:{32 * j}""")
        if common.STAMPS:
            a("s_waitcnt vmcnt(0)")
        a.stamp(4)
        a.stamp(5, True)
        a.stamp_out(2 if which == 3 else 4, S_W, 6)
        if common.STAMPS and which == 5:
            a(f"""
s_cmp_lg_u32 s2, 0
s_cbranch_scc1 {name}_nodbg{nreg}
s_cmp_lg_u32 s{S_W}, 0
s_cbranch_scc1 {name}_nodbg{nreg}
s_load_dwordx2 s[14:15], s[0:1], 80
s_waitcnt vmcnt(0) lgkmcnt(0)
s_sub_u32 s14, s14, 0
s_subb_u32 s15, s15, 0
s_mov_b32 s8, s14
s_mov_b32 s9, s15
s_mov_b32 s10, 256
s_mov_b32 s11, {SRD3}
v_lshrrev_b32 v4, 1, v2
v_and_b32 v5, 1, v2
v_lshlrev_b32 v4, 17, v4
v_lshl_add_u32 v4, v5, 4, v4
v_add_u32 v4, {DIAG + 4}, v4
v_lshlrev_b32 v5, 2, v2
s_mov_b32 exec_lo, 0x3ff
s_mov_b32 exec_hi, 0
buffer_load_dword v6, v4, s[92:95], 0 offen sc1
s_waitcnt vmcnt(0)
buffer_store_dword v6, v5, s[8:11], 0 offen
{name}_nodbg{nreg}:""")
        a("s_endpgm")

    a(f"v_add_u32 v{VA0}, 16384, v{VL16}")
    res_loads(4)
    mainloop(2, "a")
    epilogue(32)
    a(f"""
{name}_rem:
v_and_b32 v11, 15, v{LANE}
v_lshl_add_u32 v11, v{H}, 4, v11
v_lshlrev_b32 v11, 4, v11
v_add_u32 v{VA0}, {16384 + 2048}, v11""")
    res_loads(1)
    mainloop(1, "b")
    epilogue(8)
    a(f"{name}_end:")
    a("s_endpgm")
    a.end(name, 112)
    return a.text(), 512, K35_LDS
```

```python
from common import *
import common

SLOT = 20480
NSLOT = 7
NC = 20
LDS_ST = SLOT * NSLOT
K4_LDS = LDS_ST + 1024


def gen_k4(name):
    a = Asm()
    a.begin(name)
    WS = 4
    S_W, S_RB, S_FB = 32, 33, 34
    LANE, VL16, H, TOK = 2, 3, 4, 5
    a(f"""
s_cmp_ge_u32 s2, 256
s_cbranch_scc1 {name}_end
s_load_dwordx2 s[12:13], s[0:1], 88""")
    a.stamp(0)
    a.stamp(1, True)
    a(f"""
v_lshrrev_b32 v1, 6, v0
v_and_b32 v{LANE}, 63, v0
v_readfirstlane_b32 s{S_W}, v1
s_and_b32 s35, s2, 7
s_lshr_b32 s36, s2, 3
s_lshl_b32 s{S_RB}, s35, 1
s_and_b32 s35, s36, 1
s_add_u32 s{S_RB}, s{S_RB}, s35
s_lshr_b32 s{S_FB}, s36, 1
v_lshlrev_b32 v{VL16}, 4, v{LANE}
s_waitcnt lgkmcnt(0)""")
    a.srd(WS, 12, WS_USED)
    a(f"""
s_cmp_lt_u32 s{S_W}, 4
s_cbranch_scc1 {name}_compute""")
    S_N, S_WS, S_L0, S_LW, S_SLOT, S_C = 40, 41, 42, 43, 44, 45
    a(f"""
s_sub_u32 s35, s{S_W}, 4
s_lshl_b32 s36, s{S_RB}, 2
s_add_u32 s36, s36, s35
s_mul_i32 s36, s36, {40 * 1024}
s_add_u32 s{S_N}, s36, {HF}
s_mul_i32 s36, s{S_FB}, {41 * 6144}
s_mul_i32 s37, s35, 3072
s_add_u32 s36, s36, s37
s_add_u32 s{S_WS}, s36, {W13F}
s_lshl_b32 s{S_L0}, s35, 11
s_add_u32 s{S_LW}, s37, 8192
s_mov_b32 s{S_SLOT}, 0""")

    def issue():
        a(f"s_add_u32 s36, s{S_SLOT}, s{S_LW}")
        a.dma(VL16, WS, f"s{S_WS}", "s36")
        a.dma(VL16, WS, f"s{S_WS}", None, imm=1024)
        a.dma(VL16, WS, f"s{S_WS}", None, imm=2048)
        a(f"s_add_u32 s36, s{S_SLOT}, s{S_L0}")
        a.dma(VL16, WS, f"s{S_N}", "s36")
        a.dma(VL16, WS, f"s{S_N}", None, imm=1024)
        a(f"""
s_add_u32 s{S_N}, s{S_N}, 2048
s_add_u32 s{S_WS}, s{S_WS}, 12288
s_add_u32 s{S_SLOT}, s{S_SLOT}, {SLOT}
s_cmp_eq_u32 s{S_SLOT}, {SLOT * NSLOT}
s_cselect_b32 s{S_SLOT}, 0, s{S_SLOT}""")

    for _ in range(NSLOT - 1):
        issue()
    a(f"""
s_waitcnt vmcnt({5 * (NSLOT - 2)})
s_barrier
s_mov_b32 s{S_C}, {NSLOT - 1}
{name}_ld_loop:
s_waitcnt vmcnt({5 * (NSLOT - 3)})
s_barrier
s_cmp_ge_u32 s{S_C}, {NC}
s_cselect_b32 s{S_N}, {OOB}, s{S_N}
s_cselect_b32 s{S_WS}, {OOB}, s{S_WS}""")
    issue()
    a(f"""
s_add_u32 s{S_C}, s{S_C}, 1
s_cmp_lt_u32 s{S_C}, {NC + NSLOT - 1}
s_cbranch_scc1 {name}_ld_loop
s_endpgm""")
    a(f"{name}_compute:")
    S_WN, S_WM, S_SLOT2, S_CNT = 40, 41, 42, 43
    VA0, VB0, VA, VB = 6, 7, 8, 9
    EXT = 16
    ST0 = 28
    BUF = [48, 68]
    ACC = 96
    a(f"""
s_and_b32 s{S_WN}, s{S_W}, 1
s_lshr_b32 s{S_WM}, s{S_W}, 1
v_lshrrev_b32 v{H}, 5, v{LANE}
v_and_b32 v{TOK}, 31, v{LANE}
s_lshl_b32 s36, s{S_RB}, 2
s_add_u32 s36, s36, s{S_W}
s_lshl_b32 s36, s36, 11
s_add_u32 s36, s36, {ST}
v_lshlrev_b32 v10, 6, v{TOK}
v_lshl_add_u32 v10, v{H}, 5, v10
buffer_load_dwordx4 {vr(ST0, 4)}, v10, s[{WS}:{WS + 3}], s36 offen
buffer_load_dwordx4 {vr(ST0 + 4, 4)}, v10, s[{WS}:{WS + 3}], s36 offen offset:16
s_mul_i32 s36, s{S_FB}, 41
s_add_u32 s36, s36, 40
s_mul_i32 s36, s36, 6144
s_mul_i32 s37, s{S_WM}, 3072
s_add_u32 s36, s36, s37
s_add_u32 s36, s36, {W13F}""")
    for m in range(3):
        a(f"buffer_load_dwordx4 {vr(EXT + 4 * m, 4)}, v{VL16}, s[{WS}:{WS + 3}], s36 offen offset:{1024 * m}")
    a(f"""
s_add_u32 s37, s37, 8192
v_add_u32 v{VA0}, s37, v{VL16}
s_lshl_b32 s37, s{S_WN}, 12
v_add_u32 v{VB0}, s37, v{VL16}
v_mov_b32 v{VA}, v{VA0}
v_mov_b32 v{VB}, v{VB0}""")
    for r in range(ACC, ACC + 96):
        a(f"v_mov_b32 v{r}, 0")
    a(f"""
s_waitcnt vmcnt(3)
v_pk_add_f32 v[{ST0}:{ST0 + 1}], v[{ST0}:{ST0 + 1}], v[{ST0 + 2}:{ST0 + 3}]
v_pk_add_f32 v[{ST0 + 4}:{ST0 + 5}], v[{ST0 + 4}:{ST0 + 5}], v[{ST0 + 6}:{ST0 + 7}]
v_pk_add_f32 v[10:11], v[{ST0}:{ST0 + 1}], v[{ST0 + 4}:{ST0 + 5}]""")
    a.half_sum(10, 12)
    a.half_sum(11, 12)
    a(f"""
v_mul_f32 v10, {f32(1 / 640)}, v10
v_mul_f32 v11, {f32(1 / 640)}, v11
v_fma_f32 v11, -v10, v10, v11
v_max_f32 v11, 0, v11
v_add_f32 v11, {f32(1e-5)}, v11
v_rsq_f32 v11, v11
s_lshl_b32 s36, s{S_W}, 8
s_add_u32 s36, s36, {LDS_ST}
v_lshl_add_u32 v12, v{TOK}, 3, s36
ds_write_b64 v12, v[10:11]
s_lshl_b32 s36, s{S_WN}, 9
s_add_u32 s36, s36, {LDS_ST}
v_lshl_add_u32 v12, v{TOK}, 3, s36
s_mov_b32 s{S_SLOT2}, 0
s_mov_b32 s{S_CNT}, 0
s_waitcnt lgkmcnt(0)
s_barrier
ds_read_b64 v[{ST0}:{ST0 + 1}], v12
ds_read_b64 v[{ST0 + 2}:{ST0 + 3}], v12 offset:256""")

    def rd(buf, sg):
        b = BUF[buf]
        return [f"ds_read_b128 {vr(b, 4)}, v{VA} offset:{sg * 6144}",
                f"ds_read_b128 {vr(b + 12, 4)}, v{VB} offset:{sg * 1024}",
                f"ds_read_b128 {vr(b + 16, 4)}, v{VB} offset:{2048 + sg * 1024}",
                f"ds_read_b128 {vr(b + 4, 4)}, v{VA} offset:{sg * 6144 + 1024}",
                f"ds_read_b128 {vr(b + 8, 4)}, v{VA} offset:{sg * 6144 + 2048}"]

    def mm(buf):
        b = BUF[buf]
        return [mfma(ACC + 16 * (2 * m + n), b + 4 * m, b + 12 + 4 * n, ACC + 16 * (2 * m + n))
                for m in range(3) for n in range(2)]

    a.stamp(2)
    for x in rd(0, 0):
        a(x)
    a(f".p2align 6\n{name}_loop:")
    a("s_waitcnt lgkmcnt(0)")
    m, r = mm(0), rd(1, 1)
    for i in range(6):
        a(m[i])
        if i < 5:
            a(r[i])
    a(f"""
s_add_u32 s{S_SLOT2}, s{S_SLOT2}, {SLOT}
s_cmp_eq_u32 s{S_SLOT2}, {SLOT * NSLOT}
s_cselect_b32 s{S_SLOT2}, 0, s{S_SLOT2}
v_add_u32 v{VA}, s{S_SLOT2}, v{VA0}
v_add_u32 v{VB}, s{S_SLOT2}, v{VB0}
s_waitcnt lgkmcnt(0)""")
    m, r = mm(1), rd(0, 0)
    a(m[0])
    a("s_barrier")
    for i in range(1, 6):
        a(r[i - 1])
        a(m[i])
    a(f"""
s_add_u32 s{S_CNT}, s{S_CNT}, 1
s_cmp_lt_u32 s{S_CNT}, {NC}
s_cbranch_scc1 {name}_loop
s_waitcnt vmcnt(0) lgkmcnt(0)""")
    a.stamp(3)
    BX = BUF[0]
    for n in range(2):
        mean = ST0 + 2 * n
        b = BX + 4 * n
        a(f"""
v_cvt_pk_bf16_f32 v12, v{mean}, v{mean}
v_and_b32 v13, 0xffff0000, v12
v_sub_f32 v13, v13, v{mean}
v_xor_b32 v12, 0x80008000, v12
v_cvt_pk_bf16_f32 v13, v13, v13
v_mov_b32 v{b + 1}, v12
v_mov_b32 v{b + 2}, 0
v_mov_b32 v{b + 3}, 0
v_and_b32 v12, 0xffff, v12
v_lshlrev_b32 v13, 16, v13
v_or_b32 v{b}, v12, v13""")
    a("s_nop 1")
    for mi in range(3):
        for n in range(2):
            d = ACC + 16 * (2 * mi + n)
            a(mfma(d, EXT + 4 * mi, BX + 4 * n, d))
    C = [16, 20]
    for n in range(2):
        rs = ST0 + 2 * n + 1
        a(f"""
v_rcp_f32 v{C[n] + 2}, v{rs}
v_mul_f32 v{C[n]}, {f32(-LOG2E)}, v{rs}
v_mul_f32 v{C[n] + 2}, {f32(-LOG2E)}, v{C[n] + 2}""")
    a(f"""
s_lshl_b32 s36, s{S_RB}, 2
s_lshl_b32 s37, s{S_WN}, 1
s_add_u32 s36, s36, s37
s_mul_i32 s36, s36, 96
s_mul_i32 s37, s{S_FB}, 6
s_add_u32 s36, s36, s37
s_mul_i32 s37, s{S_WM}, 3
s_add_u32 s36, s36, s37
s_lshl_b32 s36, s36, 10
s_add_u32 s36, s36, {HHF}
s_add_u32 s37, s36, {96 * 1024}
s_nop 3""")
    k = 0
    for mi in range(3):
        for n in range(2):
            d = ACC + 16 * (2 * mi + n)
            o = 48 + 4 * (k % 4)
            k += 1
            c1, kk = C[n], C[n] + 2
            for j in range(4):
                g, u = d + 2 * j, d + 8 + 2 * j
                a(f"v_pk_mul_f32 v[{g}:{g + 1}], v[{g}:{g + 1}], v[{c1}:{c1 + 1}] op_sel_hi:[1,0]")
            for j in range(4):
                g, t = d + 2 * j, 64 + 2 * j
                a(f"v_exp_f32 v{t}, v{g}\nv_exp_f32 v{t + 1}, v{g + 1}")
            for j in range(4):
                g, u = d + 2 * j, d + 8 + 2 * j
                a(f"v_pk_mul_f32 v[{g}:{g + 1}], v[{g}:{g + 1}], v[{u}:{u + 1}]")
            for j in range(4):
                t = 64 + 2 * j
                a(f"v_pk_fma_f32 v[{t}:{t + 1}], v[{t}:{t + 1}], v[{kk}:{kk + 1}], v[{kk}:{kk + 1}] op_sel_hi:[1,0,0]")
            for j in range(8):
                a(f"v_rcp_f32 v{64 + j}, v{64 + j}")
            for j in range(4):
                g, t = d + 2 * j, 64 + 2 * j
                a(f"v_pk_mul_f32 v[{g}:{g + 1}], v[{g}:{g + 1}], v[{t}:{t + 1}]")
            for j in range(4):
                g = d + 2 * j
                a(f"v_cvt_pk_bf16_f32 v{o + j}, v{g}, v{g + 1}")
            a(f"buffer_store_dwordx4 {vr(o, 4)}, v{VL16}, s[{WS}:{WS + 3}], s{36 + n} offen offset:{1024 * mi}")
    if common.STAMPS:
        a("s_waitcnt vmcnt(0)")
    a.stamp(4)
    a.stamp(5, True)
    a.stamp_out(3, S_W, 6)
    a(f"{name}_end:")
    a("s_endpgm")
    a.end(name, 192)
    return a.text(), 512, K4_LDS
```

```python
import sys
from common import *
from k1 import gen_k1
from k2 import gen_k2
from k35 import gen_k35
from k4 import gen_k4

HEADER = open("cdna_kernels/" + NAME + ".s.ref").read().split("; Override launch geometry")[0]

def build(kernels, out):
    txt = HEADER
    for name, (body, block, lds) in kernels:
        txt += f"; @launch kernel={name} grid=(256,1,1) block=({block},1,1) lds={lds}\n"
    txt += '.amdgcn_target "amdgcn-amd-amdhsa--gfx950"\n'
    seen = set()
    for name, (body, block, lds) in kernels:
        if name not in seen:
            txt += body
            seen.add(name)
    open(out, "w").write(txt)

if __name__ == "__main__":
    import common
    if "--diag" in sys.argv:
        sys.argv.remove("--diag")
        common.STAMPS = True
    ks = [("qkv_kernel", gen_k1("qkv_kernel")),
          ("attn_kernel", gen_k2("attn_kernel")),
          ("oproj_kernel", gen_k35("oproj_kernel", 3)),
          ("ffn1_kernel", gen_k4("ffn1_kernel")),
          ("ffn2_kernel", gen_k35("ffn2_kernel", 5))]
    build(ks, sys.argv[1] if len(sys.argv) > 1 else "cdna_kernels/" + NAME + ".s")
```

```python
from common import *
import common

SLOT = 36864
NSLOT = 4
LDS_RED = SLOT * NSLOT
K35_LDS = LDS_RED + 512


def gen_k35(name, which):
    NK = 40 if which == 3 else 96
    NC = NK // 8
    ACT, WF = (OF, WOF) if which == 3 else (HHF, W2F)
    a = Asm()
    a.begin(name)
    WS, EX = 4, 8
    S_W, S_RB, S_CB = 32, 33, 34
    LANE, VL16, H, TOK = 2, 3, 4, 5
    a(f"""
s_cmp_ge_u32 s2, 256
s_cbranch_scc1 {name}_end
s_load_dwordx2 s[12:13], s[0:1], 88
s_load_dwordx2 s[14:15], s[0:1], {0 if which == 3 else 72}""")
    a.stamp(0)
    a.stamp(1, True)
    a.ids(S_W, LANE, S_RB, S_CB, 35, 36)
    a(f"""
v_lshlrev_b32 v{VL16}, 4, v{LANE}
s_waitcnt lgkmcnt(0)""")
    a.srd(WS, 12, WS_USED)
    a(f"""
s_cmp_lt_u32 s{S_W}, 4
s_cbranch_scc1 {name}_compute""")
    S_N0, S_N1, S_WS, S_L0, S_LW, S_SLOT, S_C = 40, 41, 42, 43, 44, 45, 46
    a(f"""
s_sub_u32 s35, s{S_W}, 4
s_lshl_b32 s36, s{S_RB}, 1
s_mul_i32 s36, s36, {NK}
s_lshl_b32 s37, s35, 1
s_add_u32 s36, s36, s37
s_lshl_b32 s36, s36, 10
s_add_u32 s{S_N0}, s36, {ACT}
s_add_u32 s{S_N1}, s{S_N0}, {NK * 1024}
s_mul_i32 s36, s{S_CB}, {NK * 2560}
s_mul_i32 s37, s35, 5120
s_add_u32 s36, s36, s37
s_add_u32 s{S_WS}, s36, {WF}
s_lshl_b32 s{S_L0}, s35, 11
s_add_u32 s{S_LW}, s37, 16384
s_mov_b32 s{S_SLOT}, 0""")

    def issue():
        a(f"s_add_u32 s36, s{S_SLOT}, s{S_L0}")
        a.dma(VL16, WS, f"s{S_N0}", "s36")
        a.dma(VL16, WS, f"s{S_N0}", None, imm=1024)
        a("s_add_u32 s36, s36, 8192")
        a.dma(VL16, WS, f"s{S_N1}", "s36")
        a.dma(VL16, WS, f"s{S_N1}", None, imm=1024)
        a(f"s_add_u32 s36, s{S_SLOT}, s{S_LW}")
        a.dma(VL16, WS, f"s{S_WS}", "s36")
        for i in range(1, 4):
            a.dma(VL16, WS, f"s{S_WS}", None, imm=1024 * i)
        a(f"s_add_u32 s36, s36, 4096\ns_add_u32 s37, s{S_WS}, 4096")
        a.dma(VL16, WS, "s37", "s36")
        a(f"""
s_add_u32 s{S_N0}, s{S_N0}, 8192
s_add_u32 s{S_N1}, s{S_N1}, 8192
s_add_u32 s{S_WS}, s{S_WS}, 20480
s_add_u32 s{S_SLOT}, s{S_SLOT}, {SLOT}
s_cmp_eq_u32 s{S_SLOT}, {SLOT * NSLOT}
s_cselect_b32 s{S_SLOT}, 0, s{S_SLOT}""")

    for _ in range(NSLOT - 1):
        issue()
    a(f"""
s_waitcnt vmcnt({9 * (NSLOT - 2)})
s_barrier
s_mov_b32 s{S_C}, {NSLOT - 1}
{name}_ld_loop:
s_waitcnt vmcnt({9 * (NSLOT - 3)})
s_barrier
s_cmp_ge_u32 s{S_C}, {NC}
s_cselect_b32 s{S_N0}, {OOB}, s{S_N0}
s_cselect_b32 s{S_N1}, {OOB}, s{S_N1}
s_cselect_b32 s{S_WS}, {OOB}, s{S_WS}""")
    issue()
    a(f"""
s_add_u32 s{S_C}, s{S_C}, 1
s_cmp_lt_u32 s{S_C}, {NC + NSLOT - 1}
s_cbranch_scc1 {name}_ld_loop
s_endpgm""")
    a(f"{name}_compute:")
    S_WN, S_WM, S_TT = 40, 41, 42
    VA0, VB0, VA, VB = 6, 7, 8, 9
    RES = 16
    ACC = [32, 48]
    BUF = 64
    a(f"""
s_and_b32 s{S_WN}, s{S_W}, 1
s_lshr_b32 s{S_WM}, s{S_W}, 1
s_lshl_b32 s{S_TT}, s{S_RB}, 1
s_add_u32 s{S_TT}, s{S_TT}, s{S_WN}
v_lshrrev_b32 v{H}, 5, v{LANE}
v_and_b32 v{TOK}, 31, v{LANE}
s_lshl_b32 s36, s{S_WN}, 13
v_add_u32 v{VB0}, s36, v{VL16}""")
    if which == 3:
        a.srd(EX, 14, 2048 * 1280)
        a(f"""
s_lshl_b32 s36, s{S_TT}, 5
v_add_u32 v10, s36, v{TOK}
v_mul_u32_u24 v10, 1280, v10
v_lshl_add_u32 v10, v{H}, 3, v10
s_mul_i32 s37, s{S_CB}, 160
s_lshl_b32 s36, s{S_WM}, 7
s_add_u32 s37, s37, s36""")
    else:
        a.srd(EX, 14, 2048 * 1280)
        a(f"""
s_mul_i32 s37, s{S_TT}, 40
s_mul_i32 s36, s{S_CB}, 5
s_add_u32 s37, s37, s36
s_lshl_b32 s36, s{S_WM}, 2
s_add_u32 s37, s37, s36
s_lshl_b32 s37, s37, 10
s_add_u32 s37, s37, {HF}""")
    for r in range(ACC[0], ACC[0] + 32):
        a(f"v_mov_b32 v{r}, 0")
    a(f"""
s_cmp_eq_u32 s{S_WM}, 0
s_cbranch_scc0 {name}_rem""")

    def res_loads(n16):
        if which == 3:
            for g in range(2 * n16):
                a(f"buffer_load_dwordx2 {vr(RES + 2 * g, 2)}, v10, s[{EX}:{EX + 3}], s37 offen offset:{16 * g}")
        else:
            for j in range(n16):
                a(f"buffer_load_dwordx4 {vr(RES + 4 * j, 4)}, v{VL16}, s[{WS}:{WS + 3}], s37 offen offset:{1024 * j}")

    def reads(s, nt):
        b = BUF + 12 * (s % 4)
        sg = s % 8
        a(f"ds_read_b128 {vr(b + 8, 4)}, v{VB} offset:{sg * 1024}")
        for m in range(nt):
            a(f"ds_read_b128 {vr(b + 4 * m, 4)}, v{VA} offset:{sg * 2560 + m * 1024}")

    def mainloop(nt, tag):
        S_SLOT2, S_CNT = 43, 44
        a(f"""
v_mov_b32 v{VA}, v{VA0}
v_mov_b32 v{VB}, v{VB0}
s_mov_b32 s{S_SLOT2}, 0
s_mov_b32 s{S_CNT}, 0
s_barrier""")
        a.stamp(2)
        for s in range(3):
            reads(s, nt)
        a(f".p2align 6\n{name}_loop_{tag}:")
        for s in range(8):
            b = BUF + 12 * (s % 4)
            if s == 5:
                a(f"""
s_add_u32 s{S_SLOT2}, s{S_SLOT2}, {SLOT}
s_cmp_eq_u32 s{S_SLOT2}, {SLOT * NSLOT}
s_cselect_b32 s{S_SLOT2}, 0, s{S_SLOT2}
v_add_u32 v{VA}, s{S_SLOT2}, v{VA0}
v_add_u32 v{VB}, s{S_SLOT2}, v{VB0}
s_barrier""")
            reads(s + 3, nt)
            a(f"s_waitcnt lgkmcnt({3 * (nt + 1)})")
            for m in range(nt):
                a(mfma(ACC[m], b + 4 * m, b + 8, ACC[m]))
        a(f"""
s_add_u32 s{S_CNT}, s{S_CNT}, 1
s_cmp_lt_u32 s{S_CNT}, {NC}
s_cbranch_scc1 {name}_loop_{tag}
s_waitcnt vmcnt(0) lgkmcnt(0)
s_nop 7
s_nop 3""")
        a.stamp(3)

    def add_res(nreg):
        for j in range(nreg // 2):
            r, t = ACC[0] + 2 * j, 12 + 2 * (j % 2)
            a(f"""
v_lshlrev_b32 v{t}, 16, v{RES + j}
v_and_b32 v{t + 1}, 0xffff0000, v{RES + j}
v_pk_add_f32 v[{r}:{r + 1}], v[{r}:{r + 1}], v[{t}:{t + 1}]""")

    def pack(nreg):
        for j in range(nreg // 2):
            a(f"v_cvt_pk_bf16_f32 v{BUF + j}, v{ACC[0] + 2 * j}, v{ACC[0] + 2 * j + 1}")

    def stats(nreg):
        a(f"""
v_pk_mul_f32 v[12:13], v[{ACC[0]}:{ACC[0] + 1}], v[{ACC[0]}:{ACC[0] + 1}]
v_mov_b32 v14, v{ACC[0]}
v_mov_b32 v15, v{ACC[0] + 1}""")
        for j in range(1, nreg // 2):
            r = ACC[0] + 2 * j
            a(f"v_pk_fma_f32 v[12:13], v[{r}:{r + 1}], v[{r}:{r + 1}], v[12:13]")
            a(f"v_pk_add_f32 v[14:15], v[14:15], v[{r}:{r + 1}]")
        a(f"""
v_add_f32 v11, v12, v13
v_add_f32 v10, v14, v15""")
        a.half_sum(10, 12)
        a.half_sum(11, 12)

    def epilogue(nreg):
        add_res(nreg)
        pack(nreg)
        if which == 3:
            a(f"""
s_mul_i32 s37, s{S_TT}, 40
s_mul_i32 s36, s{S_CB}, 5
s_add_u32 s37, s37, s36
s_lshl_b32 s36, s{S_WM}, 2
s_add_u32 s37, s37, s36
s_lshl_b32 s37, s37, 10
s_add_u32 s37, s37, {HF}""")
            for j in range(nreg // 8):
                a(f"buffer_store_dwordx4 {vr(BUF + 4 * j, 4)}, v{VL16}, s[{WS}:{WS + 3}], s37 offen offset:{1024 * j}")
            stats(nreg)
            a(f"""
s_lshl_b32 s36, s{S_WN}, 8
s_add_u32 s36, s36, {LDS_RED}
v_lshl_add_u32 v12, v{TOK}, 3, s36""")
            if nreg == 8:
                a("ds_write_b64 v12, v[10:11]\ns_waitcnt lgkmcnt(0)\ns_barrier")
            else:
                a(f"""
s_lshl_b32 s36, s{S_TT}, 11
s_lshl_b32 s37, s{S_CB}, 3
s_add_u32 s36, s36, s37
s_add_u32 s36, s36, {ST}
v_lshlrev_b32 v13, 6, v{TOK}
v_lshl_add_u32 v13, v{H}, 30, v13
s_barrier
ds_read_b64 v[14:15], v12
s_waitcnt lgkmcnt(0)
v_pk_add_f32 v[10:11], v[10:11], v[14:15]
buffer_store_dwordx2 v[10:11], v13, s[{WS}:{WS + 3}], s36 offen""")
        else:
            a(f"""
s_lshl_b32 s36, s{S_TT}, 5
v_add_u32 v10, s36, v{TOK}
v_mul_u32_u24 v10, 1280, v10
v_lshl_add_u32 v10, v{H}, 4, v10
s_mul_i32 s37, s{S_CB}, 160
s_lshl_b32 s36, s{S_WM}, 7
s_add_u32 s37, s37, s36""")
            for j in range(nreg // 8):
                r = BUF + 4 * j
                a(f"""
v_permlane32_swap_b32 v{r}, v{r + 2}
v_permlane32_swap_b32 v{r + 1}, v{r + 3}
buffer_store_dwordx4 {vr(r, 4)}, v10, s[{EX}:{EX + 3}], s37 offen offset:{32 * j}""")
        if common.STAMPS:
            a("s_waitcnt vmcnt(0)")
        a.stamp(4)
        a.stamp(5, True)
        a.stamp_out(2 if which == 3 else 4, S_W, 6)
        if common.STAMPS and which == 5:
            a(f"""
s_cmp_lg_u32 s2, 0
s_cbranch_scc1 {name}_nodbg{nreg}
s_cmp_lg_u32 s{S_W}, 0
s_cbranch_scc1 {name}_nodbg{nreg}
s_load_dwordx2 s[14:15], s[0:1], 80
s_waitcnt vmcnt(0) lgkmcnt(0)
s_sub_u32 s14, s14, 0
s_subb_u32 s15, s15, 0
s_mov_b32 s8, s14
s_mov_b32 s9, s15
s_mov_b32 s10, 256
s_mov_b32 s11, {SRD3}
v_lshrrev_b32 v4, 1, v2
v_and_b32 v5, 1, v2
v_lshlrev_b32 v4, 17, v4
v_lshl_add_u32 v4, v5, 4, v4
v_add_u32 v4, {DIAG + 4}, v4
v_lshlrev_b32 v5, 2, v2
s_mov_b32 exec_lo, 0x3ff
s_mov_b32 exec_hi, 0
buffer_load_dword v6, v4, s[92:95], 0 offen sc1
s_waitcnt vmcnt(0)
buffer_store_dword v6, v5, s[8:11], 0 offen""")
            if common.PROBE and nreg == 32:
                i, j, mult = common.PROBE
                a(f"""
v_readlane_b32 s20, v6, {i}
v_readlane_b32 s21, v6, {j}
s_memrealtime s[22:23]
s_waitcnt lgkmcnt(0)
s_sub_u32 s20, s21, s20
s_min_u32 s20, s20, 20000
s_mul_i32 s20, s20, {mult}
{name}_spin:
s_memrealtime s[24:25]
s_waitcnt lgkmcnt(0)
s_sub_u32 s24, s24, s22
s_cmp_lt_u32 s24, s20
s_cbranch_scc1 {name}_spin""")
            a(f"{name}_nodbg{nreg}:")
        a("s_endpgm")

    a(f"v_add_u32 v{VA0}, 16384, v{VL16}")
    res_loads(4)
    mainloop(2, "a")
    epilogue(32)
    a(f"""
{name}_rem:
v_and_b32 v11, 15, v{LANE}
v_lshl_add_u32 v11, v{H}, 4, v11
v_lshlrev_b32 v11, 4, v11
v_add_u32 v{VA0}, {16384 + 2048}, v11""")
    res_loads(1)
    mainloop(1, "b")
    epilogue(8)
    a(f"{name}_end:")
    a("s_endpgm")
    a.end(name, 112)
    return a.text(), 512, K35_LDS
```

```python
import sys
from common import *
from k1 import gen_k1
from k2 import gen_k2
from k35 import gen_k35
from k4 import gen_k4

HEADER = open("cdna_kernels/" + NAME + ".s.ref").read().split("; Override launch geometry")[0]

def build(kernels, out):
    txt = HEADER
    for name, (body, block, lds) in kernels:
        txt += f"; @launch kernel={name} grid=(256,1,1) block=({block},1,1) lds={lds}\n"
    txt += '.amdgcn_target "amdgcn-amd-amdhsa--gfx950"\n'
    seen = set()
    for name, (body, block, lds) in kernels:
        if name not in seen:
            txt += body
            seen.add(name)
    open(out, "w").write(txt)

if __name__ == "__main__":
    import common
    if "--diag" in sys.argv:
        sys.argv.remove("--diag")
        common.STAMPS = True
    if "--probe" in sys.argv:
        i = sys.argv.index("--probe")
        common.PROBE = tuple(int(x) for x in sys.argv[i + 1].split(","))
        del sys.argv[i:i + 2]
    ks = [("qkv_kernel", gen_k1("qkv_kernel")),
          ("attn_kernel", gen_k2("attn_kernel")),
          ("oproj_kernel", gen_k35("oproj_kernel", 3)),
          ("ffn1_kernel", gen_k4("ffn1_kernel")),
          ("ffn2_kernel", gen_k35("ffn2_kernel", 5))]
    build(ks, sys.argv[1] if len(sys.argv) > 1 else "cdna_kernels/" + NAME + ".s")
```

```python
from mcommon import *
import mcommon

LDS_XN = 0
LDS_WR = 81920
LDS_KVW = 131072
LDS_Q = 98304
LDS_PS = 49152
PS_REG = 214
QSCALE = 20 ** -0.5 * LOG2E


def weight_touch(a):
    a(f"""
s_lshl_b32 s60, s2, 2
s_add_u32 s60, s60, s{S_P}
s_mul_i32 s61, s60, {15 * 128}
v_lshlrev_b32 v10, 7, v{LANE}
v_add_u32 v15, s61, v10
s_mul_i32 s61, s60, {25 * 32}
v_lshlrev_b32 v14, 7, v{LANE}
v_add_u32 v14, s61, v14
v_and_b32 v14, 0xffffff80, v14
s_mov_b64 exec, 0x7fff
global_load_dword v201, v15, s[{P_W1}:{P_W1 + 1}]
global_load_dword v202, v15, s[{P_W3}:{P_W3 + 1}]
global_load_dword v203, v15, s[{P_W2}:{P_W2 + 1}]
s_mov_b64 exec, 0x7f
global_load_dword v204, v14, s[{P_WO}:{P_WO + 1}]
s_mov_b64 exec, -1""")


def ps_loads(a, dst):
    a(f"""
v_lshrrev_b32 v12, 2, v{LANE}
v_and_b32 v13, 3, v{LANE}
s_cmp_ge_u32 s{S_IDX}, 96
s_cbranch_scc1 L_ps_ld_b
s_cmp_ge_u32 s{S_IDX}, 48
s_cselect_b32 s60, s{P_W3}, s{P_W1}
s_cselect_b32 s61, s{P_W3 + 1}, s{P_W1 + 1}
s_cselect_b32 s62, 48, 0
s_mov_b32 s{KS + 2}, {640 * 3072}
s_sub_u32 s62, s{S_IDX}, s62
s_lshl_b32 s62, s62, 6
s_mul_i32 s63, s{S_P}, {32 * 3072}
s_add_u32 s63, s62, s63
s_mov_b32 s65, {16 * 3072}
s_mov_b32 s66, {128 * 3072}
s_mov_b32 s67, 5
v_mul_u32_u24 v12, 3072, v12
s_branch L_ps_ld_go
L_ps_ld_b:
s_sub_u32 s62, s{S_IDX}, 96
s_and_b32 s63, s62, 1
s_lshr_b32 s62, s62, 1
s_mul_i32 s63, s63, 640
s_lshl_b32 s64, s{S_P}, 6
s_add_u32 s63, s63, s64
s_mov_b32 s66, 256
s_cmp_lt_u32 s{S_P}, 2
s_cselect_b32 s67, 3, 2
s_cmp_ge_u32 s{S_IDX}, 232
s_cselect_b32 s67, 0, s67
s_cmp_ge_u32 s62, 20
s_cbranch_scc1 L_ps_ld_w2
s_mov_b32 s60, s{P_WO}
s_mov_b32 s61, s{P_WO + 1}
s_mov_b32 s{KS + 2}, {640 * 1280}
v_lshrrev_b32 v14, 2, v12
v_and_b32 v12, 3, v12
s_cmp_ge_u32 s62, 16
s_cbranch_scc1 L_ps_ld_rem
s_mul_i32 s64, s62, 40
s_mov_b32 s65, {8 * 1280}
v_lshrrev_b32 v15, 1, v14
v_mul_u32_u24 v15, 20, v15
v_and_b32 v14, 1, v14
v_lshl_add_u32 v14, v14, 2, v15
v_add3_u32 v12, v14, v12, s64
s_branch L_ps_ld_rows
L_ps_ld_rem:
s_sub_u32 s64, s62, 16
s_mul_i32 s64, s64, 160
s_add_u32 s64, s64, 16
s_mov_b32 s65, {20 * 1280}
v_mul_u32_u24 v14, 40, v14
v_add3_u32 v12, v14, v12, s64
s_branch L_ps_ld_rows
L_ps_ld_w2:
s_mov_b32 s60, s{P_W2}
s_mov_b32 s61, s{P_W2 + 1}
s_mov_b32 s{KS + 2}, {1536 * 1280}
s_sub_u32 s64, s62, 20
s_lshl_b32 s64, s64, 5
s_mov_b32 s65, {16 * 1280}
v_add_u32 v12, s64, v12
L_ps_ld_rows:
v_mul_u32_u24 v12, 1280, v12
L_ps_ld_go:
s_mov_b32 s{KS}, s60
s_mov_b32 s{KS + 1}, s61
s_mov_b32 s{KS + 3}, {SRD3}
v_lshl_add_u32 v12, v13, 4, v12""")


def ps_issue(a, dst, jobs):
    for i in jobs:
        a(f"""
s_cmp_gt_u32 s67, {i}
s_cselect_b32 s64, s63, {OOB}
s_add_u32 s68, s64, s65
buffer_load_dwordx4 {vr(dst + 8 * i, 4)}, v12, s[{KS}:{KS + 3}], s64 offen
buffer_load_dwordx4 {vr(dst + 8 * i + 4, 4)}, v12, s[{KS}:{KS + 3}], s68 offen
s_add_u32 s63, s63, s66""")


def phase1(a):
    XR = 16
    T8, SUB = 62, 63
    a(f"""
s_cmp_ge_u32 s2, 256
s_cbranch_scc1 L_end
s_load_dwordx8 s[36:43], s[0:1], 0
s_load_dwordx4 s[56:59], s[0:1], 80
s_load_dwordx2 s[44:45], s[0:1], 32
s_load_dwordx8 s[48:55], s[0:1], 48
v_lshrrev_b32 v1, 6, v0
v_and_b32 v{LANE}, 63, v0
v_readfirstlane_b32 s{S_W}, v1
s_and_b32 s60, s2, 7
s_lshr_b32 s61, s2, 3
s_lshl_b32 s{S_RB}, s60, 2
s_and_b32 s62, s61, 3
s_add_u32 s{S_RB}, s{S_RB}, s62
s_lshr_b32 s{S_CB}, s61, 2
s_lshl_b32 s{S_IDX}, s60, 5
s_add_u32 s{S_IDX}, s{S_IDX}, s61
s_lshr_b32 s{S_HALF}, s{S_W}, 2
s_and_b32 s{S_P}, s{S_W}, 3
s_lshl_b32 s{S_HEAD}, s{S_CB}, 2
s_add_u32 s{S_HEAD}, s{S_HEAD}, s{S_P}
s_and_b32 s62, s60, 1
s_lshl_b32 s62, s62, 3
s_and_b32 s63, s61, 7
s_add_u32 s{S_RB2}, s62, s63
s_lshr_b32 s62, s60, 1
s_lshl_b32 s62, s62, 2
s_lshr_b32 s63, s61, 3
s_add_u32 s{S_FB}, s62, s63
s_lshl_b32 s60, s{S_RB}, 6
s_lshl_b32 s61, s{S_W}, 3
s_add_u32 s60, s60, s61
v_lshlrev_b32 v{VL16}, 4, v{LANE}
v_lshrrev_b32 v{T8}, 3, v{LANE}
v_and_b32 v{SUB}, 7, v{LANE}
v_add_u32 v5, s60, v{T8}
v_mul_u32_u24 v5, 1280, v5
v_lshl_add_u32 v5, v{SUB}, 4, v5
s_waitcnt lgkmcnt(0)""")
    a.stamp(0)
    a.stamp(1, True)
    a.srd(XS, P_X, 2048 * 1280)
    for i in range(10):
        a(f"buffer_load_dwordx4 {vr(XR + 4 * i, 4)}, v5, s[{XS}:{XS + 3}], 0 offen offset:{128 * i}")
    a.srd(TS, P_WQ, 640 * 1280)
    touch = mcommon.OPT.get("touch", "0") == "1"
    if touch:
        a(f"""
s_lshr_b32 s60, s2, 3
s_lshl_b32 s60, s60, 3
s_add_u32 s60, s60, s{S_W}
s_mul_i32 s60, s60, {25 * 128}
v_lshlrev_b32 v6, 7, v{LANE}
s_mov_b32 exec_lo, 0x1ffffff
s_mov_b32 exec_hi, 0
buffer_load_dword v200, v6, s[{TS}:{TS + 3}], s60 offen
s_mov_b64 exec, -1""")
    nt = 1 if touch else 0
    a(f"""
s_cmp_eq_u32 s{S_CB}, 1
s_cselect_b32 s{P_WK}, s{P_WV}, s{P_WK}
s_cselect_b32 s{P_WK + 1}, s{P_WV + 1}, s{P_WK + 1}""")
    a.srd(KS, P_WK, 640 * 40)
    a.srd(WS, P_WS, WS_USED)
    a.srd(DS, P_DBG, 256)

    def w_voffs(sbase):
        for i in range(3):
            a(f"""
v_add_u32 v6, s{sbase}, v{LANE}
v_add_u32 v6, {64 * i}, v6
v_mul_u32_u24 v7, 43691, v6
v_lshrrev_b32 v7, 19, v7
v_mul_u32_u24 v8, 12, v7
v_sub_u32 v8, v6, v8
v_mul_u32_u24 v7, 1280, v7
v_lshl_add_u32 v{9 + i}, v8, 4, v7""")

    a(f"""
s_mul_i32 s61, s{S_W}, 192
s_mul_i32 s32, s{S_CB}, 160
s_mul_i32 s63, s{S_W}, 3072
s_add_u32 s63, s63, {LDS_WR}
s_add_u32 s64, s32, {128 * 1280}""")
    w_voffs(61)
    for dc in range(2):
        for i in range(3):
            a(f"s_add_u32 s65, s63, {dc * 24576 + i * 1024}")
            a.dma(9 + i, TS, f"s{32 if dc == 0 else 64}", "s65")
    a(f"""
s_lshl_b32 s66, s{S_W}, 12
s_add_u32 s65, s66, {LDS_KVW}
s_cmp_ge_u32 s{S_CB}, 2
s_cselect_b32 s66, {OOB}, s66""")
    for i in range(4):
        a.dma(VL16, KS, "s66", "s65" if i == 0 else None, imm=1024 * i)
    SA, SB, QA, QB = 56, 57, 58, 59
    a(f"""
v_mov_b32 v{SA}, 0
v_mov_b32 v{SB}, 0
v_mov_b32 v{QA}, 0
v_mov_b32 v{QB}, 0
s_mov_b32 s67, 0x3f803f80""")
    for i in range(10):
        a(f"s_waitcnt vmcnt({19 + nt - i})")
        if i == 0:
            a.stamp(2)
        for j in range(4):
            r = XR + 4 * i + j
            s, q = (SA, QA) if j % 2 == 0 else (SB, QB)
            a(f"v_dot2_f32_bf16 v{s}, v{r}, s67, v{s}")
            a(f"v_dot2_f32_bf16 v{q}, v{r}, v{r}, v{q}")
    a.stamp(3)
    a(f"""
s_and_b32 s60, s{S_IDX}, 31
s_lshl_b32 s60, s60, 3
s_add_u32 s60, s60, s{S_W}
s_cmp_lg_u32 s60, {31 * 8 + 4}
s_cbranch_scc1 L_p1_noclear
s_lshr_b32 s61, s{S_IDX}, 5
s_mul_i32 s60, s61, {FLG_BYTES // 8}
s_add_u32 s60, s60, {FLG}
s_add_u32 s62, s60, 4096
v_mov_b32 v64, 0
v_mov_b32 v65, 0
v_mov_b32 v66, 0
v_mov_b32 v67, 0""")
    for i in range(6):
        a(f"buffer_store_dwordx4 v[64:67], v{VL16}, s[{WS}:{WS + 3}], s{60 if i < 4 else 62} offen offset:{1024 * (i % 4)} sc1")
    a("s_lshl_b32 s61, s61, 2\ns_waitcnt vmcnt(0)")
    a.set_flag(64, 65, DS, "s61")
    a("L_p1_noclear:")
    WREG, PSR = 64, PS_REG
    a(f"""
s_nop 2
v_add_f32 v{SA}, v{SA}, v{SB}
v_add_f32 v{QA}, v{QA}, v{QB}""")
    for m in ("quad_perm:[1,0,3,2]", "quad_perm:[2,3,0,1]", "row_half_mirror"):
        a(f"""
s_nop 1
v_add_f32_dpp v{SA}, v{SA}, v{SA} {m} row_mask:0xf bank_mask:0xf
v_add_f32_dpp v{QA}, v{QA}, v{QA} {m} row_mask:0xf bank_mask:0xf""")
    RS, NB = 60, 61
    a(f"""
s_nop 0
v_mul_f32 v{SA}, {f32(1 / 640)}, v{SA}
v_mul_f32 v{QA}, {f32(1 / 640)}, v{QA}
v_fma_f32 v{QA}, -v{SA}, v{SA}, v{QA}
v_max_f32 v{QA}, 0, v{QA}
v_add_f32 v{QA}, {f32(1e-5)}, v{QA}
v_rsq_f32 v{RS}, v{QA}
s_mul_i32 s60, s{S_HALF}, 40960
s_lshl_b32 s61, s{S_P}, 7
s_add_u32 s60, s60, s61
v_mul_f32 v{NB}, v{SA}, v{RS}
v_sub_f32 v{NB}, 0, v{NB}
v_xor_b32 v6, v{T8}, v{SUB}
v_lshlrev_b32 v6, 4, v6
v_lshlrev_b32 v7, 9, v{SUB}
v_add3_u32 v13, v6, v7, s60""")
    for i in range(10):
        for j in range(4):
            r = XR + 4 * i + j
            t = 56 + 2 * (j % 2)
            a(f"""
v_lshlrev_b32 v{t}, 16, v{r}
v_and_b32 v{t + 1}, 0xffff0000, v{r}
v_pk_fma_f32 v[{t}:{t + 1}], v[{t}:{t + 1}], v[{RS}:{RS + 1}], v[{RS}:{RS + 1}] op_sel:[0,0,1] op_sel_hi:[1,0,1]
v_cvt_pk_bf16_f32 v{r}, v{t}, v{t + 1}""")
        a(f"ds_write_b128 v13, {vr(XR + 4 * i, 4)} offset:{4096 * i}")
    a.stamp(4)
    a(f"""
s_cmp_lt_u32 s{S_W}, 4
s_cbranch_scc1 L_p1_compute""")
    a(f"s_mul_i32 s61, s{S_P}, 192")
    w_voffs(61)
    seq = []

    def wload(c):
        a(f"s_add_u32 s69, s32, {c * 64 * 1280}")
        for i in range(3):
            a(f"buffer_load_dwordx4 {vr(WREG + 4 * (3 * (c - 4) + i), 4)}, v{9 + i}, s[{TS}:{TS + 3}], s69 offen")
            seq.append(c)

    def wait(c):
        last = max(i for i, x in enumerate(seq) if x == c)
        a(f"s_waitcnt vmcnt({len(seq) - 1 - last})")

    wload(4)
    wload(5)
    a(f"""
s_mul_i32 s60, s{S_P}, 3072
s_add_u32 s60, s60, {LDS_WR}
v_add_u32 v6, s60, v{VL16}
v_lshlrev_b32 v7, 2, v{LANE}
s_waitcnt vmcnt(6) lgkmcnt(0)
s_barrier""")
    for k in range(1, 10):
        a("s_barrier")
        c = k + 2
        if 4 <= c < 10:
            wait(c)
            for i in range(3):
                a(f"ds_write_b128 v6, {vr(WREG + 4 * (3 * (c - 4) + i), 4)} offset:{(c % 4) * 12288 + i * 1024}")
        if k + 5 < 10:
            wload(k + 5)
        if k == 3:
            a(f"buffer_load_dword v8, v7, s[{DS}:{DS + 3}], 0 offen sc1")
            seq.append("clr")
        if k == int(mcommon.OPT.get("wtouch", -1)):
            weight_touch(a)
            seq.extend(["touch"] * 4)
        if 4 <= c < 10:
            a("s_waitcnt lgkmcnt(0)")
    wait("clr")
    a(f"""
v_cmp_gt_u32 s[60:61], 8, v{LANE}
v_cmp_ne_u32 vcc, 1, v8
s_nop 4
s_and_b64 s[60:61], vcc, s[60:61]
s_cbranch_scc0 L_p1_x1""")
    a.poll(7, 8, DS, "0", 8)
    a("""
L_p1_x1:
s_barrier
s_branch L_p1_x2""")
    a("L_p1_compute:")
    BA = 4
    WA, KA = 8, 9
    H, TOK = 10, 11
    ACC0, ACC1 = 16, 32
    BUF = 48
    S_WN, S_WM = 33, 34
    a(f"""
s_and_b32 s{S_WN}, s{S_W}, 1
s_lshr_b32 s{S_WM}, s{S_W}, 1
v_lshrrev_b32 v{H}, 5, v{LANE}
v_and_b32 v{TOK}, 31, v{LANE}
s_mul_i32 s60, s{S_WN}, 40960
v_and_b32 v12, 24, v{TOK}
v_and_b32 v13, 7, v{TOK}
v_lshlrev_b32 v14, 9, v{H}""")
    for q in range(4):
        a(f"""
v_or_b32 v15, {2 * q}, v{H}
v_xor_b32 v15, v15, v13
v_or_b32 v15, v15, v12
v_lshl_add_u32 v15, v15, 4, v14
v_add_u32 v15, s60, v15
v_add_u32 v{BA + q}, {1024 * q}, v15""")
    a(f"""
v_bfe_u32 v12, v{LANE}, 2, 2
v_lshl_add_u32 v12, v{H}, 3, v12
v_bfe_u32 v13, v{LANE}, 4, 1
v_lshlrev_b32 v13, 5, v13
v_and_b32 v14, 3, v{LANE}
v_lshl_add_u32 v13, v14, 3, v13
v_mul_u32_u24 v14, 192, v12
v_add_u32 v14, v14, v13
s_lshl_b32 s60, s{S_WM}, 7
s_add_u32 s60, s60, {LDS_WR}
v_add_u32 v{WA}, s60, v14
v_mul_u32_u24 v14, 40, v12
v_add_u32 v14, v14, v13
v_add_u32 v{KA}, {LDS_KVW}, v14
s_waitcnt vmcnt(7)""")
    a.stamp(27)
    a("s_waitcnt vmcnt(4)")
    a.stamp(28)
    a("s_waitcnt vmcnt(0) lgkmcnt(0)")
    a.stamp(29)
    a("s_barrier")
    a.stamp(5)
    a(f"""
s_cmp_eq_u32 s{S_WM}, 0
s_cbranch_scc1 L_p1_m01
s_cmp_eq_u32 s{S_CB}, 0
s_cbranch_scc1 L_p1_mk
s_cmp_eq_u32 s{S_CB}, 1
s_cbranch_scc1 L_p1_mv
s_branch L_p1_mq""")

    def reads(s, kind):
        b = BUF + 12 * (s % 4)
        c, sg = divmod(s, 4)
        wo = (c % 4) * 12288 + sg * 3072
        a(f"ds_read_b128 {vr(b + 8, 4)}, v{BA + s % 4} offset:{c * 4096}")
        a(f"ds_read_b64_tr_b16 {vr(b, 2)}, v{WA} offset:{wo}")
        a(f"ds_read_b64_tr_b16 {vr(b + 2, 2)}, v{WA} offset:{wo + 768}")
        n = 3
        if kind == "m01":
            a(f"ds_read_b64_tr_b16 {vr(b + 4, 2)}, v{WA} offset:{wo + 64}")
            a(f"ds_read_b64_tr_b16 {vr(b + 6, 2)}, v{WA} offset:{wo + 64 + 768}")
            n = 5
        elif kind in ("k", "v"):
            a(f"ds_read_b64_tr_b16 {vr(b + 4, 2)}, v{KA} offset:{s * 640}")
            a(f"ds_read_b64_tr_b16 {vr(b + 6, 2)}, v{KA} offset:{s * 640 + 160}")
            n = 5
        return n

    def mainloop(kind):
        n = reads(0, kind)
        reads(1, kind)
        for s in range(40):
            b = BUF + 12 * (s % 4)
            if s + 2 < 40:
                if (s + 2) % 4 == 0:
                    a("s_barrier")
                reads(s + 2, kind)
                a(f"s_waitcnt lgkmcnt({2 * n})")
            else:
                a(f"s_waitcnt lgkmcnt({n * (39 - s)})")
            c0, c1 = ("0", "0") if s == 0 else (ACC0, ACC1)
            if kind in ("m01", "k"):
                a(mfma(ACC1, b + 4, b + 8, c1))
            elif kind == "v":
                a(mfma(ACC1, b + 8, b + 4, c1))
            a(mfma(ACC0, b, b + 8, c0))
        a("s_nop 7\ns_nop 7")
        a.stamp(6)

    def qoff(cg):
        return (cg // 5) * 3072 + [0, 512, 8, 520, 1024][cg % 5]

    def qwrite(tiles):
        a(f"""
s_barrier
s_mul_i32 s60, s{S_WN}, 1536
v_lshl_add_u32 v12, v{TOK}, 4, s60
v_xor_b32 v13, 1, v{H}
s_mov_b32 s62, {f32(QSCALE)}""")
        k = 0
        for acc, m, groups in tiles:
            for g in range(groups):
                lo, up = qoff(8 * m + 2 * g), qoff(8 * m + 2 * g + 1)
                base = min(lo, up)
                sel = H if up > lo else 13
                r = acc + 4 * g
                t = 4 + 2 * (k % 2)
                k += 1
                a(f"""
s_mov_b32 s61, {abs(up - lo)}
v_mul_f32 v{r}, s62, v{r}
v_mul_f32 v{r + 1}, s62, v{r + 1}
v_mul_f32 v{r + 2}, s62, v{r + 2}
v_mul_f32 v{r + 3}, s62, v{r + 3}
v_mad_u32_u24 v14, v{sel}, s61, v12
v_add_u32 v14, {LDS_Q + base}, v14
v_cvt_pk_bf16_f32 v{t}, v{r}, v{r + 1}
v_cvt_pk_bf16_f32 v{t + 1}, v{r + 2}, v{r + 3}
ds_write_b64 v14, {vr(t, 2)}""")

    def kt_base():
        a(f"""
s_lshl_b32 s64, s{S_RB}, 1
s_add_u32 s64, s64, s{S_WN}
s_mul_i32 s65, s64, 3072
s_add_u32 s65, s65, {KV}
s_lshl_b32 s64, s64, 2
s_add_u32 s64, s64, {KN}""")

    def kv_flag():
        a("s_waitcnt vmcnt(0)")
        a.stamp(7)

    a("L_p1_m01:")
    mainloop("m01")
    qwrite([(ACC0, 0, 4), (ACC1, 1, 4)])
    a("s_branch L_p1_x2")

    a("L_p1_mq:")
    mainloop("q")
    qwrite([(ACC0, 2, 2)])
    a("s_branch L_p1_x2")

    a("L_p1_mk:")
    mainloop("k")
    kt_base()
    for j in range(6):
        a(f"v_cvt_pk_bf16_f32 v{48 + j}, v{ACC1 + 2 * j}, v{ACC1 + 2 * j + 1}")
    a(f"""
buffer_store_dwordx4 v[48:51], v{VL16}, s[{WS}:{WS + 3}], s65 offen sc1
v_lshrrev_b32 v12, 4, v{TOK}
v_lshlrev_b32 v12, 9, v12
v_and_b32 v13, 15, v{TOK}
v_lshl_add_u32 v12, v13, 3, v12
v_add_u32 v12, {1024 + 336}, v12
v_lshl_add_u32 v12, v{H}, 30, v12
v_mul_f32 v56, v{ACC1 + 8}, v{ACC1 + 8}
buffer_store_dwordx2 v[52:53], v12, s[{WS}:{WS + 3}], s65 offen sc1""")
    for j in range(9, 12):
        a(f"v_fmac_f32 v56, v{ACC1 + j}, v{ACC1 + j}")
    a(f"""
v_cmp_eq_u32 s[66:67], 0, v{H}
s_nop 1
v_cndmask_b32 v56, 0, v56, s[66:67]""")
    for j in range(8):
        a(f"v_fmac_f32 v56, v{ACC1 + j}, v{ACC1 + j}")
    a.half_sum(56, 57)
    a.wave_max(56)
    a(f"""
v_mov_b32 v12, 0
s_mov_b32 exec_lo, 0
s_mov_b32 exec_hi, 0x80000000
buffer_store_dword v56, v12, s[{WS}:{WS + 3}], s64 offen sc1
s_mov_b64 exec, -1""")
    qwrite([(ACC0, 2, 2)])
    kv_flag()
    a("s_branch L_p1_x2")

    a("L_p1_mv:")
    mainloop("v")
    kt_base()
    a(f"""
v_cmp_gt_u32 s[66:67], 20, v{TOK}
v_cmp_eq_u32 s[68:69], 20, v{TOK}
v_mov_b32 v57, 0x3f803f80""")
    for j in range(8):
        a(f"v_cvt_pk_bf16_f32 v{48 + j}, v{ACC1 + 2 * j}, v{ACC1 + 2 * j + 1}")
    a(f"v_cndmask_b32 v57, 0, v57, s[68:69]")
    for j in range(8):
        a(f"v_cndmask_b32 v{48 + j}, v57, v{48 + j}, s[66:67]")
    a(f"""
buffer_store_dwordx4 v[52:55], v{VL16}, s[{WS}:{WS + 3}], s65 offen offset:2048 sc1
s_mov_b32 exec_lo, 0x001fffff
s_mov_b32 exec_hi, 0x001fffff
buffer_store_dwordx4 v[48:51], v{VL16}, s[{WS}:{WS + 3}], s65 offen offset:1024 sc1
s_mov_b64 exec, -1
v_max3_f32 v56, |v{ACC1}|, |v{ACC1 + 1}|, |v{ACC1 + 2}|""")
    for j in range(3, 15, 2):
        a(f"v_max3_f32 v56, |v{ACC1 + j}|, |v{ACC1 + j + 1}|, v56")
    a(f"""
v_max_f32 v56, |v{ACC1 + 15}|, v56
v_cndmask_b32 v56, 0, v56, s[66:67]""")
    a.wave_max(56)
    a(f"""
v_mov_b32 v12, 0
s_mov_b32 exec_lo, 0
s_mov_b32 exec_hi, 0x80000000
buffer_store_dword v56, v12, s[{WS}:{WS + 3}], s64 offen offset:256 sc1
s_mov_b64 exec, -1""")
    qwrite([(ACC0, 2, 2)])
    kv_flag()
    a("""
L_p1_x2:
s_waitcnt lgkmcnt(0)
s_barrier""")
    a.stamp(8)
```

```python
from mcommon import *
import mcommon
from m1 import LDS_Q, LDS_PS, PS_REG, ps_loads, ps_issue, weight_touch

SLOT_KV = 24576
KV_SLOT = [0, SLOT_KV, 90112, 90112 + SLOT_KV, 0, SLOT_KV, 0, SLOT_KV]
X_OFF = 90112
LDS_WO = 49152
LDS_MISC = 151552
SAFE_BOUND = 80.0 / 1.03
SAFE_V = 2.0 ** 30
RES = 230

VA, VV0, VK4, H, TOK = 4, 5, 6, 8, 9
VAX, VV0X, VK4X = 28, 29, 30
QA, QB = 16, 22
S0, S1 = 32, 48
P = 64
OA, OB = 72, 88
CA, CB = 104, 120
KB = [136, 142]
VB = [148, 156]
T = 164
S_SRC, S_DST, S_PSB = 32, 33, 34


def phase2(a, tail):
    ps_t = int(mcommon.OPT.get("ps_t", 2))
    a(f"""
s_cmp_lg_u32 s{S_W}, 0
s_cbranch_scc1 L_kv_pub
s_cmp_ge_u32 s{S_CB}, 2
s_cbranch_scc1 L_kv_pub
s_lshl_b32 s61, s{S_RB}, 1
s_add_u32 s61, s61, s{S_CB}
s_lshl_b32 s61, s61, 7
s_add_u32 s61, s61, {KVFLG}""")
    a.set_flag(12, 13, WS, "s61")
    a("L_kv_pub:")
    a(f"""
v_lshrrev_b32 v{H}, 5, v{LANE}
v_and_b32 v{TOK}, 31, v{LANE}
s_mul_i32 s60, s{S_P}, 3072
s_mul_i32 s61, s{S_HALF}, 1536
s_add_u32 s62, s60, s61
s_add_u32 s62, s62, {LDS_Q}
s_sub_u32 s63, s60, s61
s_add_u32 s63, s63, {LDS_Q + 1536}
v_add_u32 v10, s62, v{VL16}
v_add_u32 v11, s63, v{VL16}
v_lshlrev_b32 v12, 4, v{TOK}
v_add_u32 v13, s63, v12
v_add_u32 v12, s62, v12
ds_read_b128 {vr(QA, 4)}, v10
ds_read_b64 {vr(QA + 4, 2)}, v12 offset:1024
ds_read_b128 {vr(QB, 4)}, v11
ds_read_b64 {vr(QB + 4, 2)}, v13 offset:1024""")
    a(f"""
s_mul_i32 s{S_PSB}, s{S_P}, 10240
s_add_u32 s{S_PSB}, s{S_PSB}, {LDS_PS}""")
    a(f"""
s_mul_i32 s60, s{S_HALF}, 12288
v_add_u32 v{VA}, s60, v{VL16}
v_cmp_lt_u32 s[62:63], 20, v{TOK}
v_add_u32 v14, 1024, v{VA}
v_cmp_eq_u32 s[64:65], 0, v{H}
v_cndmask_b32 v{VV0}, v{VA}, v14, s[62:63]
v_lshrrev_b32 v14, 4, v{TOK}
v_lshlrev_b32 v14, 9, v14
v_and_b32 v15, 15, v{TOK}
v_lshl_add_u32 v14, v15, 3, v14
s_add_u32 s61, s60, {1024 + 336}
v_add_u32 v{VK4}, s61, v14
v_add_u32 v{VAX}, {X_OFF}, v{VA}
v_add_u32 v{VV0X}, {X_OFF}, v{VV0}
v_add_u32 v{VK4X}, {X_OFF}, v{VK4}
s_mul_i32 s{S_DST}, s{S_P}, 3072
s_add_u32 s{S_SRC}, s{S_DST}, {KV}""")
    for r in list(range(OA, OA + 32)) + list(range(CA, CA + 32)):
        a(f"v_mov_b32 v{r}, 0")
    a("s_waitcnt lgkmcnt(0)")
    for r in (QA + 4, QA + 5, QB + 4, QB + 5):
        a(f"v_cndmask_b32 v{r}, 0, v{r}, s[64:65]")
    a("v_mov_b32 v14, 0\nv_mov_b32 v15, 0")
    for j in range(6):
        a(f"v_dot2_f32_bf16 v14, v{QA + j}, v{QA + j}, v14")
        a(f"v_dot2_f32_bf16 v15, v{QB + j}, v{QB + j}, v15")
    a(f"v_lshlrev_b32 v11, 2, v{LANE}\ns_nop 1")
    a.half_sum(14, T)
    a.half_sum(15, T)
    a(f"""
v_max_f32 v14, v14, v15""")
    if ps_t < 0:
        a(f"s_cmp_ge_u32 s{S_W}, 4\ns_cbranch_scc1 L_ps_store\nL_ps_back:")
    a(f"""
s_cmp_lg_u32 s{S_W}, 0
s_cbranch_scc1 L_kv_ready
v_lshlrev_b32 v12, 7, v{LANE}
s_mov_b32 s61, {KVFLG}""")
    a.poll(12, T, WS, "s61", 64)
    a(f"""
L_kv_ready:
s_cmp_lt_u32 s{S_W}, 4
s_cbranch_scc1 L_ps_setup_done""")
    ps_loads(a, PS_REG)
    a("""
L_ps_setup_done:
s_barrier""")
    a.stamp(9)

    def stage_dma(t, guard=True):
        skip = a.fresh("kvdma")
        if guard:
            a(f"s_cmp_ge_u32 s{S_W}, 4\ns_cbranch_scc1 {skip}")
        for hf in range(2):
            a(f"s_add_u32 s60, s{S_DST}, {KV_SLOT[t] + hf * 12288}")
            a(f"s_add_u32 s61, s{S_SRC}, {t * 12288 + hf * 32 * 3072}")
            for i in range(3):
                a.dma(VL16, WS, "s61", "s60" if i == 0 else None, imm=1024 * i, aux="sc1")
        a(f"{skip}:")

    def tile_reads(buf, off):
        va, vv, vk = (VA, VV0, VK4) if off < X_OFF else (VAX, VV0X, VK4X)
        off = off if off < X_OFF else off - X_OFF
        return [f"ds_read_b128 {vr(KB[buf], 4)}, v{va} offset:{off}",
                f"ds_read_b64 {vr(KB[buf] + 4, 2)}, v{vk} offset:{off}",
                f"ds_read_b128 {vr(VB[buf], 4)}, v{vv} offset:{off + 1024}",
                f"ds_read_b128 {vr(VB[buf] + 4, 4)}, v{va} offset:{off + 2048}"]

    a(f"""
s_lshl_b32 s69, s{S_P}, 2
s_add_u32 s69, s69, {LDS_MISC}
v_mov_b32 v15, s69
s_cmp_ge_u32 s{S_W}, 4
s_cbranch_scc1 L_chk_done
s_mov_b32 s61, {KN}
buffer_load_dword v12, v11, s[{WS}:{WS + 3}], s61 offen sc1
buffer_load_dword v13, v11, s[{WS}:{WS + 3}], s61 offen offset:256 sc1""")
    stage_dma(0, False)
    a(f"""
v_mov_b32 v{T}, {f32(SAFE_BOUND ** 2)}
v_mov_b32 v{T + 1}, {f32(SAFE_V)}
s_waitcnt vmcnt(6)""")
    a.wave_max(12)
    a(f"""
v_cmp_nle_f32 s[66:67], v13, v{T + 1}
v_readlane_b32 s62, v12, 63
s_nop 1
v_mul_f32 v14, s62, v14
v_cmp_nle_f32 s[64:65], v14, v{T}
s_nop 3
s_or_b64 s[64:65], s[64:65], s[66:67]
s_cselect_b32 s62, 1, 0
v_mov_b32 v14, s62
ds_write_b32 v15, v14
s_waitcnt vmcnt(0) lgkmcnt(0)
L_chk_done:
s_barrier
ds_read_b32 v14, v15""")
    for x in tile_reads(0, 0):
        a(x)
    a(f"s_cmp_ge_u32 s{S_W}, 4\ns_cbranch_scc1 L_kv_issued")
    for t in (1, 2, 3):
        stage_dma(t, False)
    a("L_kv_issued:")
    a(f"""
s_waitcnt lgkmcnt(4)
v_readfirstlane_b32 s62, v14
s_nop 3
s_cmp_lg_u32 s62, 0
s_cbranch_scc1 L_truemax
L_att_start:
s_waitcnt lgkmcnt(0)
{mfma(S0, KB[0], QA, CA)}
{mfma8(S0, KB[0] + 4, QA + 4, S0)}
s_nop 7
s_nop 3""")
    a.stamp(10)
    prio = mcommon.OPT.get("prio", "flip")

    def job(cur, nxt, q, c, kb, o_cur, v_cur, o_prev, v_prev, fill, first=False, last=False):
        def ex(g):
            for x in fill[g]:
                a(x)
        if not last:
            a(mfma(nxt, kb, q, c))
        for j in range(0, 4):
            a(f"v_exp_f32 v{cur + j}, v{cur + j}")
        if not first:
            a(mfma(o_prev, v_prev + 4, P + 4, o_prev))
        ex(0)
        for j in range(4, 8):
            a(f"v_exp_f32 v{cur + j}, v{cur + j}")
        if not last:
            a(mfma8(nxt, kb + 4, q + 4, nxt))
        else:
            a("s_nop 0")
        ex(1)
        for j in range(0, 4):
            a(f"v_cvt_pk_bf16_f32 v{P + j}, v{cur + 2 * j}, v{cur + 2 * j + 1}")
        for j in range(8, 12):
            a(f"v_exp_f32 v{cur + j}, v{cur + j}")
        a(mfma(o_cur, v_cur, P, o_cur))
        ex(2)
        for j in range(12, 16):
            a(f"v_exp_f32 v{cur + j}, v{cur + j}")
        ex(3)
        if not fill[3]:
            a("s_nop 0") if last else None
        for j in range(4, 8):
            a(f"v_cvt_pk_bf16_f32 v{P + j}, v{cur + 2 * j}, v{cur + 2 * j + 1}")

    def wo_prefetch(part, warm):
        lo, hi = part
        skip = a.fresh("wo")
        a(f"""
s_cmp_lt_u32 s{S_W}, 4
s_cbranch_scc1 {skip}
s_mul_i32 s60, s{S_P}, 25600
s_mul_i32 s61, s{S_CB}, 102400
s_add_u32 s61, s61, s60
s_add_u32 s61, s61, {WOF + lo * 1024}
s_add_u32 s60, s60, {LDS_WO + lo * 1024}""")
        for i in range(hi - lo):
            if i and i % 4 == 0:
                a("s_add_u32 s60, s60, 4096\ns_add_u32 s61, s61, 4096")
            a.dma(VL16, WS, "s61", "s60" if i % 4 == 0 else None, imm=1024 * (i % 4), aux="sc1")
        if warm:
            a(f"""
s_lshr_b32 s60, s{S_FB}, 2
s_mul_i32 s60, s60, {4 * 21 * 12288}
s_and_b32 s61, s{S_IDX}, 31
s_lshl_b32 s61, s61, 2
s_add_u32 s61, s61, s{S_P}
s_mul_i32 s61, s61, {63 * 128}
s_add_u32 s60, s60, s61
s_add_u32 s60, s60, {W13F}
v_lshlrev_b32 v10, 7, v{LANE}
buffer_load_dword v{T + 8}, v10, s[{WS}:{WS + 3}], s60 offen sc1""")
        a(f"{skip}:")

    for t in range(8):
        if t == ps_t:
            a(f"s_cmp_ge_u32 s{S_W}, 4\ns_cbranch_scc1 L_ps_store\nL_ps_back:")
        if t == ps_t + 1:
            a(f"s_cmp_ge_u32 s{S_W}, 6\ns_cbranch_scc1 L_fin_back\ns_cmp_ge_u32 s{S_W}, 4\ns_cbranch_scc1 L_ps_fin\nL_fin_back:")
        if t == ps_t + 2:
            skip = a.fresh("psf")
            a(f"""
s_cmp_lg_u32 s{S_W}, 4
s_cbranch_scc1 {skip}
s_lshl_b32 s60, s{S_IDX}, 2
s_add_u32 s60, s60, {PSFLG}""")
            a.set_flag(10, 12, WS, "s60")
            a(f"{skip}:")
        if t == ps_t + 3:
            a(f"s_cmp_ge_u32 s{S_W}, 4\ns_cbranch_scc1 L_ps_wait\nL_ps_ready:")
            wo_prefetch((0, 12), True)
        if t == ps_t + 4:
            wo_prefetch((12, 25), False)
        if t == 7:
            skip = a.fresh("res")
            a(f"""
s_cmp_ge_u32 s{S_W}, 4
s_cbranch_scc1 {skip}
s_lshl_b32 s60, s{S_RB}, 6
s_lshl_b32 s61, s{S_W}, 4
s_add_u32 s60, s60, s61
v_and_b32 v10, 15, v{LANE}
v_add_u32 v10, s60, v10
v_mul_u32_u24 v10, 1280, v10
v_lshrrev_b32 v12, 4, v{LANE}
v_lshl_add_u32 v10, v12, 3, v10
s_mul_i32 s60, s{S_CB}, 160""")
            for m in range(5):
                a(f"buffer_load_dwordx2 {vr(RES + 2 * m, 2)}, v10, s[{XS}:{XS + 3}], s60 offen offset:{32 * m}")
            a(f"{skip}:")
        for u in range(4):
            b, nb = u % 2, (u + 1) % 2
            first = t == 0 and u == 0
            last = t == 7 and u == 3
            fa = [[], [], [], []]
            if u < 3:
                r = tile_reads(nb, KV_SLOT[t] + (u + 1) * 3072)
                fa = [r[0:2], [r[2]], [r[3]], []]
            elif not last:
                r = tile_reads(nb, KV_SLOT[t + 1])
                if t == ps_t + 1:
                    wt = ["s_waitcnt vmcnt(0)"]
                else:
                    cnt = {0: 12, 1: 6}.get(t, 0)
                    wt = [f"s_cmp_ge_u32 s{S_W}, 4", f"s_cbranch_scc1 L_nw{t}", f"s_waitcnt vmcnt({cnt})", f"L_nw{t}:"]
                fa = [wt + ["s_barrier"] + r[0:2], [r[2]], [r[3]], []]
            if prio == "flip":
                a("s_setprio 1")
            job(S0, S1, QB, CB, KB[b], OA, VB[b], OB, VB[nb], fa, first=first)
            if prio == "flip":
                a("s_setprio 0")
            if not last:
                a("s_waitcnt lgkmcnt(0)")
            if u == 3 and t >= 2 and t + 2 < 8:
                stage_dma(t + 2)
            if (t, u) == divmod(int(mcommon.OPT.get("touch_at", 1)), 4):
                a(f"s_cmp_lt_u32 s{S_W}, 4\ns_cbranch_scc1 L_no_touch")
                weight_touch(a)
                a("L_no_touch:")
            if (t, u) == divmod(int(mcommon.OPT.get("ps_issue", 6)), 4):
                a(f"s_cmp_lt_u32 s{S_W}, 4\ns_cbranch_scc1 L_ps_issued")
                ps_issue(a, PS_REG, range(5))
                a("L_ps_issued:")
            job(S1, S0, QA, CA, KB[nb], OB, VB[b], OA, VB[b], [[], [], [], []], last=last)
        if t in (0, 3):
            a.stamp(11 if t == 0 else 12)
    a(f"""
s_nop 0
{mfma(OB, VB[1] + 4, P + 4, OB)}""")
    a.stamp(13)
    a(f"""
s_mul_i32 s60, s{S_W}, 3072
s_xor_b32 s61, s{S_W}, 4
s_mul_i32 s61, s61, 3072
v_add_u32 v10, s60, v{VL16}
v_add_u32 v11, s61, v{VL16}
s_lshl_b32 s62, s{S_RB}, 1
s_add_u32 s62, s62, s{S_HALF}
s_lshl_b32 s35, s{S_RB}, 7
s_lshl_b32 s63, s{S_CB}, 2
s_add_u32 s35, s35, s63
s_add_u32 s35, s35, {OFLG}
s_mul_i32 s62, s62, 40960
s_add_u32 s62, s62, {OF}
s_lshl_b32 s63, s{S_HEAD}, 9
s_add_u32 s63, s63, s62
s_lshr_b32 s64, s{S_HEAD}, 3
s_add_u32 s64, s64, 16
s_lshl_b32 s64, s64, 10
s_add_u32 s64, s64, s62
s_bfe_u32 s65, s{S_HEAD}, 0x20001
s_lshl_b32 s65, s65, 8
s_add_u32 s64, s64, s65
s_and_b32 s65, s{S_HEAD}, 1
s_lshl_b32 s65, s65, 3
s_add_u32 s64, s64, s65
v_lshrrev_b32 v12, 4, v{TOK}
v_mul_u32_u24 v12, 20480, v12
v_and_b32 v13, 15, v{TOK}
v_lshl_add_u32 v12, v13, 4, v12
v_lshl_add_u32 v13, v{H}, 8, v12
v_lshl_add_u32 v12, v{H}, 30, v12""")
    for j in range(3):
        a(f"ds_write_b128 v10, {vr(OB + 4 * j, 4)} offset:{1024 * j}")
    a("s_waitcnt lgkmcnt(0)\ns_barrier")
    for j in range(3):
        a(f"ds_read_b128 {vr(T + 4 * j, 4)}, v11 offset:{1024 * j}")
    a("s_waitcnt lgkmcnt(0)")
    for j in range(12):
        a(f"v_add_f32 v{OA + j}, v{OA + j}, v{T + j}")
    a(f"""
v_mov_b32 v14, v{OA + 8}
v_mov_b32 v15, v{OA + 8}
s_nop 1
v_permlane32_swap_b32 v14, v15
s_nop 1
v_rcp_f32 v15, v15
s_nop 0""")
    for j in range(12):
        a(f"v_mul_f32 v{OA + j}, v{OA + j}, v15")
    for j in range(6):
        a(f"v_cvt_pk_bf16_f32 v{T + j}, v{OA + 2 * j}, v{OA + 2 * j + 1}")
    a(f"""
buffer_store_dwordx4 {vr(T, 4)}, v13, s[{WS}:{WS + 3}], s63 offen sc1
buffer_store_dwordx2 {vr(T + 4, 2)}, v12, s[{WS}:{WS + 3}], s64 offen sc1""")
    a.stamp(14)
    a("s_waitcnt vmcnt(0)\ns_barrier")

    b = tail

    def tr_addr():
        b(f"""
v_lshrrev_b32 v10, 2, v{LANE}
v_lshlrev_b32 v10, 6, v10
v_and_b32 v12, 3, v{LANE}
v_lshl_add_u32 v10, v12, 3, v10
v_add_u32 v10, s{S_PSB}, v10""")

    def tr_reads(i):
        for tl in range(2):
            r = T + 8 * i + 4 * tl
            b(f"ds_read_b64_tr_b16 {vr(r, 2)}, v10 offset:{2048 * i + 32 * tl}")
            b(f"ds_read_b64_tr_b16 {vr(r + 2, 2)}, v10 offset:{2048 * i + 32 * tl + 1024}")

    CS, ONE = T + 40, T + 48
    b(f"""
L_ps_store:
v_add_u32 v10, s{S_PSB}, v{VL16}
s_waitcnt vmcnt(0)""")
    for i in range(10):
        b(f"ds_write_b128 v10, {vr(PS_REG + 4 * i, 4)} offset:{1024 * i}")
    b(f"""
s_waitcnt lgkmcnt(0)
s_cmp_ge_u32 s{S_IDX}, 96
s_cbranch_scc1 L_ps_st_b""")
    tr_addr()
    for i in range(3):
        tr_reads(i)

    def w13_dest(dst, tile_sgpr):
        b(f"""
s_mul_i32 s64, s{tile_sgpr}, 43691
s_lshr_b32 s64, s64, 18
s_mul_i32 s65, s64, 6
s_sub_u32 s65, s{tile_sgpr}, s65
s_mul_i32 s64, s64, {21 * 12288}
s_lshl_b32 s65, s65, 11
s_add_u32 s64, s64, s65
s_add_u32 s{dst}, s64, s63""")

    b(f"""
s_cmp_ge_u32 s{S_IDX}, 48
s_cselect_b32 s62, 48, 0
s_cselect_b32 s63, 1024, 0
s_sub_u32 s62, s{S_IDX}, s62
s_lshl_b32 s62, s62, 1
s_add_u32 s63, s63, {W13F}""")
    w13_dest(60, 62)
    b("s_add_u32 s62, s62, 1")
    w13_dest(61, 62)
    b(f"""
s_mul_i32 s64, s{S_P}, 12288
s_add_u32 s60, s60, s64
s_add_u32 s61, s61, s64
v_mov_b32 v{ONE}, 0x3f803f80
v_mov_b32 v{ONE + 1}, 0x3f803f80
s_waitcnt lgkmcnt(0)""")
    for i in range(3, 5):
        tr_reads(i)
    for i in range(5):
        if i == 3:
            b("s_waitcnt lgkmcnt(0)")
        for tl in range(2):
            r = T + 8 * i + 4 * tl
            cs = CS + 4 * tl
            b(f"buffer_store_dwordx4 {vr(r, 4)}, v{VL16}, s[{WS}:{WS + 3}], s{60 + tl} offen sc1")
            b(f"s_add_u32 s{60 + tl}, s{60 + tl}, {4 * 12288}")
            c0 = "0" if i == 0 else vr(cs, 4)
            b(f"v_mfma_f32_4x4x4_16b_bf16 {vr(cs, 4)}, {vr(ONE, 2)}, {vr(r, 2)}, {c0}")
            b("s_nop 1")
            b(f"v_mfma_f32_4x4x4_16b_bf16 {vr(cs, 4)}, {vr(ONE, 2)}, {vr(r + 2, 2)}, {vr(cs, 4)}")
            b("s_nop 1")
    b(f"""
s_lshl_b32 s60, s{S_P}, 9
s_add_u32 s60, s60, {LDS_MISC + 256}
v_lshl_add_u32 v10, v{LANE}, 2, s60
s_nop 4
ds_write_b32 v10, v{CS}
ds_write_b32 v10, v{CS + 4} offset:256
s_waitcnt lgkmcnt(0)
s_branch L_ps_back
L_ps_st_b:
s_cmp_ge_u32 s{S_IDX}, 232
s_cbranch_scc1 L_ps_back""")
    tr_addr()
    for i in range(3):
        tr_reads(i)
    b(f"""
s_sub_u32 s62, s{S_IDX}, 96
s_and_b32 s63, s62, 1
s_lshr_b32 s62, s62, 1
s_mul_i32 s63, s63, 10
s_add_u32 s63, s63, s{S_P}
s_lshl_b32 s63, s63, 1
s_mul_i32 s66, s62, 5120
s_add_u32 s66, s66, {WOF}
s_mov_b32 s67, 102400
s_cmp_lt_u32 s62, 20
s_cbranch_scc1 L_ps_st_go
s_sub_u32 s62, s62, 20
s_cmp_ge_u32 s62, 24
s_cselect_b32 s64, 24, 0
s_cselect_b32 s65, 5120, 0
s_sub_u32 s62, s62, s64
s_mul_i32 s66, s62, 10240
s_add_u32 s66, s66, s65
s_add_u32 s66, s66, {W2F}
s_mov_b32 s67, 245760
L_ps_st_go:
s_waitcnt lgkmcnt(0)""")
    for i in range(3):
        if i == 2:
            b(f"s_cmp_ge_u32 s{S_P}, 2\ns_cbranch_scc1 L_ps_back")
        for tl in range(2):
            b(f"""
s_add_u32 s60, s63, {8 * i + tl}
s_mul_i32 s61, s60, 52429
s_lshr_b32 s61, s61, 18
s_mul_i32 s64, s61, 5
s_sub_u32 s64, s60, s64
s_mul_i32 s61, s61, s67
s_lshl_b32 s64, s64, 10
s_add_u32 s61, s61, s64
s_add_u32 s61, s61, s66
buffer_store_dwordx4 {vr(T + 8 * i + 4 * tl, 4)}, v{VL16}, s[{WS}:{WS + 3}], s61 offen sc1""")
    b("s_branch L_ps_back")
    b(f"""
L_ps_fin:
s_cmp_ge_u32 s{S_IDX}, 96
s_cbranch_scc1 L_fin_back
s_lshl_b32 s60, s{S_P}, 8
s_add_u32 s60, s60, {LDS_MISC + 256}
v_lshl_add_u32 v10, v{LANE}, 2, s60""")
    for i in range(4):
        b(f"ds_read_b32 v{T + i}, v10 offset:{512 * i}")
    b(f"""
s_cmp_ge_u32 s{S_IDX}, 48
s_cselect_b32 s62, 48, 0
s_cselect_b32 s63, 1024, 0
s_sub_u32 s62, s{S_IDX}, s62
s_lshl_b32 s62, s62, 1
s_add_u32 s62, s62, s{S_P}
s_add_u32 s63, s63, {W13F + 20 * 12288}""")
    w13_dest(60, 62)
    b("s_waitcnt lgkmcnt(0)")
    for i in range(1, 4):
        b(f"v_add_f32 v{T}, v{T}, v{T + i}")
    b.quad_sum(T, T + 1)
    b(f"""
v_cvt_pk_bf16_f32 v{T + 4}, v{T}, v{T}
v_cmp_gt_u32 s[64:65], 16, v{LANE}
v_and_b32 v{T + 1}, 0xffff0000, v{T + 4}
v_sub_f32 v{T + 1}, v{T}, v{T + 1}
v_mov_b32 v{T + 6}, 0
v_mov_b32 v{T + 7}, 0
v_cvt_pk_bf16_f32 v{T + 5}, v{T + 1}, v{T + 6}
v_cndmask_b32 v{T + 4}, 0, v{T + 4}, s[64:65]
v_cndmask_b32 v{T + 5}, 0, v{T + 5}, s[64:65]
buffer_store_dwordx4 {vr(T + 4, 4)}, v{VL16}, s[{WS}:{WS + 3}], s60 offen sc1
s_branch L_fin_back""")
    b(f"""
L_ps_wait:
s_mov_b32 s61, {PSFLG}
s_mov_b32 s62, 0
v_lshlrev_b32 v10, 4, v{LANE}
L_ps_spin:
buffer_load_dwordx4 {vr(T, 4)}, v10, s[{WS}:{WS + 3}], s61 offen sc1
s_add_u32 s62, s62, 1
s_waitcnt vmcnt(0)
v_and_b32 v{T}, v{T}, v{T + 1}
v_and_b32 v{T + 2}, v{T + 2}, v{T + 3}
v_and_b32 v{T}, v{T}, v{T + 2}
v_cmp_ne_u32 vcc, 1, v{T}
s_nop 4
s_cbranch_vccz L_ps_ready
s_cmp_lt_u32 s62, {SPIN_LIMIT}
s_cbranch_scc1 L_ps_spin
s_branch L_ps_ready""")
    MA, MB = T + 8, T + 9
    b(f"""
L_truemax:
v_mov_b32 v{MA}, 0xff800000
v_mov_b32 v{MB}, 0xff800000
s_mul_i32 s60, s{S_HALF}, 12288
v_subrev_u32 v10, s60, v{VK4}
s_mov_b32 s60, {KV}
L_tm_loop:
buffer_load_dwordx4 {vr(T, 4)}, v{VL16}, s[{WS}:{WS + 3}], s60 offen sc1
buffer_load_dwordx2 {vr(T + 4, 2)}, v10, s[{WS}:{WS + 3}], s60 offen sc1
s_waitcnt vmcnt(0)
{mfma(S0, T, QA, "0")}
{mfma(S1, T, QB, "0")}
{mfma8(S0, T + 4, QA + 4, S0)}
{mfma8(S1, T + 4, QB + 4, S1)}
s_nop 7
s_nop 7""")
    for j in range(8):
        b(f"v_max3_f32 v{MA}, v{S0 + 2 * j}, v{S0 + 2 * j + 1}, v{MA}")
        b(f"v_max3_f32 v{MB}, v{S1 + 2 * j}, v{S1 + 2 * j + 1}, v{MB}")
    b(f"""
s_add_u32 s60, s60, 3072
s_cmp_lt_u32 s60, {KV + 64 * 3072}
s_cbranch_scc1 L_tm_loop""")
    b.half_max(MA, T)
    b.half_max(MB, T)
    for j in range(16):
        b(f"v_sub_f32 v{CA + j}, 0, v{MA}")
        b(f"v_sub_f32 v{CB + j}, 0, v{MB}")
    b("s_nop 1\ns_branch L_att_start")
```

```python
from mcommon import *
import mcommon
from m2 import LDS_WO, RES

SLOT = 24576
NSLOT = 6
LDS_RED = 5 * SLOT
HRES = 240
NCH13, NCH = 11, 23
DIST, NB = 6, 7


W2_SLOT = [6, 7, 0, 1, 2, 3, 4, 5]


def chunk_lds(c):
    return (c % NSLOT) * SLOT if c < NCH13 else W2_SLOT[(c - NCH13) % 8] * 20480


def chunk_kb(c):
    return 24 if c < 10 else (12 if c == 10 else 20)


def loader(a):
    S_S13, S_S2 = 33, 34
    seq = []

    def issue(c, pace=None):
        n = chunk_kb(c) // 4
        src = f"s{S_S13}" if c < NCH13 else f"s{S_S2}"
        off = c * 24576 if c < NCH13 else (c - NCH13) * 20480
        a(f"""
s_mul_i32 s60, s{S_P}, {n * 1024}
s_add_u32 s61, s60, {off}
s_add_u32 s61, s61, {src}
s_add_u32 s60, s60, {chunk_lds(c)}""")
        for i in range(n):
            if i == 4:
                a("s_add_u32 s60, s60, 4096\ns_add_u32 s61, s61, 4096")
            if pace is not None:
                a(f"s_waitcnt vmcnt({pace})")
            a.dma(VL16, WS, "s61", "s60" if i % 4 == 0 else None, imm=1024 * (i % 4), aux="sc1")
            seq.append(c)

    def wait(c):
        last = max(i for i, x in enumerate(seq) if x == c)
        a(f"s_waitcnt vmcnt({len(seq) - 1 - last})")

    a(f"""
L_loader:
s_mul_i32 s{S_S13}, s{S_FB}, {21 * 12288}
s_add_u32 s{S_S13}, s{S_S13}, {W13F}
s_mul_i32 s{S_S2}, s{S_CB}, 245760
s_add_u32 s{S_S2}, s{S_S2}, {W2F}""")
    pace = int(mcommon.OPT.get("pace", 5))
    a("s_barrier")
    issue(0)
    issue(1)
    a("s_barrier")
    a("s_barrier")
    a("s_barrier")
    early = [2, 3, 4][:int(mcommon.OPT.get("early", 3))]
    for c in early:
        issue(c, pace)
    pending = [c for c in (2, 3, 4) if c not in early]
    after = {c: [c + 4] for c in range(1, 7)}
    after.update({0: [], 7: [11, 12], 8: [13], 9: [14], 10: [15]})
    after.update({c: [c + 6] for c in range(13, 17)})
    for c in range(NCH):
        if c == NCH13:
            a("s_barrier")
            for k in (16, 17, 18):
                issue(k, pace)
        wait(c)
        a("s_barrier")
        pending.extend(after.get(c, []))
        for k in range(2):
            if pending:
                issue(pending.pop(0))
        if c == int(mcommon.OPT.get("w2warm", 5)):
            a(f"""
s_lshr_b32 s60, s2, 3
s_lshl_b32 s60, s60, 2
s_add_u32 s60, s60, s{S_P}
s_lshr_b32 s61, s60, 4
s_and_b32 s60, s60, 15
s_mul_i32 s61, s61, 245760
s_mul_i32 s60, s60, 5120
s_add_u32 s60, s60, s61
s_add_u32 s60, s60, {W2F + 8 * 20480}
v_lshlrev_b32 v10, 7, v{LANE}
s_mov_b32 exec_hi, 0xff
buffer_load_dword v11, v10, s[{WS}:{WS + 3}], s60 offen sc1
s_mov_b64 exec, -1""")
            seq.append("warm")
    a.stamp_out()
    a("s_endpgm")


def stream(a, frags):
    n = len(frags)

    def read(i):
        f = frags[i]
        for x in f.get("pre_read", []):
            a(x)
        a(f"ds_read_b128 {vr(f['abuf'] + 4 * (i % NB), 4)}, v{f['addr']} offset:{f['off']}")

    for i in range(min(DIST, n)):
        read(i)
    for i, f in enumerate(frags):
        for x in f.get("pre_mma", []):
            a(x)
        if i % 2 == 0:
            issued = min(i + DIST - 1, n - 1)
            a(f"s_waitcnt lgkmcnt({max(issued - min(i + 1, n - 1), 0)})")
        A = f["abuf"] + 4 * (i % NB)
        a(mfma16(f["acc"][0], A, f["b"][0], "0" if f["first"] else f["acc"][0]))
        if i + DIST < n:
            read(i + DIST)
        a(mfma16(f["acc"][1], A, f["b"][1], "0" if f["first"] else f["acc"][1]))
        for x in f.get("post_mma", []):
            a(x)


def bloads(breg, s_base, step):
    out = []
    for n in range(2):
        if step % 4 == 0 and step:
            out.append(f"s_add_u32 s{s_base + n}, s{s_base + n}, 4096")
        out.append(f"buffer_load_dwordx4 {vr(breg + 4 * n, 4)}, v{VL16}, s[{WS}:{WS + 3}], s{s_base + n} offen"
                   + (f" offset:{1024 * (step % 4)}" if step % 4 else "") + " sc1")
    return out


def plan_b(fr, per, nsteps, W, BW, S_B, lead):
    order = list(range(lead))
    first = [x for s in range(lead) for x in bloads(BW + 8 * (s % W), S_B, s)]
    nxt = lead
    for s in range(nsteps):
        f0, fl = fr[s * per], fr[s * per + per - 1]
        pos = order.index(s)
        f0.setdefault("pre_mma", []).insert(0, f"s_waitcnt vmcnt({2 * (len(order) - 1 - pos)})")
        slots = [fr[s * per + per // 2 - 1], fl]
        for k, f in enumerate(slots):
            limit = s + W - 1 if k == 0 else s + W
            if nxt < nsteps and nxt <= limit:
                f.setdefault("post_mma", []).extend(bloads(BW + 8 * (nxt % W), S_B, nxt))
                order.append(nxt)
                nxt += 1
    assert nxt == nsteps
    return first


def reduce_pair(a, acc_own, acc_other, tmp, vw, vrd):
    a(f"""
s_mul_i32 s60, s{S_W}, 5120
s_xor_b32 s61, s{S_W}, 1
s_mul_i32 s61, s61, 5120
s_add_u32 s60, s60, {LDS_RED}
s_add_u32 s61, s61, {LDS_RED}
v_add_u32 v{vw}, s60, v{VL16}
v_add_u32 v{vrd}, s61, v{VL16}
s_nop 1
s_barrier""")
    for m in range(5):
        a(f"ds_write_b128 v{vw}, {vr(acc_other + 4 * m, 4)} offset:{1024 * m}")
    a("s_waitcnt lgkmcnt(0)\ns_barrier")
    for m in range(5):
        a(f"ds_read_b128 {vr(tmp + 4 * m, 4)}, v{vrd} offset:{1024 * m}")
    for m in range(5):
        a(f"s_waitcnt lgkmcnt({4 - m})")
        for j in (0, 2):
            r, t = acc_own + 4 * m + j, tmp + 4 * m + j
            a(f"v_pk_add_f32 v[{r}:{r + 1}], v[{r}:{r + 1}], v[{t}:{t + 1}]")


def add_bf16(a, acc, src, n):
    for j in range(n):
        r, t = acc + 2 * j, 12 + 2 * (j % 2)
        a(f"""
v_lshlrev_b32 v{t}, 16, v{src + j}
v_and_b32 v{t + 1}, 0xffff0000, v{src + j}
v_pk_add_f32 v[{r}:{r + 1}], v[{r}:{r + 1}], v[{t}:{t + 1}]""")


def compute345(a):
    S_TP, S_KH, S_B, S_TT = 32, 33, 46, 34
    VQ, VT, V4, VA = 4, 5, 6, 7
    BW, AB, ACC = 16, 96, 124
    a(f"""
s_lshr_b32 s{S_TP}, s{S_W}, 1
s_and_b32 s{S_KH}, s{S_W}, 1
v_lshrrev_b32 v{VQ}, 4, v{LANE}
v_and_b32 v{VT}, 15, v{LANE}
v_lshlrev_b32 v{V4}, 2, v{LANE}
s_lshl_b32 s{S_TT}, s{S_RB}, 1
s_add_u32 s{S_TT}, s{S_TT}, s{S_TP}
s_lshl_b32 s62, s{S_RB}, 7
s_add_u32 s62, s62, {OFLG}
s_mul_i32 s63, s{S_TT}, 40960
s_mul_i32 s64, s{S_KH}, 10240
s_add_u32 s63, s63, s64
s_add_u32 s63, s63, {OF}
s_mul_i32 s64, s{S_KH}, 20480
s_add_u32 s{S_B}, s63, s64
s_sub_u32 s{S_B + 1}, s63, s64
s_add_u32 s{S_B + 1}, s{S_B + 1}, 20480
s_mul_i32 s64, s{S_KH}, 51200
s_add_u32 s64, s64, {LDS_WO}
v_add_u32 v{VA}, s64, v{VL16}
s_cmp_lg_u32 s{S_W}, 0
s_cbranch_scc1 L_oflag_done""")
    a.set_flag(10, 12, WS, "s35")
    a("L_oflag_done:")
    a.stamp(15)
    a.poll(V4, 10, WS, "s62", 8)
    a.stamp(16)
    fr = []
    for s in range(10):
        for m in range(5):
            f = dict(addr=VA, off=s * 5120 + m * 1024, abuf=AB, acc=[ACC + 4 * m, ACC + 20 + 4 * m],
                     b=[BW + 8 * s, BW + 8 * s + 4], first=(s == 0))
            if m == 0 and s in (0, 5):
                f["pre_mma"] = a.stamp_lines(45 + s // 5)
            fr.append(f)
    for x in plan_b(fr, 5, 10, 10, BW, S_B, int(mcommon.OPT.get("lead3", 4))):
        a(x)
    a("s_barrier")
    stream(a, fr)
    a.stamp(17)
    a("s_nop 4")
    reduce_pair(a, ACC, ACC + 20, BW, 10, 11)
    a.stamp(47)
    add_bf16(a, ACC, RES, 10)
    for j in range(10):
        a(f"v_cvt_pk_bf16_f32 v{HRES + j}, v{ACC + 2 * j}, v{ACC + 2 * j + 1}")
    a(f"""
s_lshl_b32 s60, s{S_RB}, 2
s_add_u32 s60, s60, s{S_W}
s_mul_i32 s61, s60, 20480
s_mul_i32 s62, s{S_CB}, 5
s_lshr_b32 s62, s62, 1
s_lshl_b32 s62, s62, 10
s_add_u32 s61, s61, s62
s_add_u32 s61, s61, {HF}
s_bitcmp1_b32 s{S_CB}, 0
s_cbranch_scc1 L_p3_odd
buffer_store_dwordx4 {vr(HRES, 4)}, v{VL16}, s[{WS}:{WS + 3}], s61 offen sc1
buffer_store_dwordx4 {vr(HRES + 4, 4)}, v{VL16}, s[{WS}:{WS + 3}], s61 offen offset:1024 sc1
buffer_store_dwordx2 {vr(HRES + 8, 2)}, v{VL16}, s[{WS}:{WS + 3}], s61 offen offset:2048 sc1
s_branch L_p3_st
L_p3_odd:
buffer_store_dwordx2 {vr(HRES, 2)}, v{VL16}, s[{WS}:{WS + 3}], s61 offen offset:8 sc1
buffer_store_dwordx4 {vr(HRES + 2, 4)}, v{VL16}, s[{WS}:{WS + 3}], s61 offen offset:1024 sc1
buffer_store_dwordx4 {vr(HRES + 6, 4)}, v{VL16}, s[{WS}:{WS + 3}], s61 offen offset:2048 sc1
L_p3_st:
v_pk_mul_f32 v[12:13], v[{ACC}:{ACC + 1}], v[{ACC}:{ACC + 1}]
v_mov_b32 v14, v{ACC}
v_mov_b32 v15, v{ACC + 1}""")
    for j in range(1, 10):
        r = ACC + 2 * j
        a(f"v_pk_fma_f32 v[12:13], v[{r}:{r + 1}], v[{r}:{r + 1}], v[12:13]")
        a(f"v_pk_add_f32 v[14:15], v[14:15], v[{r}:{r + 1}]")
    a(f"""
v_add_f32 v11, v12, v13
v_add_f32 v10, v14, v15
s_lshl_b32 s60, s60, 10
s_lshl_b32 s61, s{S_CB}, 3
s_add_u32 s60, s60, s61
s_add_u32 s60, s60, {ST}""")
    a.quad_sum(10, 12)
    a.quad_sum(11, 12)
    a(f"""
v_lshlrev_b32 v13, 6, v{VT}
v_lshl_add_u32 v13, v{VQ}, 28, v13
s_lshl_b32 s61, s{S_RB}, 2
s_add_u32 s61, s61, s{S_W}
s_lshl_b32 s61, s61, 7
s_lshl_b32 s62, s{S_CB}, 2
s_add_u32 s61, s61, s62
s_add_u32 s61, s61, {HFLG}
buffer_store_dwordx2 v[10:11], v13, s[{WS}:{WS + 3}], s60 offen sc1
s_barrier""")
    a.stamp(48)
    a("s_waitcnt vmcnt(0)")
    a.set_flag(10, 12, WS, "s61")
    a.stamp(18)
    ACC, BW, AB, W = 16, 112, 192, int(mcommon.OPT.get('w4', 5))
    a(f"""
s_lshl_b32 s60, s{S_RB2}, 2
s_add_u32 s31, s60, s{S_W}
s_lshl_b32 s62, s31, 8
s_add_u32 s62, s62, {HFLG}
v_lshrrev_b32 v11, 3, v{LANE}
v_lshlrev_b32 v11, 7, v11
v_and_b32 v12, 7, v{LANE}
v_lshl_add_u32 v11, v12, 2, v11
s_mul_i32 s63, s31, 40960
s_add_u32 s{S_B}, s63, {HF}
s_add_u32 s{S_B + 1}, s{S_B}, 20480
s_lshl_b32 s63, s31, 11
s_add_u32 s63, s63, {ST}
v_lshlrev_b32 v13, 6, v{VT}
v_lshl_add_u32 v13, v{VQ}, 4, v13
v_add_u32 v{VA + 1}, {2 * SLOT}, v{VL16}
v_add_u32 v{VA + 2}, {4 * SLOT}, v{VL16}
v_mov_b32 v{VA}, v{VL16}""")
    a.poll(11, 10, WS, "s62", 16)
    a.stamp(19)
    STT = 224
    a(f"""
buffer_load_dwordx4 {vr(STT, 4)}, v13, s[{WS}:{WS + 3}], s63 offen sc1
buffer_load_dwordx4 {vr(STT + 4, 4)}, v13, s[{WS}:{WS + 3}], s63 offen offset:1024 sc1""")

    def acc4(fp, gu, n):
        return 16 + ((fp * 2 + gu) * 2 + n) * 4

    BX = 176
    fr = []
    for s in range(21):
        c, sg = divmod(s, 2)
        slot = c % NSLOT
        for m in range(12):
            breg = BW + 8 * (s % W) if s < 20 else BX
            f = dict(addr=VA + slot // 2, off=(slot % 2) * SLOT + sg * 12288 + m * 1024, abuf=AB,
                     acc=[acc4(m // 2, m % 2, 0), acc4(m // 2, m % 2, 1)], b=[breg, breg + 4], first=(s == 0))
            if m == 0 and sg == 0 and c > 0:
                f["pre_read"] = ["s_barrier"]
            if m == 0 and s in (0, 4, 8, 12, 16):
                f["pre_mma"] = a.stamp_lines(32 + s // 4)
            fr.append(f)
    for x in plan_b(fr, 12, 20, W, BW, S_B, int(mcommon.OPT.get("lead4", 2))):
        a(x)
    a("s_barrier")
    st = []
    for n in range(2):
        r = STT + 4 * n
        st += [f"v_add_f32 v{r}, v{r}, v{r + 2}", f"v_add_f32 v{r + 1}, v{r + 1}, v{r + 3}"]
    for n in range(2):
        for k in range(2):
            r = STT + 4 * n + k
            for width in (32, 16):
                st += [f"v_mov_b32 v12, v{r}", "s_nop 1", f"v_permlane{width}_swap_b32 v{r}, v12", "s_nop 1",
                       f"v_add_f32 v{r}, v{r}, v12"]
        r = STT + 4 * n
        st += [f"v_mul_f32 v{r}, {f32(1 / 640)}, v{r}", f"v_mul_f32 v{r + 1}, {f32(1 / 640)}, v{r + 1}",
               f"v_fma_f32 v{r + 1}, -v{r}, v{r}, v{r + 1}", f"v_max_f32 v{r + 1}, 0, v{r + 1}",
               f"v_add_f32 v{r + 1}, {f32(1e-5)}, v{r + 1}", f"v_rsq_f32 v{r + 1}, v{r + 1}"]
    ext = []
    for n in range(2):
        mean, bb = STT + 4 * n, BX + 4 * n
        ext += [f"v_cvt_pk_bf16_f32 v12, v{mean}, v{mean}", "v_and_b32 v13, 0xffff0000, v12",
                f"v_sub_f32 v13, v13, v{mean}", f"v_xor_b32 v{bb + 1}, 0x80008000, v12",
                "v_cvt_pk_bf16_f32 v13, v13, v13", f"v_mov_b32 v{bb + 2}, 0", f"v_mov_b32 v{bb + 3}, 0",
                f"v_and_b32 v12, 0xffff, v{bb + 1}", "v_lshlrev_b32 v13, 16, v13", f"v_or_b32 v{bb}, v12, v13"]
    for k in range(0, len(st), 2):
        fr[12 + k // 2].setdefault("post_mma", []).extend(st[k:k + 2])
    for k in range(0, len(ext), 2):
        fr[15 * 12 + k // 2].setdefault("post_mma", []).extend(ext[k:k + 2])
    stream(a, fr)
    a.stamp(20)
    C = [224, 228]
    for n in range(2):
        a(f"""
v_rcp_f32 v{C[n] + 2}, v{C[n] + 1}
v_mul_f32 v{C[n]}, {f32(-LOG2E)}, v{C[n] + 1}
v_mul_f32 v{C[n] + 2}, {f32(-LOG2E)}, v{C[n] + 2}""")
    a(f"""
s_mul_i32 s60, s31, 96
s_mul_i32 s61, s{S_FB}, 3
s_add_u32 s60, s60, s61
s_lshl_b32 s60, s60, 10
s_add_u32 s60, s60, {HHF}
s_add_u32 s61, s60, {48 * 1024}
s_lshl_b32 s62, s31, 8
s_lshr_b32 s63, s{S_FB}, 3
s_lshl_b32 s63, s63, 7
s_add_u32 s62, s62, s63
s_and_b32 s63, s{S_FB}, 7
s_lshl_b32 s63, s63, 2
s_add_u32 s62, s62, s63
s_add_u32 s62, s62, {HHFLG}""")
    TT, OO = 112, 128
    k = 0
    for sg in range(3):
        for n in range(2):
            g = [acc4(2 * sg, 0, n), acc4(2 * sg, 0, n) + 2, acc4(2 * sg + 1, 0, n), acc4(2 * sg + 1, 0, n) + 2]
            u = [acc4(2 * sg, 1, n), acc4(2 * sg, 1, n) + 2, acc4(2 * sg + 1, 1, n), acc4(2 * sg + 1, 1, n) + 2]
            o = OO + 4 * (k % 4)
            k += 1
            c1, kk = C[n], C[n] + 2
            for j in range(4):
                a(f"v_pk_mul_f32 v[{g[j]}:{g[j] + 1}], v[{g[j]}:{g[j] + 1}], v[{c1}:{c1 + 1}] op_sel_hi:[1,0]")
            for j in range(4):
                a(f"v_exp_f32 v{TT + 2 * j}, v{g[j]}\nv_exp_f32 v{TT + 2 * j + 1}, v{g[j] + 1}")
            for j in range(4):
                a(f"v_pk_mul_f32 v[{g[j]}:{g[j] + 1}], v[{g[j]}:{g[j] + 1}], v[{u[j]}:{u[j] + 1}]")
            for j in range(4):
                t = TT + 2 * j
                a(f"v_pk_fma_f32 v[{t}:{t + 1}], v[{t}:{t + 1}], v[{kk}:{kk + 1}], v[{kk}:{kk + 1}] op_sel_hi:[1,0,0]")
            for j in range(8):
                a(f"v_rcp_f32 v{TT + j}, v{TT + j}")
            for j in range(4):
                t = TT + 2 * j
                a(f"v_pk_mul_f32 v[{g[j]}:{g[j] + 1}], v[{g[j]}:{g[j] + 1}], v[{t}:{t + 1}]")
            for j in range(4):
                a(f"v_cvt_pk_bf16_f32 v{o + j}, v{g[j]}, v{g[j] + 1}")
            a(f"buffer_store_dwordx4 {vr(o, 4)}, v{VL16}, s[{WS}:{WS + 3}], s{60 + n} offen offset:{1024 * sg} sc1")
    a.stamp(21)
    a("s_barrier\ns_waitcnt vmcnt(0)")
    a.set_flag(10, 12, WS, "s62")
    a.stamp(22)
    ACC, AB, BW, W = 16, 56, 84, int(mcommon.OPT.get('w5', 6))
    a(f"""
s_lshl_b32 s62, s{S_TT}, 8
s_lshl_b32 s63, s{S_KH}, 7
s_add_u32 s62, s62, s63
s_add_u32 s62, s62, {HHFLG}
s_mul_i32 s63, s{S_TT}, {96 * 1024}
s_mul_i32 s64, s{S_KH}, {24 * 1024}
s_add_u32 s63, s63, s64
s_add_u32 s63, s63, {HHF}
s_mul_i32 s64, s{S_KH}, {48 * 1024}
s_add_u32 s{S_B}, s63, s64
s_sub_u32 s{S_B + 1}, s63, s64
s_add_u32 s{S_B + 1}, s{S_B + 1}, {48 * 1024}
s_mul_i32 s64, s{S_KH}, 5120""")
    for j in range(3):
        a(f"v_add_u32 v{VA + j}, s64, v{VL16}\ns_add_u32 s64, s64, 61440")
    a.srd(TS, P_OUT, 2048 * 1280)
    a.poll(V4, 10, WS, "s62", 8)
    a.stamp(23)
    fr = []
    for s in range(24):
        c, sg = divmod(s, 2)
        slot = W2_SLOT[c % 8]
        for m in range(5):
            f = dict(addr=VA + slot // 3, off=(slot % 3) * 20480 + sg * 10240 + m * 1024, abuf=AB,
                     acc=[ACC + 4 * m, ACC + 20 + 4 * m], b=[BW + 8 * (s % W), BW + 8 * (s % W) + 4], first=(s == 0))
            if m == 0 and sg == 0 and c > 0:
                f["pre_read"] = ["s_barrier"]
            if m == 0 and s in (0, 6, 12, 18):
                f["pre_mma"] = a.stamp_lines(40 + s // 6)
            fr.append(f)
    for x in plan_b(fr, 5, 24, W, BW, S_B, int(mcommon.OPT.get("lead5", 4))):
        a(x)
    a("s_barrier")
    stream(a, fr)
    a.stamp(24)
    a("s_nop 4")
    reduce_pair(a, ACC, ACC + 20, BW, 10, 11)
    add_bf16(a, ACC, HRES, 10)
    PK = BW + 24
    for j in range(10):
        a(f"v_cvt_pk_bf16_f32 v{PK + j}, v{ACC + 2 * j}, v{ACC + 2 * j + 1}")
    a(f"""
s_lshl_b32 s60, s{S_RB}, 6
s_lshl_b32 s61, s{S_W}, 4
s_add_u32 s60, s60, s61
v_add_u32 v10, s60, v{VT}
v_mul_u32_u24 v10, 1280, v10
v_lshl_add_u32 v11, v{VQ}, 3, v10
v_and_b32 v12, 1, v{VQ}
v_lshl_add_u32 v10, v12, 5, v10
v_lshrrev_b32 v12, 1, v{VQ}
v_lshl_add_u32 v10, v12, 4, v10
s_mul_i32 s60, s{S_CB}, 160
buffer_store_dwordx2 {vr(PK + 8, 2)}, v11, s[{TS}:{TS + 3}], s60 offen offset:128""")
    for j in range(2):
        r = PK + 4 * j
        a(f"""
v_permlane16_swap_b32 v{r}, v{r + 2}
v_permlane16_swap_b32 v{r + 1}, v{r + 3}
buffer_store_dwordx4 {vr(r, 4)}, v10, s[{TS}:{TS + 3}], s60 offen offset:{64 * j}""")
    if mcommon.STAMPS:
        a("s_waitcnt vmcnt(0)")
    a.stamp(25)
    a.stamp(26, True)
    a.stamp_out()
```

```python
import struct

NAME = "sequential_preLN__grouped_kv_mqa__glu_gated_swiglu__prompt"

KV = 0x0000000
KN = 0x0040000
FLG = 0x0050000
KVFLG = FLG
OFLG = FLG + 0x2000
PSFLG = FLG + 0x3000
HFLG = FLG + 0x4000
HHFLG = FLG + 0x8000
FLG_BYTES = 0xC000
OF = 0x0100000
HF = 0x0400000
ST = 0x0700000
WOF = 0x0800000
W13F = 0x0900000
W2F = 0x0D00000
HHF = 0x0F00000
WS_USED = 0x1500000
DIAG = 0x2000000
OOB = 0x40000000

SRD3 = "0x00020000"
LOG2E = 1.4426950408889634
SPIN_LIMIT = 1 << 18

STAMPS = False
OPT = {}


def f32(x):
    return "0x%08x" % struct.unpack("<I", struct.pack("<f", x))[0]


def vr(a, n=1):
    return f"v{a}" if n == 1 else f"v[{a}:{a + n - 1}]"


def mfma(d, a, b, c):
    cs = c if isinstance(c, str) else vr(c, 16)
    return f"v_mfma_f32_32x32x16_bf16 {vr(d, 16)}, {vr(a, 4)}, {vr(b, 4)}, {cs}"


def mfma8(d, a, b, c):
    cs = c if isinstance(c, str) else vr(c, 16)
    return f"v_mfma_f32_32x32x8_bf16 {vr(d, 16)}, {vr(a, 2)}, {vr(b, 2)}, {cs}"


def mfma16(d, a, b, c):
    cs = c if isinstance(c, str) else vr(c, 4)
    return f"v_mfma_f32_16x16x32_bf16 {vr(d, 4)}, {vr(a, 4)}, {vr(b, 4)}, {cs}"


WS, XS, TS, KS, DS = 4, 8, 12, 16, 20
S_W, S_RB, S_CB, S_IDX, S_HALF, S_P, S_HEAD = 24, 25, 26, 27, 28, 29, 30
S_RB2, S_FB = 70, 71
P_X, P_WQ, P_WK, P_WV, P_WO, P_W1, P_W3, P_W2, P_OUT, P_DBG, P_WS = 36, 38, 40, 42, 44, 48, 50, 52, 54, 56, 58
LANE, VL16 = 2, 3
V_STAMP = 255


class Asm:
    def __init__(self, name):
        self.lines = []
        self.name = name
        self.uid = 0

    def __call__(self, text):
        for ln in text.strip("\n").split("\n"):
            ln = ln.strip()
            if not ln:
                continue
            if ln.endswith(":") or ln.startswith("."):
                self.lines.append(ln)
            else:
                self.lines.append("    " + ln)

    def text(self):
        return "\n".join(self.lines) + "\n"

    def L(self, tag):
        return f"L_{tag}"

    def fresh(self, tag):
        self.uid += 1
        return f"L_{tag}_{self.uid}"

    def srd(self, d, ptr, nbytes):
        self(f"""
s_mov_b32 s{d}, s{ptr}
s_mov_b32 s{d + 1}, s{ptr + 1}
s_mov_b32 s{d + 2}, {nbytes}
s_mov_b32 s{d + 3}, {SRD3}""")

    def dma(self, voff, srd, soff, m0, imm=0, aux=""):
        if m0 is not None:
            self(f"s_mov_b32 m0, {m0}")
            self("s_nop 0")
        o = f" offset:{imm}" if imm else ""
        x = f" {aux}" if aux else ""
        self(f"buffer_load_dwordx4 v{voff}, s[{srd}:{srd + 3}], {soff} offen{o}{x} lds")

    def wave_max(self, v):
        for m in ("row_shr:1", "row_shr:2", "row_shr:4", "row_shr:8"):
            self("s_nop 1")
            self(f"v_max_f32_dpp v{v}, v{v}, v{v} {m} row_mask:0xf bank_mask:0xf")
        self("s_nop 1")
        self(f"v_max_f32_dpp v{v}, v{v}, v{v} row_bcast:15 row_mask:0xa bank_mask:0xf")
        self("s_nop 1")
        self(f"v_max_f32_dpp v{v}, v{v}, v{v} row_bcast:31 row_mask:0xc bank_mask:0xf")

    def xlane(self, op, v, t, width):
        self(f"v_mov_b32 v{t}, v{v}")
        self("s_nop 1")
        self(f"v_permlane{width}_swap_b32 v{v}, v{t}")
        self("s_nop 1")
        self(f"{op} v{v}, v{v}, v{t}")

    def half_sum(self, v, t):
        self.xlane("v_add_f32", v, t, 32)

    def half_max(self, v, t):
        self.xlane("v_max_f32", v, t, 32)

    def quad_sum(self, v, t):
        self.xlane("v_add_f32", v, t, 32)
        self.xlane("v_add_f32", v, t, 16)

    def poll(self, voff, vtmp, srd, soff, nlanes, expect="1"):
        top, done = self.fresh("poll"), self.fresh("polled")
        mask = (1 << nlanes) - 1
        self(f"""
s_mov_b32 exec_lo, {mask & 0xffffffff:#x}
s_mov_b32 exec_hi, {mask >> 32:#x}
s_mov_b32 s60, 0
{top}:
buffer_load_dword v{vtmp}, v{voff}, s[{srd}:{srd + 3}], {soff} offen sc1
s_add_u32 s60, s60, 1
s_waitcnt vmcnt(0)
v_cmp_ne_u32 vcc, {expect}, v{vtmp}
s_nop 4
s_cbranch_vccz {done}
s_cmp_lt_u32 s60, {SPIN_LIMIT}
s_cbranch_scc1 {top}
{done}:
s_mov_b64 exec, -1""")

    def set_flag(self, vaddr, vone, srd, soff, short=False):
        op = "buffer_store_short" if short else "buffer_store_dword"
        self(f"""
v_mov_b32 v{vaddr}, 0
v_mov_b32 v{vone}, 1
s_mov_b64 exec, 1
{op} v{vone}, v{vaddr}, s[{srd}:{srd + 3}], {soff} offen sc1
s_mov_b64 exec, -1""")

    def stamp(self, i, real=False):
        if not STAMPS:
            return
        op = "s_memrealtime" if real else "s_memtime"
        self(f"{op} s[96:97]\ns_waitcnt lgkmcnt(0)\nv_writelane_b32 v{V_STAMP}, s96, {i}")

    def stamp_lines(self, i):
        if not STAMPS:
            return []
        return ["s_memtime s[96:97]", "s_waitcnt lgkmcnt(0)", f"v_writelane_b32 v{V_STAMP}, s96, {i}"]

    def stamp_out(self):
        if not STAMPS:
            return
        self(f"""
s_mov_b32 s92, s{P_WS}
s_mov_b32 s93, s{P_WS + 1}
s_mov_b32 s94, 0x4000000
s_mov_b32 s95, {SRD3}
s_lshl_b32 s90, s2, 3
s_add_u32 s90, s90, s{S_W}
s_lshl_b32 s90, s90, 8
s_add_u32 s90, s90, {DIAG}
v_lshlrev_b32 v0, 2, v{LANE}
buffer_store_dword v{V_STAMP}, v0, s[92:95], s90 offen""")
```

```python
import sys
import mcommon
from mcommon import *

def build(out):
    from m1 import phase1
    from m2 import phase2, young_prep, young_tail
    from m345 import loader, compute345
    header = open("cdna_kernels/" + NAME + ".s.ref").read().split("; Override launch geometry")[0]
    k = NAME + "_kernel"
    a, tail = Asm(k), Asm(k)
    tail.uid = 100000
    phase1(a, tail, young_prep, young_tail)
    phase2(a, tail)
    a(f"s_cmp_ge_u32 s{S_W}, 4\ns_cbranch_scc1 L_loader")
    compute345(a)
    a("L_end:\ns_endpgm")
    loader(a)
    txt = header + "; @launch grid=(256,1,1) block=(512,1,1) lds=163840\n"
    txt += f'.amdgcn_target "amdgcn-amd-amdhsa--gfx950"\n.text\n.globl {k}\n.p2align 8\n.type {k},@function\n{k}:\n'
    txt += a.text() + tail.text()
    txt += f""".section .rodata,"a"
.p2align 6
.amdhsa_kernel {k}
  .amdhsa_next_free_vgpr 256
  .amdhsa_next_free_sgpr 102
  .amdhsa_accum_offset 256
  .amdhsa_group_segment_fixed_size 0
  .amdhsa_kernarg_size 96
  .amdhsa_user_sgpr_count 2
  .amdhsa_user_sgpr_kernarg_segment_ptr 1
  .amdhsa_system_sgpr_workgroup_id_x 1
  .amdhsa_float_denorm_mode_32 3
.end_amdhsa_kernel
"""
    open(out, "w").write(txt)

if __name__ == "__main__":
    if "--diag" in sys.argv:
        sys.argv.remove("--diag"); mcommon.STAMPS = True
    while "--opt" in sys.argv:
        i = sys.argv.index("--opt"); kk, vv = sys.argv[i + 1].split("="); mcommon.OPT[kk] = vv; del sys.argv[i:i + 2]
    build(sys.argv[1])
```

```python
from mcommon import *
import mcommon

LDS_WR = 81920
LDS_KVW = 131072
LDS_Q = LDS_WR + 2 * 12288
LDS_PS = 49152
LDS_MISC = 155648
QSCALE = 20 ** -0.5 * LOG2E
SAFE_V = 2.0 ** 30
CA_INIT = (104, 136)


def phase1(a, young_tail):
    XR, T8, SUB = 16, 62, 63
    a(f"""
s_cmp_ge_u32 s2, 256
s_cbranch_scc1 L_end
s_load_dwordx8 s[36:43], s[0:1], 0
s_load_dwordx4 s[56:59], s[0:1], 80
s_load_dwordx2 s[44:45], s[0:1], 32
s_load_dwordx8 s[48:55], s[0:1], 48
v_lshrrev_b32 v1, 6, v0
v_and_b32 v{LANE}, 63, v0
v_readfirstlane_b32 s{S_W}, v1
s_and_b32 s60, s2, 7
s_lshr_b32 s61, s2, 3
s_lshl_b32 s{S_RB}, s60, 2
s_and_b32 s62, s61, 3
s_add_u32 s{S_RB}, s{S_RB}, s62
s_lshr_b32 s{S_CB}, s61, 2
s_lshl_b32 s{S_IDX}, s60, 5
s_add_u32 s{S_IDX}, s{S_IDX}, s61
s_lshr_b32 s{S_HALF}, s{S_W}, 2
s_and_b32 s{S_P}, s{S_W}, 3
s_lshl_b32 s{S_HEAD}, s{S_CB}, 2
s_add_u32 s{S_HEAD}, s{S_HEAD}, s{S_P}
s_and_b32 s62, s60, 1
s_lshl_b32 s62, s62, 3
s_and_b32 s63, s61, 7
s_add_u32 s{S_RB2}, s62, s63
s_lshr_b32 s62, s60, 1
s_lshl_b32 s62, s62, 2
s_lshr_b32 s63, s61, 3
s_add_u32 s{S_FB}, s62, s63
v_lshlrev_b32 v{VL16}, 4, v{LANE}
s_mul_i32 s32, s{S_CB}, 160
s_lshl_b32 s60, s{S_RB}, 6
s_lshl_b32 s61, s{S_W}, 3
s_add_u32 s60, s60, s61
v_lshrrev_b32 v{T8}, 3, v{LANE}
v_and_b32 v{SUB}, 7, v{LANE}
v_add_u32 v5, s60, v{T8}
v_mul_u32_u24 v5, 1280, v5
v_lshl_add_u32 v5, v{SUB}, 4, v5
s_waitcnt lgkmcnt(0)""")
    a.stamp(0)
    a.stamp(1, True)
    a.srd(XS, P_X, 2048 * 1280)
    a.srd(WS, P_WS, WS_USED)
    a(f"""
s_and_b32 s60, s{S_IDX}, 31
s_lshl_b32 s60, s60, 3
s_add_u32 s35, s60, s{S_W}
s_cmp_lg_u32 s35, {31 * 8 + 4}
s_cbranch_scc1 L_p1_noclear
s_lshr_b32 s61, s{S_IDX}, 5
s_mul_i32 s60, s61, {FLG_BYTES // 8}
s_add_u32 s60, s60, {FLG}
s_add_u32 s62, s60, 4096
v_mov_b32 v180, 0
v_mov_b32 v181, 0
v_mov_b32 v182, 0
v_mov_b32 v183, 0""")
    for i in range(6):
        a(f"buffer_store_dwordx4 v[180:183], v{VL16}, s[{WS}:{WS + 3}], s{60 if i < 4 else 62} offen offset:{1024 * (i % 4)} sc1")
    a("L_p1_noclear:")
    xaux = " nt" if mcommon.OPT.get("xnt", "1") == "1" else ""
    for i in range(10):
        a(f"buffer_load_dwordx4 {vr(XR + 4 * i, 4)}, v5, s[{XS}:{XS + 3}], 0 offen offset:{128 * i}{xaux}")
    a(f"""
s_cmp_eq_u32 s{S_CB}, 1
s_cselect_b32 s{P_WK}, s{P_WV}, s{P_WK}
s_cselect_b32 s{P_WK + 1}, s{P_WV + 1}, s{P_WK + 1}""")
    a.srd(KS, P_WK, 640 * 40)
    a(f"""
s_lshl_b32 s66, s{S_W}, 12
s_min_u32 s65, s66, 25600
s_add_u32 s65, s65, {LDS_KVW}
s_cmp_ge_u32 s{S_CB}, 2
s_cselect_b32 s66, {OOB}, s66""")
    if mcommon.OPT.get("xbar", "0") == "1":
        a("s_barrier")
    for i in range(4):
        a.dma(VL16, KS, "s66", "s65" if i == 0 else None, imm=1024 * i)
    a.srd(TS, P_WQ, 640 * 1280)
    a.srd(DS, P_DBG, 256)

    def w_voffs(sbase):
        for i in range(3):
            a(f"""
v_add_u32 v6, s{sbase}, v{LANE}
v_add_u32 v6, {64 * i}, v6
v_mul_u32_u24 v7, 43691, v6
v_lshrrev_b32 v7, 19, v7
v_mul_u32_u24 v8, 12, v7
v_sub_u32 v8, v6, v8
v_mul_u32_u24 v7, 1280, v7
v_lshl_add_u32 v{9 + i}, v8, 4, v7""")

    a(f"""
s_mul_i32 s61, s{S_W}, 192
s_mul_i32 s63, s{S_W}, 3072
s_add_u32 s63, s63, {LDS_WR}
s_add_u32 s64, s32, {128 * 1280}""")
    w_voffs(61)
    for dc in range(2):
        for i in range(3):
            a(f"s_add_u32 m0, s63, {dc * 24576 + i * 1024}\ns_nop 0")
            a(f"buffer_load_dwordx4 v{9 + i}, s[{TS}:{TS + 3}], s{32 if dc == 0 else 64} offen lds")
    SA, SB, QA, QB, RS, NB = 56, 57, 58, 59, 60, 61
    a(f"""
v_mov_b32 v{SA}, 0
v_mov_b32 v{SB}, 0
v_mov_b32 v{QA}, 0
v_mov_b32 v{QB}, 0
s_mov_b32 s67, 0x3f803f80
s_mul_i32 s60, s{S_HALF}, 40960
s_lshl_b32 s61, s{S_P}, 7
s_add_u32 s60, s60, s61
v_xor_b32 v6, v{T8}, v{SUB}
v_lshlrev_b32 v6, 4, v6
v_lshlrev_b32 v7, 9, v{SUB}
v_add3_u32 v13, v6, v7, s60""")
    for i in range(10):
        a(f"s_waitcnt vmcnt({19 - i})")
        if i == 0:
            a.stamp(2)
        for j in range(4):
            r = XR + 4 * i + j
            s, q = (SA, QA) if j % 2 == 0 else (SB, QB)
            a(f"v_dot2_f32_bf16 v{s}, v{r}, s67, v{s}")
            a(f"v_dot2_f32_bf16 v{q}, v{r}, v{r}, v{q}")
    a.stamp(3)
    a(f"""
s_cmp_lg_u32 s35, {31 * 8 + 4}
s_cbranch_scc1 L_p1_noreport
s_lshr_b32 s61, s{S_IDX}, 5
s_lshl_b32 s61, s61, 2""")
    a.set_flag(180, 181, DS, "s61")
    a(f"""
L_p1_noreport:
s_nop 2
v_add_f32 v{SA}, v{SA}, v{SB}
v_add_f32 v{QA}, v{QA}, v{QB}""")
    for m in ("quad_perm:[1,0,3,2]", "quad_perm:[2,3,0,1]", "row_half_mirror"):
        a(f"""
s_nop 1
v_add_f32_dpp v{SA}, v{SA}, v{SA} {m} row_mask:0xf bank_mask:0xf
v_add_f32_dpp v{QA}, v{QA}, v{QA} {m} row_mask:0xf bank_mask:0xf""")
    a(f"""
s_nop 0
v_mul_f32 v{SA}, {f32(1 / 640)}, v{SA}
v_mul_f32 v{QA}, {f32(1 / 640)}, v{QA}
v_fma_f32 v{QA}, -v{SA}, v{SA}, v{QA}
v_max_f32 v{QA}, 0, v{QA}
v_add_f32 v{QA}, {f32(1e-5)}, v{QA}
v_rsq_f32 v{RS}, v{QA}
s_nop 0
v_mul_f32 v{NB}, v{SA}, v{RS}
v_sub_f32 v{NB}, 0, v{NB}""")
    TN = [64, 72]

    def unpack(i):
        for j in range(4):
            r, t = XR + 4 * i + j, TN[i % 2] + 2 * j
            a(f"v_lshlrev_b32 v{t}, 16, v{r}\nv_and_b32 v{t + 1}, 0xffff0000, v{r}")

    unpack(0)
    for i in range(10):
        for j in range(4):
            t = TN[i % 2] + 2 * j
            a(f"v_pk_fma_f32 v[{t}:{t + 1}], v[{t}:{t + 1}], v[{RS}:{RS + 1}], v[{RS}:{RS + 1}] op_sel:[0,0,1] op_sel_hi:[1,0,1]")
        if i < 9:
            unpack(i + 1)
        for j in range(4):
            t = TN[i % 2] + 2 * j
            a(f"v_cvt_pk_bf16_f32 v{XR + 4 * i + j}, v{t}, v{t + 1}")
        a(f"ds_write_b128 v13, {vr(XR + 4 * i, 4)} offset:{4096 * i}")
    a.stamp(4)
    BA, WA, KA, H, TOK = 96, 8, 14, 176, 177
    ACC0, ACC1, BUF = 16, 32, 48
    S_WN, S_WM = 33, 34
    a(f"""
s_and_b32 s{S_WN}, s{S_W}, 1
s_bfe_u32 s{S_WM}, s{S_W}, 0x10001
v_lshrrev_b32 v{H}, 5, v{LANE}
v_and_b32 v{TOK}, 31, v{LANE}
s_mul_i32 s60, s{S_WN}, 40960
v_and_b32 v12, 24, v{TOK}
v_and_b32 v13, 7, v{TOK}
v_lshlrev_b32 v86, 9, v{H}""")
    for q in range(4):
        a(f"""
v_or_b32 v15, {2 * q}, v{H}
v_xor_b32 v15, v15, v13
v_or_b32 v15, v15, v12
v_lshl_add_u32 v15, v15, 4, v86
v_add_u32 v15, s60, v15
v_add_u32 v{BA + q}, {1024 * q}, v15""")
    a(f"""
v_bfe_u32 v12, v{LANE}, 2, 2
v_lshl_add_u32 v12, v{H}, 3, v12
v_bfe_u32 v13, v{LANE}, 4, 1
v_lshlrev_b32 v13, 5, v13
v_and_b32 v15, 3, v{LANE}
v_lshl_add_u32 v13, v15, 3, v13
v_mul_u32_u24 v15, 192, v12
v_add_u32 v15, v15, v13
s_lshl_b32 s60, s{S_WM}, 7
s_add_u32 s60, s60, {LDS_WR}
v_add_u32 v{WA}, s60, v15
v_mul_u32_u24 v15, 40, v12
v_add_u32 v15, v15, v13
v_add_u32 v{KA}, {LDS_KVW}, v15""")
    WREG = 100
    seq = []

    def wload(c):
        a(f"s_add_u32 s69, s32, {c * 64 * 1280}")
        for i in range(3):
            a(f"buffer_load_dwordx4 {vr(WREG + 4 * (3 * (c - 4) + i), 4)}, v{9 + i}, s[{TS}:{TS + 3}], s69 offen")
            seq.append(("w", c))

    def kv_first(kind):
        a(f"""
s_add_u32 s60, s{S_W}, 4
s_bfe_u32 s35, s60, 0x20001
s_mul_i32 s61, s35, 6400
v_add_u32 v12, s61, v{KA}
s_lshr_b32 s62, s35, 1
s_mul_i32 s62, s62, 20480
s_and_b32 s63, s35, 1
s_mul_i32 s63, s63, 8192
s_add_u32 s62, s62, s63""")
        a(f"s_bitcmp1_b32 s35, 0\ns_cbranch_scc1 L_kv_odd_{kind}")
        for odd in range(2):
            a(f"v_add_u32 v{88 + 0}, s62, v{BA + (2 * odd) % 4}\nv_add_u32 v89, s62, v{BA + (2 * odd + 1) % 4}")
            a(f"v_add_u32 v90, s62, v{BA + (2 * odd + 2) % 4}\nv_add_u32 v91, s62, v{BA + (2 * odd + 3) % 4}")

            def rd(s):
                pos = 2 * odd + s
                b = BUF + 8 * (s % 5)
                return [f"ds_read_b128 {vr(b + 4, 4)}, v{88 + s % 4} offset:{(pos // 4) * 4096}",
                        f"ds_read_b64_tr_b16 {vr(b, 2)}, v12 offset:{s * 640}",
                        f"ds_read_b64_tr_b16 {vr(b + 2, 2)}, v12 offset:{s * 640 + 160}"]
            for s in range(5):
                for x in rd(s):
                    a(x)
            for s in range(10):
                b = BUF + 8 * (s % 5)
                a(f"s_waitcnt lgkmcnt({3 * min(4, 9 - s)})")
                c0 = "0" if s == 0 else ACC1
                a(mfma(ACC1, b, b + 4, c0) if kind[0] == "k" else mfma(ACC1, b + 4, b, c0))
                if s + 5 < 10:
                    for x in rd(s + 5):
                        a(x)
            if odd == 0:
                a(f"s_branch L_kv_sum_{kind}\nL_kv_odd_{kind}:")
        a(f"""
L_kv_sum_{kind}:
s_sub_u32 s61, s35, 1
s_lshl_b32 s61, s61, 1
s_add_u32 s61, s61, s{S_WN}
s_lshl_b32 s61, s61, 12
s_add_u32 s61, s61, {LDS_KVW}
v_add_u32 v12, s61, v{VL16}
s_cmp_eq_u32 s35, 0
s_nop 7
s_barrier
s_cbranch_scc1 L_kv_keep_{kind}""")
        for j in range(4):
            a(f"ds_write_b128 v12, {vr(ACC1 + 4 * j, 4)} offset:{1024 * j}")
        a(f"s_waitcnt lgkmcnt(0)\nL_kv_keep_{kind}:\ns_barrier")

    def kv_finish(kind):
        p1 = [f"s_lshl_b32 s61, s{S_WN}, 12", f"s_add_u32 s61, s61, {LDS_KVW}", f"v_add_u32 v12, s61, v{VL16}"]
        for q in range(3):
            p1 += [f"ds_read_b128 {vr(48 + 16 * (q % 2) + 4 * j, 4)}, v12 offset:{8192 * q + 1024 * j}" for j in range(4)]
            if q == 1:
                p1.append("s_waitcnt lgkmcnt(4)")
                p1 += [f"v_add_f32 v{ACC1 + j}, v{ACC1 + j}, v{48 + j}" for j in range(16)]
        p1.append("s_waitcnt lgkmcnt(0)")
        p1 += [f"v_add_f32 v{64 + j}, v{64 + j}, v{48 + j}" for j in range(16)]
        p1 += [f"v_add_f32 v{ACC1 + j}, v{ACC1 + j}, v{64 + j}" for j in range(16)]
        p1 += f"""s_lshl_b32 s64, s{S_RB}, 1
s_add_u32 s64, s64, s{S_WN}
s_mul_i32 s65, s64, 3072
s_add_u32 s65, s65, {KV}
s_lshl_b32 s64, s64, 2
s_add_u32 s64, s64, {KN}""".split("\n")
        if kind == "k":
            p1 += [f"v_cvt_pk_bf16_f32 v{48 + j}, v{ACC1 + 2 * j}, v{ACC1 + 2 * j + 1}" for j in range(6)]
            p1 += f"""buffer_store_dwordx4 v[48:51], v{VL16}, s[{WS}:{WS + 3}], s65 offen sc1
v_lshrrev_b32 v12, 4, v{TOK}
v_lshlrev_b32 v12, 9, v12
v_and_b32 v13, 15, v{TOK}
v_lshl_add_u32 v12, v13, 3, v12
v_add_u32 v12, {1024 + 336}, v12
v_lshl_add_u32 v12, v{H}, 30, v12
v_cmp_eq_u32 s[66:67], 0, v{H}
buffer_store_dwordx2 v[52:53], v12, s[{WS}:{WS + 3}], s65 offen sc1""".split("\n")
            b = Asm("")
            b(f"v_mul_f32 v56, v{ACC1 + 8}, v{ACC1 + 8}")
            for j in range(9, 12):
                b(f"v_fmac_f32 v56, v{ACC1 + j}, v{ACC1 + j}")
            b("v_cndmask_b32 v56, 0, v56, s[66:67]")
            for j in range(8):
                b(f"v_fmac_f32 v56, v{ACC1 + j}, v{ACC1 + j}")
            b.half_sum(56, 57)
            nst = 2
        else:
            p1 += f"""v_cmp_gt_u32 s[66:67], 20, v{TOK}
v_cmp_eq_u32 s[68:69], 20, v{TOK}
v_mov_b32 v57, 0x3f803f80""".split("\n")
            p1 += [f"v_cvt_pk_bf16_f32 v{48 + j}, v{ACC1 + 2 * j}, v{ACC1 + 2 * j + 1}" for j in range(8)]
            p1.append("v_cndmask_b32 v57, 0, v57, s[68:69]")
            p1 += [f"v_cndmask_b32 v{48 + j}, v57, v{48 + j}, s[66:67]" for j in range(8)]
            p1 += f"""buffer_store_dwordx4 v[52:55], v{VL16}, s[{WS}:{WS + 3}], s65 offen offset:2048 sc1
s_mov_b32 exec_lo, 0x001fffff
s_mov_b32 exec_hi, 0x001fffff
buffer_store_dwordx4 v[48:51], v{VL16}, s[{WS}:{WS + 3}], s65 offen offset:1024 sc1
s_mov_b64 exec, -1""".split("\n")
            b = Asm("")
            b(f"v_max3_f32 v56, |v{ACC1}|, |v{ACC1 + 1}|, |v{ACC1 + 2}|")
            for j in range(3, 15, 2):
                b(f"v_max3_f32 v56, |v{ACC1 + j}|, |v{ACC1 + j + 1}|, v56")
            b(f"v_max_f32 v56, |v{ACC1 + 15}|, v56\nv_cndmask_b32 v56, 0, v56, s[66:67]")
            nst = 2
        b.wave_max(56)
        b(f"""
v_mov_b32 v12, 0
s_mov_b32 exec_lo, 0
s_mov_b32 exec_hi, 0x80000000
buffer_store_dword v56, v12, s[{WS}:{WS + 3}], s64 offen{'' if kind == 'k' else ' offset:256'} sc1
s_mov_b64 exec, -1""")
        return p1, nst, [x.strip() for x in b.lines]

    def ring(kind):
        sq = list(seq)
        pieces = kv_finish(kind) if kind else None
        kd = int(mcommon.OPT.get("kvdrain", 4))

        def wait_for(tag):
            last = max(i for i, x in enumerate(sq) if x == tag)
            a(f"s_waitcnt vmcnt({len(sq) - 1 - last})")

        def more(c):
            a(f"s_add_u32 s69, s32, {c * 64 * 1280}")
            for i in range(3):
                a(f"buffer_load_dwordx4 {vr(WREG + 4 * (3 * (c - 4) + i), 4)}, v{9 + i}, s[{TS}:{TS + 3}], s69 offen")
                sq.append(("w", c))

        def cleared():
            ok = a.fresh("clr")
            wait_for("clr")
            a(f"""
v_cmp_gt_u32 s[60:61], 8, v{LANE}
v_cmp_ne_u32 vcc, 1, v8
s_nop 4
s_and_b64 s[60:61], vcc, s[60:61]
s_cbranch_scc0 {ok}""")
            a.poll(7, 8, DS, "0", 8)
            a(f"{ok}:")

        more(6)
        if pieces:
            for x in pieces[0]:
                a(x)
            sq.extend(["st"] * pieces[1])
        for k in range(2, 10):
            if pieces and k == kd:
                wait_for("st")
            a("s_barrier")
            if pieces and k == kd:
                cleared()
                a(f"""
s_lshl_b32 s61, s{S_RB}, 1
s_add_u32 s61, s61, s{S_CB}
s_lshl_b32 s61, s61, 7
s_add_u32 s61, s61, {KVFLG}
v_mov_b32 v12, 0
v_mov_b32 v13, 1
s_cmp_eq_u32 s{S_W}, 4
s_cselect_b32 exec_lo, 1, 0
s_mov_b32 exec_hi, 0
buffer_store_dword v13, v12, s[{WS}:{WS + 3}], s61 offen sc1
s_mov_b64 exec, -1""")
                sq.append("flag")
                a.stamp(57)
            c = k + 2
            if c < 10:
                wait_for(("w", c))
                for i in range(3):
                    a(f"ds_write_b128 v6, {vr(WREG + 4 * (3 * (c - 4) + i), 4)} offset:{(c % 4) * 12288 + i * 1024}")
            if k == 2:
                a(f"buffer_load_dword v8, v7, s[{DS}:{DS + 3}], 0 offen sc1")
                sq.append("clr")
                if pieces:
                    for x in pieces[2]:
                        a(x)
                    sq.append("st")
            if k + 5 < 10:
                more(k + 5)
            if c < 10:
                a("s_waitcnt lgkmcnt(0)")
        if not pieces:
            cleared()
        a("s_branch L_p1_ring_done")

    a(f"""
s_cmp_lt_u32 s{S_W}, 4
s_cbranch_scc1 L_p1_compute""")
    a(f"s_mul_i32 s61, s{S_P}, 192")
    w_voffs(61)
    wload(4)
    wload(5)
    a(f"""
s_mul_i32 s60, s{S_P}, 3072
s_add_u32 s60, s60, {LDS_WR}
v_add_u32 v6, s60, v{VL16}
v_lshlrev_b32 v7, 2, v{LANE}
s_waitcnt vmcnt(6) lgkmcnt(0)""")
    a.stamp(56)
    a(f"""
s_cmp_ge_u32 s{S_CB}, 2
s_cbranch_scc1 L_p1_ld_plain
s_barrier
s_cmp_eq_u32 s{S_CB}, 0
s_cbranch_scc0 L_p1_ld_v""")
    kv_first("k")
    a(f"s_cmp_ge_u32 s{S_W}, 6\ns_cbranch_scc1 L_p1_ring_n")
    ring("k")
    a("L_p1_ld_v:")
    kv_first("v")
    a(f"s_cmp_ge_u32 s{S_W}, 6\ns_cbranch_scc1 L_p1_ring_n")
    ring("v")
    a("L_p1_ld_plain:\ns_barrier\nL_p1_ring_n:")
    ring(None)
    a("L_p1_ring_done:")
    young_tail(a)
    a(f"""
L_p1_compute:
s_waitcnt vmcnt(0) lgkmcnt(0)
s_barrier""")
    a.stamp(5)
    a(f"""
s_cmp_ge_u32 s{S_CB}, 2
s_cbranch_scc1 L_p1_q
s_cmp_eq_u32 s{S_CB}, 0
s_cbranch_scc0 L_p1_cv""")
    kv_first("k2")
    a("s_branch L_p1_q\nL_p1_cv:")
    kv_first("v2")
    a("L_p1_q:")
    a.stamp(27)
    for r in range(*CA_INIT):
        a(f"v_mov_b32 v{r}, 0")
    a(f"""
s_cmp_eq_u32 s{S_WM}, 0
s_cbranch_scc0 L_p1_mq""")

    def reads(s, kind):
        b = BUF + 12 * (s % 4)
        c, sg = divmod(s, 4)
        wo = (c % 4) * 12288 + sg * 3072
        out = [f"ds_read_b128 {vr(b + 8, 4)}, v{BA + s % 4} offset:{c * 4096}",
               f"ds_read_b64_tr_b16 {vr(b, 2)}, v{WA} offset:{wo}",
               f"ds_read_b64_tr_b16 {vr(b + 2, 2)}, v{WA} offset:{wo + 768}"]
        if kind == "m01":
            out += [f"ds_read_b64_tr_b16 {vr(b + 4, 2)}, v{WA} offset:{wo + 64}",
                    f"ds_read_b64_tr_b16 {vr(b + 6, 2)}, v{WA} offset:{wo + 64 + 768}"]
        return out

    def mainloop(kind):
        n = len(reads(0, kind))
        for x in reads(0, kind) + reads(1, kind):
            a(x)
        for s in range(40):
            b = BUF + 12 * (s % 4)
            a(f"s_waitcnt lgkmcnt({n if s < 39 else 0})")
            r = reads(s + 2, kind) if s + 2 < 40 else []
            if r and (s + 2) % 4 == 0 and s > 2:
                r = ["s_barrier"] + r
            c0, c1 = ("0", "0") if s == 0 else (ACC0, ACC1)
            if kind == "m01":
                a(mfma(ACC1, b + 4, b + 8, c1))
                for x in r[:len(r) - 2]:
                    a(x)
                r = r[len(r) - 2:]
            a(mfma(ACC0, b, b + 8, c0))
            for x in r:
                a(x)
        a.stamp(6)

    def qoff(cg):
        return (cg // 5) * 3072 + [0, 512, 8, 520, 1024][cg % 5]

    def qwrite(tiles):
        a(f"""
s_mul_i32 s60, s{S_WN}, 1536
v_lshl_add_u32 v12, v{TOK}, 4, s60
v_xor_b32 v13, 1, v{H}
s_mov_b32 s62, {f32(QSCALE)}
s_nop 7""")
        k = 0
        for acc, m, groups in tiles:
            for g in range(groups):
                lo, up = qoff(8 * m + 2 * g), qoff(8 * m + 2 * g + 1)
                base = min(lo, up)
                sel = H if up > lo else 13
                r = acc + 4 * g
                t = 4 + 2 * (k % 2)
                k += 1
                a(f"""
s_mov_b32 s61, {abs(up - lo)}
v_mul_f32 v{r}, s62, v{r}
v_mul_f32 v{r + 1}, s62, v{r + 1}
v_mul_f32 v{r + 2}, s62, v{r + 2}
v_mul_f32 v{r + 3}, s62, v{r + 3}
v_mad_u32_u24 v14, v{sel}, s61, v12
v_add_u32 v14, {LDS_Q + base}, v14
v_cvt_pk_bf16_f32 v{t}, v{r}, v{r + 1}
v_cvt_pk_bf16_f32 v{t + 1}, v{r + 2}, v{r + 3}
ds_write_b64 v14, {vr(t, 2)}""")

    mainloop("m01")
    qwrite([(ACC1, 1, 4), (ACC0, 0, 4)])
    a("s_branch L_p1_q_done\nL_p1_mq:")
    mainloop("q")
    qwrite([(ACC0, 2, 2)])
    a("L_p1_q_done:")
```

```python
from mcommon import *
import mcommon
from m1 import LDS_Q, LDS_PS, LDS_KVW, LDS_MISC, SAFE_V

SLOT_KV = 24576
X_OFF = 90112
KV_SLOT = [LDS_KVW, 0, SLOT_KV, X_OFF, 0, SLOT_KV, 0, SLOT_KV]
LDS_WO = 49152
SAFE_BOUND = 80.0 / 1.03
RES = 230

VA, VV0, VK4, H, TOK = 4, 5, 6, 8, 9
VAX, VV0X, VK4X = 28, 29, 30
VAR, VV0R, VK4R = 206, 207, 208
QA, QB = 16, 22
S0, S1 = 32, 48
P = 64
OA, OB = 72, 88
CA, CB = 104, 120
KB = [136, 142]
VB = [148, 156]
T = 164
S_SRC, S_DST, S_PSB = 32, 33, 34
S_PD, S_PS, S_PI, S_PE = 72, 82, 87, 88
V_PS, V_TR = 12, 13


def ps_setup(a):
    a(f"""
s_mul_i32 s{S_PSB}, s{S_P}, 10240
s_add_u32 s{S_PSB}, s{S_PSB}, {LDS_PS}
v_lshrrev_b32 v{V_PS}, 2, v{LANE}
v_and_b32 v15, 3, v{LANE}
v_lshlrev_b32 v{V_TR}, 6, v{V_PS}
v_lshl_add_u32 v{V_TR}, v15, 3, v{V_TR}
v_add_u32 v{V_TR}, s{S_PSB}, v{V_TR}
s_cmp_ge_u32 s{S_IDX}, 96
s_cbranch_scc1 L_ps_b
s_cmp_ge_u32 s{S_IDX}, 48
s_cselect_b32 s60, s{P_W3}, s{P_W1}
s_cselect_b32 s61, s{P_W3 + 1}, s{P_W1 + 1}
s_cselect_b32 s62, 48, 0
s_cselect_b32 s66, 1024, 0
s_mov_b32 s{KS + 2}, {640 * 3072}
s_mov_b32 s{S_PI}, {16 * 3072}
s_sub_u32 s62, s{S_IDX}, s62
s_lshl_b32 s63, s62, 6
s_mul_i32 s64, s{S_P}, {32 * 3072}
s_add_u32 s63, s63, s64
v_mul_u32_u24 v{V_PS}, 3072, v{V_PS}
s_add_u32 s66, s66, {W13F}""")
    for i in range(5):
        a(f"s_add_u32 s{S_PS + i}, s63, {128 * 3072 * i}")
    for tl in range(2):
        a(f"""
s_lshl_b32 s63, s62, 1
s_add_u32 s63, s63, {tl}
s_mul_i32 s64, s63, 43691
s_lshr_b32 s64, s64, 18
s_mul_i32 s65, s64, 6
s_sub_u32 s65, s63, s65
s_mul_i32 s64, s64, {21 * 12288}
s_lshl_b32 s65, s65, 11
s_add_u32 s64, s64, s65
s_add_u32 s64, s64, s66
s_add_u32 s{S_PE + tl}, s64, {20 * 12288}
s_mul_i32 s65, s{S_P}, 12288
s_add_u32 s64, s64, s65""")
        for i in range(5):
            a(f"s_add_u32 s{S_PD + 2 * i + tl}, s64, {4 * 12288 * i}")
    a(f"""
s_branch L_ps_go
L_ps_b:
s_mov_b32 s{S_PE}, {OOB}
s_mov_b32 s{S_PE + 1}, {OOB}
s_sub_u32 s62, s{S_IDX}, 96
s_and_b32 s63, s62, 1
s_lshr_b32 s62, s62, 1
s_mul_i32 s63, s63, 10
s_add_u32 s63, s63, s{S_P}
s_cmp_lt_u32 s{S_P}, 2
s_cselect_b32 s67, 3, 2
s_cmp_ge_u32 s{S_IDX}, 232
s_cselect_b32 s67, 0, s67
s_cmp_ge_u32 s62, 20
s_cbranch_scc1 L_ps_w2
s_mov_b32 s60, s{P_WO}
s_mov_b32 s61, s{P_WO + 1}
s_mov_b32 s{KS + 2}, {640 * 1280}
s_mul_i32 s66, s62, 5120
s_add_u32 s66, s66, {WOF}
s_mov_b32 s68, 102400
v_lshrrev_b32 v14, 2, v{V_PS}
v_and_b32 v{V_PS}, 3, v{V_PS}
s_cmp_ge_u32 s62, 16
s_cbranch_scc1 L_ps_rem
s_mul_i32 s64, s62, 40
s_mov_b32 s{S_PI}, {8 * 1280}
v_lshrrev_b32 v10, 1, v14
v_mul_u32_u24 v10, 20, v10
v_and_b32 v14, 1, v14
v_lshl_add_u32 v14, v14, 2, v10
v_add3_u32 v{V_PS}, v14, v{V_PS}, s64
s_branch L_ps_rows
L_ps_rem:
s_sub_u32 s64, s62, 16
s_mul_i32 s64, s64, 160
s_add_u32 s64, s64, 16
s_mov_b32 s{S_PI}, {20 * 1280}
v_mul_u32_u24 v14, 40, v14
v_add3_u32 v{V_PS}, v14, v{V_PS}, s64
s_branch L_ps_rows
L_ps_w2:
s_mov_b32 s60, s{P_W2}
s_mov_b32 s61, s{P_W2 + 1}
s_mov_b32 s{KS + 2}, {1536 * 1280}
s_sub_u32 s62, s62, 20
s_lshl_b32 s64, s62, 5
s_mov_b32 s{S_PI}, {16 * 1280}
v_add_u32 v{V_PS}, s64, v{V_PS}
s_mul_i32 s66, s62, 5120
s_add_u32 s66, s66, {W2F}
s_mov_b32 s68, 245760
L_ps_rows:
v_mul_u32_u24 v{V_PS}, 1280, v{V_PS}""")
    for i in range(5):
        a(f"""
s_add_u32 s62, s63, {4 * i}
s_lshl_b32 s64, s62, 6
s_cmp_gt_u32 s67, {i}
s_cselect_b32 s{S_PS + i}, s64, {OOB}""")
        for tl in range(2):
            a(f"""
s_lshl_b32 s64, s62, 1
s_add_u32 s64, s64, {tl}
s_mul_i32 s65, s64, 52429
s_lshr_b32 s65, s65, 18
s_mul_i32 s69, s65, 5
s_sub_u32 s64, s64, s69
s_mul_i32 s65, s65, s68
s_lshl_b32 s64, s64, 10
s_add_u32 s64, s64, s65
s_add_u32 s64, s64, s66
s_cmp_gt_u32 s67, {i}
s_cselect_b32 s{S_PD + 2 * i + tl}, s64, {OOB}""")
    a(f"""
L_ps_go:
s_mov_b32 s{KS}, s60
s_mov_b32 s{KS + 1}, s61
s_mov_b32 s{KS + 3}, {SRD3}
v_lshl_add_u32 v{V_PS}, v15, 4, v{V_PS}""")


def addresses(a):
    a(f"""
v_lshrrev_b32 v{H}, 5, v{LANE}
v_and_b32 v{TOK}, 31, v{LANE}
s_mul_i32 s60, s{S_HALF}, 12288
v_add_u32 v{VA}, s60, v{VL16}
v_cmp_lt_u32 s[62:63], 20, v{TOK}
v_add_u32 v14, 1024, v{VA}
s_add_u32 s61, s60, {1024 + 336}
v_cndmask_b32 v{VV0}, v{VA}, v14, s[62:63]
v_lshrrev_b32 v14, 4, v{TOK}
v_lshlrev_b32 v14, 9, v14
v_and_b32 v15, 15, v{TOK}
v_lshl_add_u32 v14, v15, 3, v14
v_add_u32 v{VK4}, s61, v14
v_add_u32 v{VAX}, {X_OFF}, v{VA}
v_add_u32 v{VV0X}, {X_OFF}, v{VV0}
v_add_u32 v{VK4X}, {X_OFF}, v{VK4}
v_add_u32 v{VAR}, {LDS_KVW}, v{VA}
v_add_u32 v{VV0R}, {LDS_KVW}, v{VV0}
v_add_u32 v{VK4R}, {LDS_KVW}, v{VK4}
s_mul_i32 s{S_DST}, s{S_P}, 3072
s_add_u32 s{S_SRC}, s{S_DST}, {KV}
s_mul_i32 s61, s{S_HALF}, 1536
s_add_u32 s62, s{S_DST}, s61
s_add_u32 s62, s62, {LDS_Q}
s_sub_u32 s63, s{S_DST}, s61
s_add_u32 s63, s63, {LDS_Q + 1536}
v_add_u32 v209, s62, v{VL16}
v_add_u32 v210, s63, v{VL16}
v_lshlrev_b32 v14, 4, v{TOK}
v_add_u32 v211, s62, v14
v_add_u32 v212, s63, v14
v_mov_b32 v7, {LDS_MISC}""")


def young_tail(a):
    addresses(a)
    ps_setup(a)
    for r in range(CA, CA + 32):
        a(f"v_mov_b32 v{r}, 0")
    a(f"""
v_lshlrev_b32 v14, 7, v{LANE}
v_lshlrev_b32 v11, 2, v{LANE}
s_mov_b32 s61, {KVFLG}""")
    a.poll(14, T, WS, "s61", 64)
    a.stamp(58)
    a(f"""
s_mov_b32 s62, {KN}
buffer_load_dword v14, v11, s[{WS}:{WS + 3}], s62 offen sc1
buffer_load_dword v15, v11, s[{WS}:{WS + 3}], s62 offen offset:256 sc1""")
    for g in stage_groups(0):
        for x in g:
            a(x)
    a(f"""
v_mov_b32 v{T + 3}, {f32(SAFE_V)}
s_waitcnt vmcnt(6)
v_cmp_nle_f32 s[66:67], v15, v{T + 3}""")
    a.wave_max(14)
    a(f"""
s_cmp_lg_u64 s[66:67], 0
s_cselect_b32 s62, 0x7f800000, 0
s_nop 0
v_readlane_b32 s63, v14, 63
s_nop 3
s_or_b32 s62, s62, s63
v_mov_b32 v14, s62
ds_write_b32 v7, v14
s_waitcnt vmcnt(0)""")
    a.stamp(59)
    a("s_branch L_p1_x2")


def stage_groups(t):
    out = []
    for hf in range(2):
        for i in range(3):
            g = [f"s_add_u32 m0, s{S_DST}, {KV_SLOT[t] + hf * 12288}",
                 f"s_add_u32 s61, s{S_SRC}, {t * 12288 + hf * 32 * 3072}"] if i == 0 else []
            o = f" offset:{1024 * i}" if i else ""
            out.append(g + [f"buffer_load_dwordx4 v{VL16}, s[{WS}:{WS + 3}], s61 offen{o} sc1 lds"])
    return out


def phase2(a, tail):
    addresses(a)
    a("""
L_p1_x2:
s_waitcnt lgkmcnt(0)
s_barrier""")
    a.stamp(8)

    def tile_reads(buf, off):
        if off >= LDS_KVW:
            va, vv, vk, off = VAR, VV0R, VK4R, off - LDS_KVW
        elif off >= X_OFF:
            va, vv, vk, off = VAX, VV0X, VK4X, off - X_OFF
        else:
            va, vv, vk = VA, VV0, VK4
        return [f"ds_read_b128 {vr(KB[buf], 4)}, v{va} offset:{off}",
                f"ds_read_b64 {vr(KB[buf] + 4, 2)}, v{vk} offset:{off}",
                f"ds_read_b128 {vr(VB[buf], 4)}, v{vv} offset:{off + 1024}",
                f"ds_read_b128 {vr(VB[buf] + 4, 4)}, v{va} offset:{off + 2048}"]

    a(f"""
ds_read_b128 {vr(QA, 4)}, v209
ds_read_b64 {vr(QA + 4, 2)}, v211 offset:1024
ds_read_b128 {vr(QB, 4)}, v210
ds_read_b64 {vr(QB + 4, 2)}, v212 offset:1024
ds_read_b32 v10, v7""")
    for x in tile_reads(0, KV_SLOT[0]):
        a(x)
    a(f"""
v_cmp_eq_u32 s[64:65], 0, v{H}
v_mov_b32 v14, 0
v_mov_b32 v15, 0
v_mov_b32 v{T + 2}, {f32(SAFE_BOUND ** 2)}
s_waitcnt lgkmcnt(4)""")
    for r in (QA + 4, QA + 5, QB + 4, QB + 5):
        a(f"v_cndmask_b32 v{r}, 0, v{r}, s[64:65]")
    for j in range(6):
        a(f"v_dot2_f32_bf16 v14, v{QA + j}, v{QA + j}, v14")
        a(f"v_dot2_f32_bf16 v15, v{QB + j}, v{QB + j}, v15")
    a("s_nop 2")
    a.half_sum(14, T)
    a.half_sum(15, T)
    a(f"""
v_max_f32 v14, v14, v15
v_mul_f32 v14, v10, v14
v_cmp_nle_f32 vcc, v14, v{T + 2}
s_nop 4
s_cbranch_vccnz L_truemax
L_att_start:
s_waitcnt lgkmcnt(0)
{mfma(S0, KB[0], QA, CA)}
{mfma8(S0, KB[0] + 4, QA + 4, S0)}
s_cmp_ge_u32 s{S_W}, 4
s_nop 7
s_nop 2
s_cbranch_scc1 L_att_young""")
    prio = mcommon.OPT.get("prio", "flip")

    def job(cur, nxt, q, c, kb, o_cur, v_cur, o_prev, v_prev, fill, first=False, last=False, fresh=False):
        def ex(g):
            for x in fill[g]:
                a(x)
        if not last:
            a(mfma(nxt, kb, q, c))
        for j in range(0, 4):
            a(f"v_exp_f32 v{cur + j}, v{cur + j}")
        if not first:
            a(mfma(o_prev, v_prev + 4, P + 4, o_prev))
        ex(0)
        for j in range(4, 8):
            a(f"v_exp_f32 v{cur + j}, v{cur + j}")
        a(mfma8(nxt, kb + 4, q + 4, nxt) if not last else "s_nop 0")
        ex(1)
        for j in range(0, 4):
            a(f"v_cvt_pk_bf16_f32 v{P + j}, v{cur + 2 * j}, v{cur + 2 * j + 1}")
        for j in range(8, 12):
            a(f"v_exp_f32 v{cur + j}, v{cur + j}")
        a(mfma(o_cur, v_cur, P, "0" if fresh else o_cur))
        ex(2)
        for j in range(12, 16):
            a(f"v_exp_f32 v{cur + j}, v{cur + j}")
        ex(3)
        for j in range(4, 8):
            a(f"v_cvt_pk_bf16_f32 v{P + j}, v{cur + 2 * j}, v{cur + 2 * j + 1}")

    def stream(svc, waits, stamps):
        for t in range(8):
            for u in range(4):
                b, nb = u % 2, (u + 1) % 2
                ja = 8 * t + 2 * u
                last = t == 7 and u == 3
                fa = [[], [], [], []]
                if u < 3:
                    r = tile_reads(nb, KV_SLOT[t] + (u + 1) * 3072)
                    fa = [r[0:2], [r[2]], [r[3]], []]
                elif not last:
                    r = tile_reads(nb, KV_SLOT[t + 1])
                    fa = [waits.get(t, []) + ["s_barrier"] + r[0:2], [r[2]], [r[3]], []]
                fa = [fa[g] + svc.get((ja, g), []) for g in range(4)]
                if prio == "flip":
                    a("s_setprio 1")
                job(S0, S1, QB, CB, KB[b], OA, VB[b], OB, VB[nb], fa, first=(ja == 0), fresh=(ja == 0))
                if prio == "flip":
                    a("s_setprio 0")
                if not last:
                    a("s_waitcnt lgkmcnt(0)")
                job(S1, S0, QA, CA, KB[nb], OB, VB[b], OA, VB[b], [svc.get((ja + 1, g), []) for g in range(4)], last=last, fresh=(ja == 0))
            if stamps and t in (0, 3):
                a.stamp(11 if t == 0 else 12)
        a(f"s_nop 0\n{mfma(OB, VB[1] + 4, P + 4, OB)}")

    def put(svc, j, g, ins):
        svc.setdefault((j, g), []).extend(ins)

    a.stamp(10)
    svc = {}
    def spread(svc, j0, groups, per_job=3):
        for k, g in enumerate(groups):
            put(svc, j0 + k // per_job, k % per_job, g)
        return j0 + (len(groups) + per_job - 1) // per_job

    spread(svc, 0, stage_groups(1) + stage_groups(2))
    spread(svc, 7, stage_groups(3))
    for t in range(2, 6):
        spread(svc, 8 * t + 7, stage_groups(t + 2))
    put(svc, 56, 3, f"""s_lshl_b32 s60, s{S_RB}, 6
s_lshl_b32 s61, s{S_W}, 4
s_add_u32 s60, s60, s61
v_and_b32 v10, 15, v{LANE}
v_add_u32 v10, s60, v10
v_mul_u32_u24 v10, 1280, v10
v_lshrrev_b32 v12, 4, v{LANE}
v_lshl_add_u32 v10, v12, 3, v10
s_mul_i32 s60, s{S_CB}, 160""".split("\n"))
    spread(svc, 57, [[f"buffer_load_dwordx2 {vr(RES + 2 * m, 2)}, v10, s[{XS}:{XS + 3}], s60 offen offset:{32 * m}"] for m in range(5)])
    stream(svc, {t: [f"s_waitcnt vmcnt({ {0: 6, 1: 6}.get(t, 0) })"] for t in range(7)}, True)
    a.stamp(13)
    a("s_branch L_att_done")

    a("L_att_young:")
    svc = {}
    jt = int(mcommon.OPT.get("touch_at", 6))
    jl = int(mcommon.OPT.get("ps_issue", 14))
    jp = int(mcommon.OPT.get("ps_proc", 20))
    put(svc, jt, 0, f"""s_lshl_b32 s60, s2, 2
s_add_u32 s60, s60, s{S_P}
s_mul_i32 s61, s60, {15 * 128}
v_lshlrev_b32 v10, 7, v{LANE}
v_add_u32 v15, s61, v10
s_mul_i32 s61, s60, {25 * 32}
v_add_u32 v14, s61, v10
v_and_b32 v14, 0xffffff80, v14""".split("\n"))
    put(svc, jt, 2, f"""s_mov_b64 exec, 0x7fff
global_load_dword v{T + 30}, v15, s[{P_W1}:{P_W1 + 1}]
global_load_dword v{T + 31}, v15, s[{P_W3}:{P_W3 + 1}]
global_load_dword v{T + 32}, v15, s[{P_W2}:{P_W2 + 1}]
s_mov_b64 exec, 0x7f
global_load_dword v{T + 33}, v14, s[{P_WO}:{P_WO + 1}]
s_mov_b64 exec, -1""".split("\n"))
    g = []
    for i in range(5):
        g.append([f"s_add_u32 m0, s{S_PSB}, {2048 * i}", f"s_add_u32 s61, s{S_PS + i}, s{S_PI}",
                  f"buffer_load_dwordx4 v{V_PS}, s[{KS}:{KS + 3}], s{S_PS + i} offen lds"])
        g.append([f"s_add_u32 m0, s{S_PSB}, {2048 * i + 1024}", "s_nop 0",
                  f"buffer_load_dwordx4 v{V_PS}, s[{KS}:{KS + 3}], s61 offen lds"])
    spread(svc, jl, g)
    CS, ONE = T + 16, T + 24
    put(svc, jp - 1, 3, [f"v_mov_b32 v{ONE}, 0x3f803f80", f"v_mov_b32 v{ONE + 1}, 0x3f803f80"])
    assert jl + 3 < jp
    for i in range(5):
        ja = jp + 2 * i
        put(svc, ja, 1, ["s_waitcnt vmcnt(8)"])
        r = T + 8 * (i % 2)
        for tl in range(2):
            put(svc, ja, 2 + tl, [f"ds_read_b64_tr_b16 {vr(r + 4 * tl, 2)}, v{V_TR} offset:{2048 * i + 32 * tl}",
                                  f"ds_read_b64_tr_b16 {vr(r + 4 * tl + 2, 2)}, v{V_TR} offset:{2048 * i + 32 * tl + 1024}"])
            cs = CS + 4 * tl
            c0 = "0" if i == 0 else vr(cs, 4)
            put(svc, ja + 1, 2 * tl, [f"v_mfma_f32_4x4x4_16b_bf16 {vr(cs, 4)}, {vr(ONE, 2)}, {vr(r + 4 * tl, 2)}, {c0}",
                                      f"buffer_store_dwordx4 {vr(r + 4 * tl, 4)}, v{VL16}, s[{WS}:{WS + 3}], s{S_PD + 2 * i + tl} offen sc1"])
            put(svc, ja + 1, 2 * tl + 1, [f"v_mfma_f32_4x4x4_16b_bf16 {vr(cs, 4)}, {vr(ONE, 2)}, {vr(r + 4 * tl + 2, 2)}, {vr(cs, 4)}"])
    jf = jp + 10
    fin = []
    for tl in range(2):
        c, t1, o = CS + 4 * tl, T + 26 + tl, T + 4 * tl
        for width in (32, 16):
            fin += [[f"v_mov_b32 v{t1}, v{c}"], [f"v_permlane{width}_swap_b32 v{c}, v{t1}"], [f"v_add_f32 v{c}, v{c}, v{t1}"]]
        fin += [[f"v_cvt_pk_bf16_f32 v{o}, v{c}, v{c}", f"v_mov_b32 v{o + 2}, 0"],
                [f"v_and_b32 v{t1}, 0xffff0000, v{o}", f"v_sub_f32 v{t1}, v{c}, v{t1}"],
                [f"v_cvt_pk_bf16_f32 v{o + 1}, v{t1}, v{o + 2}", f"v_mov_b32 v{o + 3}, 0"]]
    fin += [[f"v_lshrrev_b32 v10, 4, v{LANE}", f"v_cmp_ne_u32 vcc, s{S_P}, v10"],
            ["v_cndmask_b32 v10, 0, 1, vcc", f"v_lshl_add_u32 v10, v10, 30, v{VL16}"],
            [f"buffer_store_dwordx4 {vr(T + 4 * tl, 4)}, v10, s[{WS}:{WS + 3}], s{S_PE + tl} offen sc1" for tl in range(2)]]
    fin = [fin[k] + fin[9 + k] for k in range(9)] + fin[18:]
    for k, g in enumerate(fin):
        put(svc, jf + k // 4, k % 4, g)
    tf = (jf + (len(fin) - 1) // 4 + 2) // 8
    jg = 8 * tf + 6
    put(svc, jg, 3, f"""s_lshl_b32 s60, s{S_IDX}, 2
s_add_u32 s60, s60, {PSFLG}
v_mov_b32 v10, 0
v_mov_b32 v14, 1
s_cmp_eq_u32 s{S_P}, 0
s_cselect_b32 exec_lo, 1, 0
s_mov_b32 exec_hi, 0
buffer_store_dword v14, v10, s[{WS}:{WS + 3}], s60 offen sc1
s_mov_b64 exec, -1""".split("\n"))
    jc = jg + int(mcommon.OPT.get("ps_gap", 5))
    put(svc, jc, 3, [f"s_mov_b32 s62, {PSFLG}",
                     f"buffer_load_dwordx4 {vr(T, 4)}, v{VL16}, s[{WS}:{WS + 3}], s62 offen sc1"])
    put(svc, jc + 3, 3, f"""s_waitcnt vmcnt(0)
v_and_b32 v{T}, v{T}, v{T + 1}
v_and_b32 v{T + 2}, v{T + 2}, v{T + 3}
v_and_b32 v{T}, v{T}, v{T + 2}
v_cmp_ne_u32 vcc, 1, v{T}
s_mul_i32 s60, s{S_P}, 25600
s_mul_i32 s61, s{S_CB}, 102400
s_add_u32 s61, s61, s60
s_add_u32 s63, s61, {WOF}
s_add_u32 s64, s60, {LDS_WO}
s_cbranch_vccnz L_ps_wait
L_ps_ready:""".split("\n"))
    j = jc + 4
    assert j >= 32, "the start-up K/V slots must be free"
    g = []
    for i in range(25):
        pre = [f"s_add_u32 m0, s64, {4096 * (i // 4)}", f"s_add_u32 s61, s63, {4096 * (i // 4)}"] if i % 4 == 0 else []
        o = f" offset:{1024 * (i % 4)}" if i % 4 else ""
        g.append(pre + [f"buffer_load_dwordx4 v{VL16}, s[{WS}:{WS + 3}], s61 offen{o} sc1 lds"])
    j = spread(svc, j, g, int(mcommon.OPT.get("wo_per", 3)))
    assert j < 62
    put(svc, j, 3, f"""s_lshr_b32 s60, s{S_FB}, 2
s_mul_i32 s60, s60, {4 * 21 * 12288}
s_and_b32 s61, s{S_IDX}, 31
s_lshl_b32 s61, s61, 2
s_add_u32 s61, s61, s{S_P}
s_mul_i32 s61, s61, {63 * 128}
s_add_u32 s60, s60, s61
s_add_u32 s60, s60, {W13F}
v_lshlrev_b32 v10, 7, v{LANE}
buffer_load_dword v{T + 8}, v10, s[{WS}:{WS + 3}], s60 offen sc1""".split("\n"))
    abl = mcommon.OPT.get("abl", "")
    if "p" in abl:
        svc = {k: v for k, v in svc.items() if k[0] >= jg}
    if "w" in abl:
        svc = {k: v for k, v in svc.items() if k[0] <= jc + 3}
    if "t" in abl:
        svc = {k: v for k, v in svc.items() if k[0] != jt}
    if "s" in abl:
        svc = {k: [x for x in v if "buffer_store_dwordx4" not in x] for k, v in svc.items()}
    print('re-layout schedule: fin', jf, 'flag', jg, 'check', jc, 'wo end', j)
    stream(svc, {tf: ["s_waitcnt vmcnt(0)"]}, False)
    a(f"""
L_att_done:
s_mul_i32 s60, s{S_W}, 3072
s_xor_b32 s61, s{S_W}, 4
s_mul_i32 s61, s61, 3072
v_add_u32 v10, s60, v{VL16}
v_add_u32 v11, s61, v{VL16}
s_lshl_b32 s62, s{S_RB}, 1
s_add_u32 s62, s62, s{S_HALF}
s_lshl_b32 s35, s{S_RB}, 7
s_lshl_b32 s63, s{S_CB}, 2
s_add_u32 s35, s35, s63
s_add_u32 s35, s35, {OFLG}
s_mul_i32 s62, s62, 40960
s_add_u32 s62, s62, {OF}
s_lshl_b32 s63, s{S_HEAD}, 9
s_add_u32 s63, s63, s62
s_lshr_b32 s64, s{S_HEAD}, 3
s_add_u32 s64, s64, 16
s_lshl_b32 s64, s64, 10
s_add_u32 s64, s64, s62
s_bfe_u32 s65, s{S_HEAD}, 0x20001
s_lshl_b32 s65, s65, 8
s_add_u32 s64, s64, s65
s_and_b32 s65, s{S_HEAD}, 1
s_lshl_b32 s65, s65, 3
s_add_u32 s64, s64, s65
v_lshrrev_b32 v12, 4, v{TOK}
v_mul_u32_u24 v12, 20480, v12
v_and_b32 v13, 15, v{TOK}
v_lshl_add_u32 v12, v13, 4, v12
v_lshl_add_u32 v13, v{H}, 8, v12
v_lshl_add_u32 v12, v{H}, 30, v12""")
    for j in range(3):
        a(f"ds_write_b128 v10, {vr(OB + 4 * j, 4)} offset:{1024 * j}")
    a("s_waitcnt lgkmcnt(0)\ns_barrier")
    a.stamp(30)
    for j in range(3):
        a(f"ds_read_b128 {vr(T + 12 + 4 * j, 4)}, v11 offset:{1024 * j}")
    a("s_waitcnt lgkmcnt(0)")
    for j in range(12):
        a(f"v_add_f32 v{OA + j}, v{OA + j}, v{T + 12 + j}")
    a(f"""
v_mov_b32 v14, v{OA + 8}
v_mov_b32 v15, v{OA + 8}
s_nop 1
v_permlane32_swap_b32 v14, v15
s_nop 1
v_rcp_f32 v15, v15
s_nop 0""")
    for j in range(12):
        a(f"v_mul_f32 v{OA + j}, v{OA + j}, v15")
    for j in range(6):
        a(f"v_cvt_pk_bf16_f32 v{T + j}, v{OA + 2 * j}, v{OA + 2 * j + 1}")
    a(f"""
buffer_store_dwordx4 {vr(T, 4)}, v13, s[{WS}:{WS + 3}], s63 offen sc1
buffer_store_dwordx2 {vr(T + 4, 2)}, v12, s[{WS}:{WS + 3}], s64 offen sc1""")
    a.stamp(14)
    a("s_waitcnt vmcnt(0)\ns_barrier")

    b = tail
    b(f"""
L_ps_wait:
s_mov_b32 s60, 0
L_ps_spin:
buffer_load_dwordx4 {vr(T, 4)}, v{VL16}, s[{WS}:{WS + 3}], s62 offen sc1
s_add_u32 s60, s60, 1
s_waitcnt vmcnt(0)
v_and_b32 v{T}, v{T}, v{T + 1}
v_and_b32 v{T + 2}, v{T + 2}, v{T + 3}
v_and_b32 v{T}, v{T}, v{T + 2}
v_cmp_ne_u32 vcc, 1, v{T}
s_nop 4
s_cbranch_vccz L_ps_ready
s_cmp_lt_u32 s60, {SPIN_LIMIT}
s_cbranch_scc1 L_ps_spin
s_branch L_ps_ready""")
    MA, MB = T + 8, T + 9
    b(f"""
L_truemax:
v_mov_b32 v{MA}, 0xff800000
v_mov_b32 v{MB}, 0xff800000
s_mul_i32 s60, s{S_HALF}, 12288
v_subrev_u32 v10, s60, v{VK4}
s_mov_b32 s60, {KV}
L_tm_loop:
buffer_load_dwordx4 {vr(T, 4)}, v{VL16}, s[{WS}:{WS + 3}], s60 offen sc1
buffer_load_dwordx2 {vr(T + 4, 2)}, v10, s[{WS}:{WS + 3}], s60 offen sc1
s_waitcnt vmcnt(0)
{mfma(S0, T, QA, "0")}
{mfma(S1, T, QB, "0")}
{mfma8(S0, T + 4, QA + 4, S0)}
{mfma8(S1, T + 4, QB + 4, S1)}
s_nop 7
s_nop 7""")
    for j in range(8):
        b(f"v_max3_f32 v{MA}, v{S0 + 2 * j}, v{S0 + 2 * j + 1}, v{MA}")
        b(f"v_max3_f32 v{MB}, v{S1 + 2 * j}, v{S1 + 2 * j + 1}, v{MB}")
    b(f"""
s_add_u32 s60, s60, 3072
s_cmp_lt_u32 s60, {KV + 64 * 3072}
s_cbranch_scc1 L_tm_loop""")
    b.half_max(MA, T)
    b.half_max(MB, T)
    for j in range(16):
        b(f"v_sub_f32 v{CA + j}, 0, v{MA}")
        b(f"v_sub_f32 v{CB + j}, 0, v{MB}")
    b("s_nop 1\ns_branch L_att_start")
```

```python
from mcommon import *
import mcommon
from m2 import LDS_WO, RES

SLOT, NSLOT = 20480, 8
N4, NITEM = 21, 33
HRES = 240
DIST = 6


def loader(a):
    S_S13, S_S2, S_H = 33, 34, 46
    seq = []

    def dmas(tag, n, src, off, lds, pace=None):
        a(f"""
s_mul_i32 s60, s{S_P}, {n * 1024}
s_add_u32 s61, s60, {off}
s_add_u32 s61, s61, {src}
s_add_u32 s60, s60, {lds}""")
        for i in range(n):
            if i == 4:
                a("s_add_u32 s60, s60, 4096\ns_add_u32 s61, s61, 4096")
            if pace is not None:
                a(f"s_waitcnt vmcnt({pace})")
            a.dma(VL16, WS, "s61", "s60" if i % 4 == 0 else None, imm=1024 * (i % 4), aux="sc1")
            seq.append(tag)

    def weights(g, pace=None):
        if g < N4:
            dmas(g, 3, f"s{S_S13}", g * 12288, (g % NSLOT) * SLOT, pace)
        else:
            dmas(g, 5, f"s{S_S2}", (g - N4) * 20480, (g % NSLOT) * SLOT, pace)

    def tokens(g):
        if g < 20:
            a(f"s_lshl_b32 s60, s{S_P}, 11\ns_add_u32 s60, s60, {(g % NSLOT) * SLOT + 12288}\ns_add_u32 s61, s{S_H}, {g * 1024}")
            a.dma(VL16, WS, "s61", "s60", aux="sc1")
            a("s_add_u32 s60, s60, 1024\ns_add_u32 s61, s61, 20480")
            a.dma(VL16, WS, "s61", "s60", aux="sc1")
            seq.extend([g, g])

    def wait(c):
        last = max(i for i, x in enumerate(seq) if x == c)
        a(f"s_waitcnt vmcnt({len(seq) - 1 - last})")

    a(f"""
L_loader:
s_mul_i32 s{S_S13}, s{S_FB}, {21 * 12288}
s_add_u32 s{S_S13}, s{S_S13}, {W13F}
s_mul_i32 s{S_S2}, s{S_CB}, 245760
s_add_u32 s{S_S2}, s{S_S2}, {W2F}
s_lshl_b32 s60, s{S_RB2}, 2
s_add_u32 s60, s60, s{S_P}
s_lshl_b32 s62, s60, 8
s_add_u32 s62, s62, {HFLG}
s_mul_i32 s60, s60, 40960
s_add_u32 s{S_H}, s60, {HF}
v_lshrrev_b32 v11, 3, v{LANE}
v_lshlrev_b32 v11, 7, v11
v_and_b32 v12, 7, v{LANE}
v_lshl_add_u32 v11, v12, 2, v11""")
    pace = int(mcommon.OPT.get("pace", 5))
    early = int(mcommon.OPT.get("early", 4))
    a("s_barrier")
    weights(0)
    weights(1)
    a("s_barrier")
    for g in range(2, early):
        weights(g, pace)
    a.poll(11, 10, WS, "s62", 16)
    for g in range(7):
        tokens(g)
        if g >= early:
            weights(g)
    for c in range(NITEM):
        if c == N4:
            a("s_barrier")
            weights(27, pace)
            weights(28, pace)
        wait(c)
        a("s_barrier")
        g = c + 6
        if c >= 1 and g < NITEM and g not in (27, 28):
            tokens(g)
            weights(g)
    a.stamp_out()
    a("s_endpgm")


def stream(a, frags, dist=DIST, group=2):
    n, nb = len(frags), dist + 1
    issued, last_of = 0, {}

    def read(i):
        nonlocal issued
        f = frags[i]
        for x in f.get("pre_read", []):
            a(x)
        for dst, addr, off in f.get("extra_reads", []):
            a(f"ds_read_b128 {vr(dst, 4)}, v{addr} offset:{off}")
            issued += 1
        a(f"ds_read_b128 {vr(f['abuf'] + 4 * (i % nb), 4)}, v{f['addr']} offset:{f['off']}")
        issued += 1
        last_of[i] = issued

    for i in range(min(dist, n)):
        read(i)
    for i, f in enumerate(frags):
        for x in f.get("pre_mma", []):
            a(x)
        if i % group == 0:
            a(f"s_waitcnt lgkmcnt({issued - last_of[min(i + group - 1, n - 1)]})")
        A = f["abuf"] + 4 * (i % nb)
        for k, (acc, b) in enumerate(zip(f["acc"], f["b"])):
            a(mfma16(acc, A, b, "0" if f["first"] else acc))
            if k == 0 and i + dist < n:
                read(i + dist)
        for x in f.get("post_mma", []):
            a(x)


def bloads(breg, s_base, step, nt):
    out = []
    for n in range(nt):
        if step % 4 == 0 and step:
            out.append(f"s_add_u32 s{s_base + n}, s{s_base + n}, 4096")
        out.append(f"buffer_load_dwordx4 {vr(breg + 4 * n, 4)}, v{VL16}, s[{WS}:{WS + 3}], s{s_base + n} offen"
                   + (f" offset:{1024 * (step % 4)}" if step % 4 else "") + " sc1")
    return out


def plan_b(fr, per, nsteps, W, BW, S_B, lead, nt=2, extra=()):
    order = [(s, nt) for s in range(lead)] + [("x", sum("buffer_load" in x for x in extra))]
    first = [x for s in range(lead) for x in bloads(BW + 4 * nt * (s % W), S_B, s, nt)] + list(extra)
    nxt = lead
    for s in range(nsteps):
        f0, fl = fr[s * per], fr[s * per + per - 1]
        pos = [k for k, _ in order].index(s)
        f0.setdefault("pre_mma", []).insert(0, f"s_waitcnt vmcnt({sum(c for _, c in order[pos + 1:])})")
        slots = [fr[s * per + per // 2 - 1], fl]
        for k, f in enumerate(slots):
            limit = s + W - 1 if k == 0 else s + W
            if nxt < nsteps and nxt <= limit:
                f.setdefault("post_mma", []).extend(bloads(BW + 4 * nt * (nxt % W), S_B, nxt, nt))
                order.append((nxt, nt))
                nxt += 1
    assert nxt == nsteps
    return first


def line_touch(vtmp, vdst, s_base, nlines, s_part, stride=128):
    if mcommon.OPT.get("atouch", "0") != "1":
        return []
    out = [f"s_mul_i32 s68, s{s_part}, {nlines * stride}", f"s_add_u32 s68, s68, s{s_base}",
           f"v_lshlrev_b32 v{vtmp}, 7, v{LANE}"]
    left, k = nlines, 0
    while left > 0:
        n = min(left, 64)
        if n < 64:
            m = (1 << n) - 1
            out += [f"s_mov_b32 exec_lo, {m & 0xffffffff:#x}", f"s_mov_b32 exec_hi, {m >> 32:#x}"]
        if k:
            out.append("s_add_u32 s68, s68, 8192")
        out.append(f"buffer_load_dword v{vdst}, v{vtmp}, s[{WS}:{WS + 3}], s68 offen sc1")
        if n < 64:
            out.append("s_mov_b64 exec, -1")
        left -= n
        k += 1
    return out


def add_bf16(a, acc, src, n):
    for j in range(n):
        r, t = acc + 2 * j, 12 + 2 * (j % 2)
        a(f"""
v_lshlrev_b32 v{t}, 16, v{src + j}
v_and_b32 v{t + 1}, 0xffff0000, v{src + j}
v_pk_add_f32 v[{r}:{r + 1}], v[{r}:{r + 1}], v[{t}:{t + 1}]""")


def compute345(a):
    S_B, S_TT = 46, 34
    VQ, VT, V4, VA = 4, 5, 6, 7
    D35 = int(mcommon.OPT.get("d35", 9))
    BW, AB, ACC = 16, 96, 148
    a(f"""
v_lshrrev_b32 v{VQ}, 4, v{LANE}
v_and_b32 v{VT}, 15, v{LANE}
v_lshlrev_b32 v{V4}, 2, v{LANE}
s_lshl_b32 s{S_TT}, s{S_RB}, 2
s_add_u32 s{S_TT}, s{S_TT}, s{S_W}
s_lshl_b32 s62, s{S_RB}, 7
s_add_u32 s62, s62, {OFLG}
s_mul_i32 s63, s{S_TT}, 20480
s_add_u32 s{S_B}, s63, {OF}
v_add_u32 v{VA}, {LDS_WO}, v{VL16}
v_add_u32 v{VA + 1}, {LDS_WO + 51200}, v{VL16}
s_cmp_lg_u32 s{S_W}, 0
s_cbranch_scc1 L_oflag_done""")
    a.set_flag(10, 12, WS, "s35")
    a("L_oflag_done:")
    a.stamp(15)
    a.poll(V4, 10, WS, "s62", 8)
    a.stamp(16)
    fr = []
    for s in range(20):
        for m in range(5):
            f = dict(addr=VA + s // 10, off=(s % 10) * 5120 + m * 1024, abuf=AB, acc=[ACC + 4 * m],
                     b=[BW + 4 * s], first=(s == 0))
            if m == 0 and s in (0, 10):
                f["pre_mma"] = a.stamp_lines(45 + s // 10)
            if m == 0 and s == int(mcommon.OPT.get("x6b", 6)):
                f["post_mma"] = ["s_barrier"]
            fr.append(f)
    a(f"s_mov_b32 s69, s{S_B}")
    for x in plan_b(fr, 5, 20, 20, BW, S_B, int(mcommon.OPT.get("lead3", 6)), 1, line_touch(11, 254, 69, 20, S_CB)):
        a(x)
    stream(a, fr, D35, 2)
    a.stamp(17)
    a("s_nop 7")
    add_bf16(a, ACC, RES, 10)
    for j in range(10):
        a(f"v_cvt_pk_bf16_f32 v{HRES + j}, v{ACC + 2 * j}, v{ACC + 2 * j + 1}")
    a(f"""
s_mov_b32 s60, s{S_TT}
s_mul_i32 s61, s60, 20480
s_mul_i32 s62, s{S_CB}, 5
s_lshr_b32 s62, s62, 1
s_lshl_b32 s62, s62, 10
s_add_u32 s61, s61, s62
s_add_u32 s61, s61, {HF}
s_bitcmp1_b32 s{S_CB}, 0
s_cbranch_scc1 L_p3_odd
buffer_store_dwordx4 {vr(HRES, 4)}, v{VL16}, s[{WS}:{WS + 3}], s61 offen sc1
buffer_store_dwordx4 {vr(HRES + 4, 4)}, v{VL16}, s[{WS}:{WS + 3}], s61 offen offset:1024 sc1
buffer_store_dwordx2 {vr(HRES + 8, 2)}, v{VL16}, s[{WS}:{WS + 3}], s61 offen offset:2048 sc1
s_branch L_p3_st
L_p3_odd:
buffer_store_dwordx2 {vr(HRES, 2)}, v{VL16}, s[{WS}:{WS + 3}], s61 offen offset:8 sc1
buffer_store_dwordx4 {vr(HRES + 2, 4)}, v{VL16}, s[{WS}:{WS + 3}], s61 offen offset:1024 sc1
buffer_store_dwordx4 {vr(HRES + 6, 4)}, v{VL16}, s[{WS}:{WS + 3}], s61 offen offset:2048 sc1
L_p3_st:
v_pk_mul_f32 v[12:13], v[{ACC}:{ACC + 1}], v[{ACC}:{ACC + 1}]
v_mov_b32 v14, v{ACC}
v_mov_b32 v15, v{ACC + 1}""")
    for j in range(1, 10):
        r = ACC + 2 * j
        a(f"v_pk_fma_f32 v[12:13], v[{r}:{r + 1}], v[{r}:{r + 1}], v[12:13]")
        a(f"v_pk_add_f32 v[14:15], v[14:15], v[{r}:{r + 1}]")
    a(f"""
v_add_f32 v11, v12, v13
v_add_f32 v10, v14, v15
s_lshl_b32 s60, s60, 10
s_lshl_b32 s61, s{S_CB}, 3
s_add_u32 s60, s60, s61
s_add_u32 s60, s60, {ST}""")
    a.quad_sum(10, 12)
    a.quad_sum(11, 12)
    a(f"""
v_lshlrev_b32 v13, 6, v{VT}
v_lshl_add_u32 v13, v{VQ}, 28, v13
s_lshl_b32 s61, s{S_TT}, 7
s_lshl_b32 s62, s{S_CB}, 2
s_add_u32 s61, s61, s62
s_add_u32 s61, s61, {HFLG}
buffer_store_dwordx2 v[10:11], v13, s[{WS}:{WS + 3}], s60 offen sc1
s_barrier""")
    a.stamp(48)
    a("s_waitcnt vmcnt(0)")
    a.set_flag(10, 12, WS, "s61")
    a.stamp(18)
    ACC, BW, AB, VB, STT = 16, 112, 192, 220, 224
    a(f"""
s_lshl_b32 s60, s{S_RB2}, 2
s_add_u32 s31, s60, s{S_W}
s_lshl_b32 s63, s31, 11
s_add_u32 s63, s63, {ST}
v_lshlrev_b32 v13, 6, v{VT}
v_lshl_add_u32 v13, v{VQ}, 4, v13
s_lshl_b32 s64, s{S_W}, 11
s_add_u32 s64, s64, 12288""")
    for j in range(3):
        a(f"v_add_u32 v{VA + j}, {3 * SLOT * j}, v{VL16}\nv_add_u32 v{VB + j}, s64, v{VA + j}")
    a("s_barrier")
    a.stamp(19)
    a(f"""
buffer_load_dwordx4 {vr(STT, 4)}, v13, s[{WS}:{WS + 3}], s63 offen sc1
buffer_load_dwordx4 {vr(STT + 4, 4)}, v13, s[{WS}:{WS + 3}], s63 offen offset:1024 sc1""")

    def acc4(fp, gu, n):
        return 16 + ((fp * 2 + gu) * 2 + n) * 4

    BX = 176
    fr = []
    for s in range(21):
        slot = s % NSLOT
        off = (slot % 3) * SLOT
        for m in range(12):
            breg = BW + 8 * (s % 2) if s < 20 else BX
            f = dict(addr=VA + slot // 3, off=off + m * 1024, abuf=AB,
                     acc=[acc4(m // 2, m % 2, 0), acc4(m // 2, m % 2, 1)], b=[breg, breg + 4], first=(s == 0))
            if m == 0 and s > 0:
                f["pre_read"] = ["s_barrier"]
            if m == 0 and s < 20:
                f["extra_reads"] = [(breg, VB + slot // 3, off), (breg + 4, VB + slot // 3, off + 1024)]
            if m == 0 and s in (0, 4, 8, 12, 16):
                f["pre_mma"] = a.stamp_lines(32 + s // 4)
            fr.append(f)
    fr[35].setdefault("post_mma", []).append("s_waitcnt vmcnt(0)")
    st = []
    for n in range(2):
        r = STT + 4 * n
        st += [f"v_add_f32 v{r}, v{r}, v{r + 2}", f"v_add_f32 v{r + 1}, v{r + 1}, v{r + 3}"]
    for n in range(2):
        for k in range(2):
            r = STT + 4 * n + k
            for width in (32, 16):
                st += [f"v_mov_b32 v12, v{r}", "s_nop 1", f"v_permlane{width}_swap_b32 v{r}, v12", "s_nop 1",
                       f"v_add_f32 v{r}, v{r}, v12"]
        r = STT + 4 * n
        st += [f"v_mul_f32 v{r}, {f32(1 / 640)}, v{r}", f"v_mul_f32 v{r + 1}, {f32(1 / 640)}, v{r + 1}",
               f"v_fma_f32 v{r + 1}, -v{r}, v{r}, v{r + 1}", f"v_max_f32 v{r + 1}, 0, v{r + 1}",
               f"v_add_f32 v{r + 1}, {f32(1e-5)}, v{r + 1}", f"v_rsq_f32 v{r + 1}, v{r + 1}"]
    ext = []
    for n in range(2):
        mean, bb = STT + 4 * n, BX + 4 * n
        ext += [f"v_cvt_pk_bf16_f32 v12, v{mean}, v{mean}", "v_and_b32 v13, 0xffff0000, v12",
                f"v_sub_f32 v13, v13, v{mean}", f"v_xor_b32 v{bb + 1}, 0x80008000, v12",
                "v_cvt_pk_bf16_f32 v13, v13, v13", f"v_mov_b32 v{bb + 2}, 0", f"v_mov_b32 v{bb + 3}, 0",
                f"v_and_b32 v12, 0xffff, v{bb + 1}", "v_lshlrev_b32 v13, 16, v13", f"v_or_b32 v{bb}, v12, v13"]
    for k in range(0, len(st), 2):
        fr[36 + k // 2].setdefault("post_mma", []).extend(st[k:k + 2])
    for k in range(0, len(ext), 2):
        fr[15 * 12 + k // 2].setdefault("post_mma", []).extend(ext[k:k + 2])
    stream(a, fr)
    a.stamp(20)
    C = [224, 228]
    for n in range(2):
        a(f"""
v_rcp_f32 v{C[n] + 2}, v{C[n] + 1}
v_mul_f32 v{C[n]}, {f32(-LOG2E)}, v{C[n] + 1}
v_mul_f32 v{C[n] + 2}, {f32(-LOG2E)}, v{C[n] + 2}""")
    a(f"""
s_mul_i32 s60, s31, 96
s_mul_i32 s61, s{S_FB}, 3
s_add_u32 s60, s60, s61
s_lshl_b32 s60, s60, 10
s_add_u32 s60, s60, {HHF}
s_add_u32 s61, s60, {48 * 1024}
s_lshl_b32 s62, s31, 8
s_lshr_b32 s63, s{S_FB}, 3
s_lshl_b32 s63, s63, 7
s_add_u32 s62, s62, s63
s_and_b32 s63, s{S_FB}, 7
s_lshl_b32 s63, s63, 2
s_add_u32 s62, s62, s63
s_add_u32 s62, s62, {HHFLG}""")
    TT, OO = 112, 128
    k = 0
    for sg in range(3):
        for n in range(2):
            g = [acc4(2 * sg, 0, n), acc4(2 * sg, 0, n) + 2, acc4(2 * sg + 1, 0, n), acc4(2 * sg + 1, 0, n) + 2]
            u = [acc4(2 * sg, 1, n), acc4(2 * sg, 1, n) + 2, acc4(2 * sg + 1, 1, n), acc4(2 * sg + 1, 1, n) + 2]
            o = OO + 4 * (k % 4)
            k += 1
            c1, kk = C[n], C[n] + 2
            for j in range(4):
                a(f"v_pk_mul_f32 v[{g[j]}:{g[j] + 1}], v[{g[j]}:{g[j] + 1}], v[{c1}:{c1 + 1}] op_sel_hi:[1,0]")
            for j in range(4):
                a(f"v_exp_f32 v{TT + 2 * j}, v{g[j]}\nv_exp_f32 v{TT + 2 * j + 1}, v{g[j] + 1}")
            for j in range(4):
                a(f"v_pk_mul_f32 v[{g[j]}:{g[j] + 1}], v[{g[j]}:{g[j] + 1}], v[{u[j]}:{u[j] + 1}]")
            for j in range(4):
                t = TT + 2 * j
                a(f"v_pk_fma_f32 v[{t}:{t + 1}], v[{t}:{t + 1}], v[{kk}:{kk + 1}], v[{kk}:{kk + 1}] op_sel_hi:[1,0,0]")
            for j in range(8):
                a(f"v_rcp_f32 v{TT + j}, v{TT + j}")
            for j in range(4):
                t = TT + 2 * j
                a(f"v_pk_mul_f32 v[{g[j]}:{g[j] + 1}], v[{g[j]}:{g[j] + 1}], v[{t}:{t + 1}]")
            for j in range(4):
                a(f"v_cvt_pk_bf16_f32 v{o + j}, v{g[j]}, v{g[j] + 1}")
            a(f"buffer_store_dwordx4 {vr(o, 4)}, v{VL16}, s[{WS}:{WS + 3}], s{60 + n} offen offset:{1024 * sg} sc1")
    a.stamp(21)
    a("s_barrier\ns_waitcnt vmcnt(0)")
    a.set_flag(10, 12, WS, "s62")
    a.stamp(22)
    ACC, AB, BW, W = 16, 40, 92, int(mcommon.OPT.get('w5', 12))
    a(f"""
s_lshr_b32 s62, s{S_TT}, 1
s_lshl_b32 s62, s62, 8
s_add_u32 s62, s62, {HHFLG}
s_mul_i32 s63, s{S_TT}, {48 * 1024}
s_add_u32 s{S_B}, s63, {HHF}
s_mov_b32 s69, s{S_B}
v_lshrrev_b32 v11, 3, v{LANE}
v_lshlrev_b32 v11, 7, v11
v_and_b32 v12, 7, v{LANE}
v_lshl_add_u32 v11, v12, 2, v11""")
    a.srd(TS, P_OUT, 2048 * 1280)
    a.poll(11, 10, WS, "s62", 16)
    a.stamp(23)
    fr = []
    for s in range(48):
        c, sg = divmod(s, 4)
        slot = (c + N4) % NSLOT
        for m in range(5):
            f = dict(addr=VA + slot // 3, off=(slot % 3) * SLOT + sg * 5120 + m * 1024, abuf=AB,
                     acc=[ACC + 4 * m], b=[BW + 4 * (s % W)], first=(s == 0))
            if m == 0 and sg == 0 and c > 0:
                f["pre_read"] = ["s_barrier"]
            if m == 0 and s in (0, 12, 24, 36):
                f["pre_mma"] = a.stamp_lines(40 + s // 12)
            fr.append(f)
    for x in plan_b(fr, 5, 48, W, BW, S_B, int(mcommon.OPT.get("lead5", 6)), 1, line_touch(11, 254, 69, 48, S_CB)):
        a(x)
    a("s_barrier")
    stream(a, fr, D35, 2)
    a.stamp(24)
    a("s_nop 7")
    add_bf16(a, ACC, HRES, 10)
    PK = BW
    for j in range(10):
        a(f"v_cvt_pk_bf16_f32 v{PK + j}, v{ACC + 2 * j}, v{ACC + 2 * j + 1}")
    a(f"""
s_lshl_b32 s60, s{S_RB}, 6
s_lshl_b32 s61, s{S_W}, 4
s_add_u32 s60, s60, s61
v_add_u32 v10, s60, v{VT}
v_mul_u32_u24 v10, 1280, v10
v_lshl_add_u32 v11, v{VQ}, 3, v10
v_and_b32 v12, 1, v{VQ}
v_lshl_add_u32 v10, v12, 5, v10
v_lshrrev_b32 v12, 1, v{VQ}
v_lshl_add_u32 v10, v12, 4, v10
s_mul_i32 s60, s{S_CB}, 160
buffer_store_dwordx2 {vr(PK + 8, 2)}, v11, s[{TS}:{TS + 3}], s60 offen offset:128""")
    for j in range(2):
        r = PK + 4 * j
        a(f"""
v_permlane16_swap_b32 v{r}, v{r + 2}
v_permlane16_swap_b32 v{r + 1}, v{r + 3}
buffer_store_dwordx4 {vr(r, 4)}, v10, s[{TS}:{TS + 3}], s60 offen offset:{64 * j}""")
    if mcommon.STAMPS:
        a("s_waitcnt vmcnt(0)")
    a.stamp(25)
    a.stamp(26, True)
    a.stamp_out()
    if mcommon.OPT.get("probe"):
        i, j, mult, real = (int(x) for x in mcommon.OPT["probe"].split(","))
        op = "s_memrealtime" if real else "s_memtime"
        a(f"""
s_cmp_lg_u32 s2, {mcommon.OPT.get("probewg", 0)}
s_cbranch_scc1 L_end
s_cmp_lg_u32 s{S_W}, 0
s_cbranch_scc1 L_end
v_readlane_b32 s60, v{V_STAMP}, {i}
v_readlane_b32 s61, v{V_STAMP}, {j}
{op} s[62:63]
s_waitcnt lgkmcnt(0)
s_sub_u32 s60, s61, s60
s_min_u32 s60, s60, 200000
s_mul_i32 s60, s60, {mult}
L_probe:
{op} s[64:65]
s_waitcnt lgkmcnt(0)
s_sub_u32 s64, s64, s62
s_cmp_lt_u32 s64, s60
s_cbranch_scc1 L_probe""")
```

```python
from mcommon import *
import mcommon

LDS_WR = 81920
LDS_KVW = 131072
LDS_Q = LDS_WR + 2 * 12288
LDS_PS = 49152
LDS_MISC = 155648
LDS_PART = LDS_KVW + 26368
LDS_SYNC = 163600
LDS_READY = 163584
QSCALE = 20 ** -0.5 * LOG2E
SAFE_V = 2.0 ** 30
CA_INIT = (104, 136)


def phase1(a, tail, young_prep, young_tail):
    XR, T8, SUB = 16, 62, 63
    a(f"""
s_cmp_ge_u32 s2, 256
s_cbranch_scc1 L_end
s_load_dwordx8 s[36:43], s[0:1], 0
s_load_dwordx4 s[56:59], s[0:1], 80
s_load_dwordx2 s[44:45], s[0:1], 32
s_load_dwordx8 s[48:55], s[0:1], 48
v_lshrrev_b32 v1, 6, v0
v_and_b32 v{LANE}, 63, v0
v_readfirstlane_b32 s{S_W}, v1
s_and_b32 s60, s2, 7
s_lshr_b32 s61, s2, 3
s_lshl_b32 s{S_RB}, s60, 2
s_and_b32 s62, s61, 3
s_add_u32 s{S_RB}, s{S_RB}, s62
s_lshr_b32 s{S_CB}, s61, 2
s_lshl_b32 s{S_IDX}, s60, 5
s_add_u32 s{S_IDX}, s{S_IDX}, s61
s_lshr_b32 s{S_HALF}, s{S_W}, 2
s_and_b32 s{S_P}, s{S_W}, 3
s_lshl_b32 s{S_HEAD}, s{S_CB}, 2
s_add_u32 s{S_HEAD}, s{S_HEAD}, s{S_P}
s_and_b32 s62, s60, 1
s_lshl_b32 s62, s62, 3
s_and_b32 s63, s61, 7
s_add_u32 s{S_RB2}, s62, s63
s_lshr_b32 s62, s60, 1
s_lshl_b32 s62, s62, 2
s_lshr_b32 s63, s61, 3
s_add_u32 s{S_FB}, s62, s63
v_lshlrev_b32 v{VL16}, 4, v{LANE}
s_mul_i32 s32, s{S_CB}, 160
v_mov_b32 v4, {LDS_READY}
v_mov_b32 v6, 0
v_mov_b32 v7, 0
v_mov_b32 v8, 0
v_mov_b32 v9, 0
ds_write_b128 v4, v[6:9]
ds_write_b128 v4, v[6:9] offset:16
ds_write_b128 v4, v[6:9] offset:32
s_and_b32 s60, s{S_CB}, 6
s_add_u32 s60, s60, s{S_W}
s_and_b32 s31, s60, 7
s_lshl_b32 s60, s{S_RB}, 6
s_lshl_b32 s61, s31, 3
s_add_u32 s60, s60, s61
v_lshrrev_b32 v{T8}, 3, v{LANE}
v_and_b32 v{SUB}, 7, v{LANE}
v_add_u32 v5, s60, v{T8}
v_mul_u32_u24 v5, 1280, v5
v_lshl_add_u32 v5, v{SUB}, 4, v5
s_waitcnt lgkmcnt(0)
s_barrier""")
    a.stamp(0)
    a.stamp(1, True)
    a.srd(XS, P_X, 2048 * 1280)
    a.srd(WS, P_WS, WS_USED)
    a(f"""
s_and_b32 s60, s{S_IDX}, 31
s_lshl_b32 s60, s60, 3
s_add_u32 s35, s60, s{S_W}
s_cmp_lg_u32 s35, {31 * 8 + 3}
s_cbranch_scc1 L_p1_noclear
s_lshr_b32 s61, s{S_IDX}, 5
s_mul_i32 s60, s61, {FLG_BYTES // 8}
s_add_u32 s60, s60, {FLG}
s_add_u32 s62, s60, 4096
v_mov_b32 v180, 0
v_mov_b32 v181, 0
v_mov_b32 v182, 0
v_mov_b32 v183, 0""")
    for i in range(6):
        a(f"buffer_store_dwordx4 v[180:183], v{VL16}, s[{WS}:{WS + 3}], s{60 if i < 4 else 62} offen offset:{1024 * (i % 4)} sc1")
    a("L_p1_noclear:")
    xaux = " nt" if mcommon.OPT.get("xnt", "1") == "1" else ""
    for i in range(10):
        a(f"buffer_load_dwordx4 {vr(XR + 4 * i, 4)}, v5, s[{XS}:{XS + 3}], 0 offen offset:{128 * i}{xaux}")
    a(f"""
s_bitcmp1_b32 s{S_CB}, 0
s_cselect_b32 s{P_WK}, s{P_WV}, s{P_WK}
s_cselect_b32 s{P_WK + 1}, s{P_WV + 1}, s{P_WK + 1}""")
    a.srd(KS, P_WK, 640 * 40)
    a(f"""
s_mul_i32 s66, s{S_P}, 7168
s_add_u32 s65, s66, {LDS_KVW}
s_cmp_ge_u32 s{S_W}, 4
s_cbranch_scc1 L_p1_nokvw""")
    for i in range(7):
        if i == 4:
            a("s_add_u32 s65, s65, 4096\ns_add_u32 s66, s66, 4096")
        a.dma(VL16, KS, "s66", "s65" if i % 4 == 0 else None, imm=1024 * (i % 4))
    a("L_p1_nokvw:")
    a.srd(TS, P_WQ, 640 * 1280)
    a.srd(DS, P_DBG, 256)

    def w_voffs(sbase):
        for i in range(3):
            a(f"""
v_add_u32 v6, s{sbase}, v{LANE}
v_add_u32 v6, {64 * i}, v6
v_mul_u32_u24 v7, 43691, v6
v_lshrrev_b32 v7, 19, v7
v_mul_u32_u24 v8, 12, v7
v_sub_u32 v8, v6, v8
v_mul_u32_u24 v7, 1280, v7
v_lshl_add_u32 v{9 + i}, v8, 4, v7""")

    a(f"s_mul_i32 s61, s{S_P}, 192")
    w_voffs(61)
    SA, SB, QA, QB, RS, NB = 56, 57, 58, 59, 60, 61
    a(f"""
v_mov_b32 v{SA}, 0
v_mov_b32 v{SB}, 0
v_mov_b32 v{QA}, 0
v_mov_b32 v{QB}, 0
s_mov_b32 s67, 0x3f803f80
s_lshr_b32 s60, s31, 2
s_mul_i32 s60, s60, 40960
s_and_b32 s61, s31, 3
s_lshl_b32 s61, s61, 7
s_add_u32 s60, s60, s61
v_xor_b32 v6, v{T8}, v{SUB}
v_lshlrev_b32 v6, 4, v6
v_lshlrev_b32 v7, 9, v{SUB}
v_add3_u32 v13, v6, v7, s60""")
    WREG = 100
    seq = []
    npre = int(mcommon.OPT.get("wpre", 0))
    nmid = int(mcommon.OPT.get("wmid", 0))
    late = int(mcommon.OPT.get("wlate", 1))

    def wload(c):
        a(f"s_add_u32 s69, s32, {c * 64 * 1280}")
        for i in range(3):
            a(f"buffer_load_dwordx4 {vr(WREG + 4 * (3 * (c - 4) + i), 4)}, v{9 + i}, s[{TS}:{TS + 3}], s69 offen")
            seq.append(("w", c))

    for cls, younger in enumerate((7, 12 + 3 * npre)):
        if cls == 0:
            a(f"s_cmp_ge_u32 s{S_W}, 4\ns_cbranch_scc1 L_p1_stat_y")
        else:
            a(f"s_mul_i32 s63, s{S_P}, 3072\ns_add_u32 s63, s63, {LDS_WR}")
            for c in range(4):
                a(f"s_add_u32 s64, s32, {c * 64 * 1280}")
                for i in range(3):
                    a(f"s_add_u32 m0, s63, {c * 12288 + i * 1024}\ns_nop 0")
                    a(f"buffer_load_dwordx4 v{9 + i}, s[{TS}:{TS + 3}], s64 offen lds")
            for c in range(4, 4 + npre):
                wload(c)
        for i in range(10):
            a(f"s_waitcnt vmcnt({9 + younger - i})")
            if i == 0:
                a.stamp(2)
            for j in range(4):
                r = XR + 4 * i + j
                s, q = (SA, QA) if j % 2 == 0 else (SB, QB)
                a(f"v_dot2_f32_bf16 v{s}, v{r}, s67, v{s}")
                a(f"v_dot2_f32_bf16 v{q}, v{r}, v{r}, v{q}")
        if cls == 0:
            a(f"v_lshlrev_b32 v7, 2, v{LANE}\nbuffer_load_dword v100, v7, s[{DS}:{DS + 3}], 0 offen sc1")
            a("s_branch L_p1_stat_done\nL_p1_stat_y:")
        else:
            for c in range(4 + npre, 4 + npre + nmid):
                wload(c)
    a("L_p1_stat_done:")
    a.stamp(3)
    a(f"""
s_cmp_lg_u32 s35, {31 * 8 + 3}
s_cbranch_scc1 L_p1_noreport
s_lshr_b32 s61, s{S_IDX}, 5
s_lshl_b32 s61, s61, 2""")
    a.set_flag(180, 181, DS, "s61")
    a(f"""
L_p1_noreport:
s_nop 2
v_add_f32 v{SA}, v{SA}, v{SB}
v_add_f32 v{QA}, v{QA}, v{QB}""")
    for m in ("quad_perm:[1,0,3,2]", "quad_perm:[2,3,0,1]", "row_half_mirror"):
        a(f"""
s_nop 1
v_add_f32_dpp v{SA}, v{SA}, v{SA} {m} row_mask:0xf bank_mask:0xf
v_add_f32_dpp v{QA}, v{QA}, v{QA} {m} row_mask:0xf bank_mask:0xf""")
    a(f"""
s_nop 0
v_mul_f32 v{SA}, {f32(1 / 640)}, v{SA}
v_mul_f32 v{QA}, {f32(1 / 640)}, v{QA}
v_fma_f32 v{QA}, -v{SA}, v{SA}, v{QA}
v_max_f32 v{QA}, 0, v{QA}
v_add_f32 v{QA}, {f32(1e-5)}, v{QA}
v_rsq_f32 v{RS}, v{QA}
s_nop 0
v_mul_f32 v{NB}, v{SA}, v{RS}
v_sub_f32 v{NB}, 0, v{NB}""")
    TN = [64, 72]

    def unpack(i):
        for j in range(4):
            r, t = XR + 4 * i + j, TN[i % 2] + 2 * j
            a(f"v_lshlrev_b32 v{t}, 16, v{r}\nv_and_b32 v{t + 1}, 0xffff0000, v{r}")

    unpack(0)
    for i in range(10):
        for j in range(4):
            t = TN[i % 2] + 2 * j
            a(f"v_pk_fma_f32 v[{t}:{t + 1}], v[{t}:{t + 1}], v[{RS}:{RS + 1}], v[{RS}:{RS + 1}] op_sel:[0,0,1] op_sel_hi:[1,0,1]")
        if i < 9:
            unpack(i + 1)
        for j in range(4):
            t = TN[i % 2] + 2 * j
            a(f"v_cvt_pk_bf16_f32 v{XR + 4 * i + j}, v{t}, v{t + 1}")
        a(f"ds_write_b128 v13, {vr(XR + 4 * i, 4)} offset:{4096 * i}")
    a.stamp(4)
    BA, WA, KA, H, TOK = 96, 8, 14, 176, 177
    ACC0, ACC1, BUF = 16, 32, 48
    S_WN, S_WM = 33, 34
    a(f"""
s_and_b32 s{S_WN}, s{S_W}, 1
s_bfe_u32 s{S_WM}, s{S_W}, 0x10001
v_lshrrev_b32 v{H}, 5, v{LANE}
v_and_b32 v{TOK}, 31, v{LANE}
s_mul_i32 s60, s{S_WN}, 40960
v_and_b32 v12, 24, v{TOK}
v_and_b32 v13, 7, v{TOK}
v_lshlrev_b32 v86, 9, v{H}""")
    for q in range(4):
        a(f"""
v_or_b32 v15, {2 * q}, v{H}
v_xor_b32 v15, v15, v13
v_or_b32 v15, v15, v12
v_lshl_add_u32 v15, v15, 4, v86
v_add_u32 v15, s60, v15
v_add_u32 v{BA + q}, {1024 * q}, v15""")
    a(f"""
v_bfe_u32 v12, v{LANE}, 2, 2
v_lshl_add_u32 v12, v{H}, 3, v12
v_bfe_u32 v13, v{LANE}, 4, 1
v_lshlrev_b32 v13, 5, v13
v_and_b32 v15, 3, v{LANE}
v_lshl_add_u32 v13, v15, 3, v13
v_mul_u32_u24 v15, 192, v12
v_add_u32 v15, v15, v13
s_lshl_b32 s60, s{S_WM}, 7
s_add_u32 s60, s60, {LDS_WR}
v_add_u32 v{WA}, s60, v15
v_mul_u32_u24 v15, 40, v12
v_add_u32 v15, v15, v13
v_add_u32 v{KA}, {LDS_KVW}, v15""")
    def ring():
        sq = list(seq)

        def wait_for(tag):
            last = max(i for i, x in enumerate(sq) if x == tag)
            a(f"s_waitcnt vmcnt({len(sq) - 1 - last})")

        def more(c):
            a(f"s_add_u32 s69, s32, {c * 64 * 1280}")
            for i in range(3):
                a(f"buffer_load_dwordx4 {vr(WREG + 4 * (3 * (c - 4) + i), 4)}, v{9 + i}, s[{TS}:{TS + 3}], s69 offen")
                sq.append(("w", c))

        def cleared():
            ok = a.fresh("clr")
            wait_for("clr")
            a(f"""
v_cmp_gt_u32 s[60:61], 8, v{LANE}
v_cmp_ne_u32 vcc, 1, v8
s_nop 4
s_and_b64 s[60:61], vcc, s[60:61]
s_cbranch_scc0 {ok}""")
            a.poll(7, 8, DS, "0", 8)
            a(f"{ok}:")

        a(f"buffer_load_dword v8, v7, s[{DS}:{DS + 3}], 0 offen sc1")
        sq.append("clr")
        if 4 + npre <= 6:
            more(6)
        for k in range(2, 10):
            a("s_barrier")
            c = k + 2 - late
            if 4 <= c < 10:
                wait_for(("w", c))
                for i in range(3):
                    a(f"ds_write_b128 v93, {vr(WREG + 4 * (3 * (c - 4) + i), 4)} offset:{(c % 4) * 12288 + i * 1024}")
            if 4 + npre <= k + 5 < 10:
                more(k + 5)
            if k == 4:
                cleared()
            if k in (5, 6, 9):
                young_prep(a, {5: 0, 6: 1, 9: 2}[k])
            if k == 6:
                young_prep(a, 10)
            if k == 8:
                young_prep(a, 11)
            if 4 <= c < 10:
                a("s_waitcnt lgkmcnt(0)")
        a("s_branch L_p1_ring_done")

    KACC, AB, BB, VB0, VA0, Q4, T16 = 16, 24, 64, 88, 90, 91, 92

    def lds_wait(off, regs, tag):
        a(f"""
v_mov_b32 v12, {LDS_SYNC}
s_mov_b32 s60, 0
L_lw_{tag}:
ds_read_b128 v[84:87], v12 offset:{off}
s_add_u32 s60, s60, 1
s_waitcnt lgkmcnt(0)""")
        a(f"v_and_b32 v84, v{regs[0]}, v{regs[1]}")
        for r in regs[2:]:
            a(f"v_and_b32 v84, v84, v{r}")
        a(f"""
s_cmp_ge_u32 s60, {SPIN_LIMIT * 16}
s_cbranch_scc1 L_lw_done_{tag}
v_readfirstlane_b32 s61, v84
s_nop 3
s_cmp_eq_u32 s61, 0
s_cbranch_scc1 L_lw_{tag}
L_lw_done_{tag}:""")

    def lds_set(off):
        a(f"""
s_lshl_b32 s60, s{S_P}, 2
s_add_u32 s60, s60, {LDS_SYNC + off}
v_mov_b32 v84, s60
v_mov_b32 v85, 1
ds_write_b32 v84, v85""")

    def project():
        a(f"""
v_lshrrev_b32 v{Q4}, 4, v{LANE}
v_and_b32 v{T16}, 15, v{LANE}
s_lshr_b32 s63, s{S_CB}, 1
s_and_b32 s60, s63, 1
s_lshr_b32 s61, s63, 1
s_mul_i32 s62, s61, 40960
s_lshl_b32 s64, s60, 8
s_add_u32 s62, s62, s64
s_mul_i32 s64, s{S_P}, 10240
s_add_u32 s62, s62, s64
s_and_b32 s64, s{S_P}, 1
s_lshl_b32 s64, s64, 2
v_and_b32 v12, 8, v{T16}
v_and_b32 v13, 7, v{T16}
v_lshlrev_b32 v15, 9, v{Q4}
v_add_u32 v15, s62, v15
v_xor_b32 v13, v13, v{Q4}
v_or_b32 v14, v12, v13
v_xor_b32 v14, s64, v14
v_lshl_add_u32 v{VB0}, v14, 4, v15
v_xor_b32 v14, 4, v14
v_lshl_add_u32 v{VB0 + 1}, v14, 4, v15
v_bfe_u32 v12, v{LANE}, 2, 2
v_lshl_add_u32 v12, v{Q4}, 3, v12
v_mul_u32_u24 v12, 40, v12
v_and_b32 v13, 3, v{LANE}
v_lshl_add_u32 v12, v13, 3, v12
s_mul_i32 s64, s{S_P}, 6400
s_add_u32 s64, s64, {LDS_KVW}
v_add_u32 v{VA0}, s64, v12""")

        def rd(S):
            b = AB + 8 * S
            a(f"ds_read_b128 {vr(BB + 4 * S, 4)}, v{VB0 + S % 2} offset:{2048 * S}")
            for mt in range(2):
                a(f"ds_read_b64_tr_b16 {vr(b + 4 * mt, 2)}, v{VA0} offset:{1280 * S + 32 * mt}")
                a(f"ds_read_b64_tr_b16 {vr(b + 4 * mt + 2, 2)}, v{VA0} offset:{1280 * S + 32 * mt + 160}")
        for S in range(3):
            rd(S)
        a(f"""
s_lshl_b32 s64, s{S_RB}, 1
s_add_u32 s64, s64, s61
s_mul_i32 s65, s64, 3072
s_add_u32 s65, s65, {KV}
s_lshl_b32 s64, s{S_RB}, 2
s_add_u32 s64, s64, s63
s_lshl_b32 s64, s64, 2
s_add_u32 s64, s64, {KN}
s_mov_b32 s35, s60
s_lshl_b32 s61, s{S_P}, 11
s_add_u32 s61, s61, {LDS_PART - 2048}
v_add_u32 v12, s61, v{VL16}
s_bitcmp1_b32 s{S_CB}, 0
s_cbranch_scc1 L_kv_v""")
        for kind in "kv":
            for S in range(5):
                a(f"s_waitcnt lgkmcnt({5 * min(2, 4 - S)})")
                b, bb = AB + 8 * S, BB + 4 * S
                for mt in range(2):
                    c = "0" if S == 0 else KACC + 4 * mt
                    a(mfma16(KACC + 4 * mt, b + 4 * mt, bb, c) if kind == "k" else mfma16(KACC + 4 * mt, bb, b + 4 * mt, c))
                if S + 3 < 5:
                    rd(S + 3)
            if kind == "k":
                a("s_branch L_kv_part\nL_kv_v:")
        a(f"""
L_kv_part:
s_cmp_eq_u32 s{S_P}, 0
s_nop 7
s_cbranch_scc1 L_kv_kept
ds_write_b128 v12, {vr(KACC, 4)}
ds_write_b128 v12, {vr(KACC + 4, 4)} offset:1024
s_waitcnt lgkmcnt(0)""")
        lds_set(16)
        a("s_branch L_kv_done\nL_kv_kept:")

    def gather():
        a(f"v_add_u32 v12, {LDS_PART}, v{VL16}")
        for q in range(6):
            a(f"ds_read_b128 {vr(32 + 4 * q, 4)}, v12 offset:{1024 * q}")
        for q in range(3):
            a(f"s_waitcnt lgkmcnt({4 - 2 * q})")
            for j in range(8):
                a(f"v_add_f32 v{KACC + j}, v{KACC + j}, v{32 + 8 * q + j}")

    def finish(kind):
        a(f"""
v_and_b32 v12, 1, v{Q4}
v_lshlrev_b32 v12, 9, v12
v_lshrrev_b32 v13, 1, v{Q4}
v_lshl_add_u32 v12, v13, 3, v12
v_lshl_add_u32 v12, v{T16}, 4, v12
s_mov_b32 s60, s35""")
        for j in range(4):
            a(f"v_cvt_pk_bf16_f32 v{24 + j}, v{KACC + 2 * j}, v{KACC + 2 * j + 1}")
        if kind == "k":
            a(f"""
s_lshl_b32 s61, s60, 8
s_add_u32 s61, s61, s65
buffer_store_dwordx2 v[24:25], v12, s[{WS}:{WS + 3}], s61 offen sc1
v_lshlrev_b32 v13, 3, v{T16}
v_lshl_add_u32 v13, v{Q4}, 28, v13
s_lshl_b32 s61, s60, 9
s_add_u32 s61, s61, s65
v_cmp_eq_u32 s[66:67], 0, v{Q4}
v_mul_f32 v28, v{KACC + 4}, v{KACC + 4}
buffer_store_dwordx2 v[26:27], v13, s[{WS}:{WS + 3}], s61 offen offset:{1024 + 336} sc1""")
            for j in range(5, 8):
                a(f"v_fmac_f32 v28, v{KACC + j}, v{KACC + j}")
            a("v_cndmask_b32 v28, 0, v28, s[66:67]")
            for j in range(4):
                a(f"v_fmac_f32 v28, v{KACC + j}, v{KACC + j}")
            a.quad_sum(28, 29)
        else:
            a(f"""
s_lshl_b32 s61, s60, 10
s_add_u32 s61, s61, s65
buffer_store_dwordx2 v[24:25], v12, s[{WS}:{WS + 3}], s61 offen offset:1024 sc1
v_cmp_gt_u32 s[66:67], 4, v{T16}
v_cmp_eq_u32 s[68:69], 4, v{T16}
v_mov_b32 v29, 0x3f803f80
s_cmp_eq_u32 s60, 0
s_cselect_b32 s62, 0x001f001f, -1
v_cndmask_b32 v29, 0, v29, s[68:69]
v_cndmask_b32 v26, v29, v26, s[66:67]
v_cndmask_b32 v27, v29, v27, s[66:67]
v_max3_f32 v28, |v{KACC + 4}|, |v{KACC + 5}|, |v{KACC + 6}|
v_max_f32 v28, |v{KACC + 7}|, v28
s_mov_b32 exec_lo, s62
s_mov_b32 exec_hi, s62
buffer_store_dwordx2 v[26:27], v12, s[{WS}:{WS + 3}], s61 offen offset:1280 sc1
s_mov_b64 exec, -1
v_cndmask_b32 v28, 0, v28, s[66:67]
v_max3_f32 v28, |v{KACC}|, |v{KACC + 1}|, v28
v_max3_f32 v28, |v{KACC + 2}|, |v{KACC + 3}|, v28""")
        a.wave_max(28)
        a(f"""
v_mov_b32 v12, 0
s_mov_b32 exec_lo, 0
s_mov_b32 exec_hi, 0x80000000
buffer_store_dword v28, v12, s[{WS}:{WS + 3}], s64 offen{'' if kind == 'k' else ' offset:512'} sc1
s_mov_b64 exec, -1""")

    a(f"""
s_cmp_lt_u32 s{S_W}, 4
s_cbranch_scc1 L_p1_compute""")
    npre += nmid
    for c in range(4 + npre, 6):
        wload(c)
    a(f"""
s_mul_i32 s60, s{S_P}, 3072
s_add_u32 s60, s60, {LDS_WR}
v_add_u32 v93, s60, v{VL16}
v_lshlrev_b32 v7, 2, v{LANE}
s_waitcnt vmcnt({len(seq)}) lgkmcnt(0)""")
    a.stamp(56)
    a(f"""
s_barrier""")
    ring()
    a("L_p1_ring_done:")
    young_tail(a)
    a(f"""
L_p1_compute:
s_waitcnt vmcnt(1) lgkmcnt(0)""")
    a.stamp(27)
    lds_set(0)
    lds_wait(0, (84, 85, 86, 87), "a")
    a.stamp(28)
    project()
    a.stamp(29)
    lds_wait(16, (85, 86, 87), "b")
    gather()
    a(f"s_bitcmp1_b32 s{S_CB}, 0\ns_cbranch_scc1 L_kv_fin_v")
    finish("k")
    a("s_branch L_kv_pub\nL_kv_fin_v:")
    finish("v")
    a(f"""
L_kv_pub:""")
    a.stamp(7)
    a("L_kv_done:")
    for r in range(*CA_INIT):
        a(f"v_mov_b32 v{r}, 0")
    a("s_waitcnt lgkmcnt(0)\ns_barrier")
    a.stamp(5)
    a(f"""
s_cmp_eq_u32 s{S_WM}, 0
s_cbranch_scc0 L_p1_mq""")

    def reads(s, kind):
        b = BUF + 12 * (s % 4)
        c, sg = divmod(s, 4)
        wo = (c % 4) * 12288 + sg * 3072
        out = [f"ds_read_b128 {vr(b + 8, 4)}, v{BA + s % 4} offset:{c * 4096}",
               f"ds_read_b64_tr_b16 {vr(b, 2)}, v{WA} offset:{wo}",
               f"ds_read_b64_tr_b16 {vr(b + 2, 2)}, v{WA} offset:{wo + 768}"]
        if kind == "m01":
            out += [f"ds_read_b64_tr_b16 {vr(b + 4, 2)}, v{WA} offset:{wo + 64}",
                    f"ds_read_b64_tr_b16 {vr(b + 6, 2)}, v{WA} offset:{wo + 64 + 768}"]
        return out

    def mainloop(kind):
        n = len(reads(0, kind))
        for x in reads(0, kind) + reads(1, kind):
            a(x)
        for s in range(40):
            b = BUF + 12 * (s % 4)
            a(f"s_waitcnt lgkmcnt({n if s < 39 else 0})")
            r = reads(s + 2, kind) if s + 2 < 40 else []
            if r and (s + 2) % 4 == 0 and s > 2:
                r = ["s_barrier"] + r
            c0, c1 = ("0", "0") if s == 0 else (ACC0, ACC1)
            if kind == "m01":
                a(mfma(ACC1, b + 4, b + 8, c1))
                for x in r[:len(r) - 2]:
                    a(x)
                r = r[len(r) - 2:]
            a(mfma(ACC0, b, b + 8, c0))
            for x in r:
                a(x)
            if kind == "m01" and s == int(mcommon.OPT.get("kvpub", 8)):
                a(f"s_cmp_eq_u32 s{S_W}, 0\ns_cbranch_scc1 L_kv_publish\nL_kv_published:")
        a.stamp(6)

    def qoff(cg):
        return (cg // 5) * 3072 + [0, 512, 8, 520, 1024][cg % 5]

    def qwrite(tiles):
        a(f"""
s_mul_i32 s60, s{S_WN}, 1536
v_lshl_add_u32 v12, v{TOK}, 4, s60
v_xor_b32 v13, 1, v{H}
s_mov_b32 s62, {f32(QSCALE)}
s_nop 7""")
        k = 0
        for acc, m, groups in tiles:
            for g in range(groups):
                lo, up = qoff(8 * m + 2 * g), qoff(8 * m + 2 * g + 1)
                base = min(lo, up)
                sel = H if up > lo else 13
                r = acc + 4 * g
                t = 4 + 2 * (k % 2)
                k += 1
                a(f"""
s_mov_b32 s61, {abs(up - lo)}
v_mul_f32 v{r}, s62, v{r}
v_mul_f32 v{r + 1}, s62, v{r + 1}
v_mul_f32 v{r + 2}, s62, v{r + 2}
v_mul_f32 v{r + 3}, s62, v{r + 3}
v_mad_u32_u24 v14, v{sel}, s61, v12
v_add_u32 v14, {LDS_Q + base}, v14
v_cvt_pk_bf16_f32 v{t}, v{r}, v{r + 1}
v_cvt_pk_bf16_f32 v{t + 1}, v{r + 2}, v{r + 3}
ds_write_b64 v14, {vr(t, 2)}""")

    mainloop("m01")
    qwrite([(ACC1, 1, 4), (ACC0, 0, 4)])
    a("s_branch L_p1_q_done\nL_p1_mq:")
    mainloop("q")
    qwrite([(ACC0, 2, 2)])
    a("L_p1_q_done:")
    tail(f"""
L_kv_publish:
v_cmp_gt_u32 s[60:61], 8, v{LANE}
s_waitcnt vmcnt(0)
v_cmp_ne_u32 vcc, 1, v100
s_nop 4
s_and_b64 s[60:61], vcc, s[60:61]
s_cbranch_scc0 L_kv_clr""")
    tail.poll(7, 100, DS, "0", 8)
    tail(f"""
L_kv_clr:
s_lshl_b32 s61, s{S_RB}, 7
s_add_u32 s61, s61, {KVFLG}
v_mov_b32 v12, 0
v_mov_b32 v13, 1
s_mov_b64 exec, 1
buffer_atomic_add v13, v12, s[{WS}:{WS + 3}], s61 offen sc1
s_mov_b64 exec, -1""")
    tail.stamp(31)
    tail("s_branch L_kv_published")
```

```python
from mcommon import *
import mcommon
from m1 import LDS_Q, LDS_PS, LDS_KVW, LDS_MISC, LDS_READY, SAFE_V

SLOT_KV = 24576
X_OFF = 90112
KV_SLOT = [LDS_KVW, 0, SLOT_KV, X_OFF, 0, SLOT_KV, 0, SLOT_KV]
LDS_WO = 49152
SAFE_BOUND = 80.0 / 1.03
RES = 230

VA, VV0, VK4, H, TOK = 4, 5, 6, 8, 9
VAX, VV0X, VK4X = 28, 29, 30
VAR, VV0R, VK4R = 206, 207, 208
QA, QB = 16, 22
S0, S1 = 32, 48
P = 64
OA, OB = 72, 88
CA, CB = 104, 120
KB = [136, 142]
VB = [148, 156]
T = 164
S_SRC, S_DST, S_PSB = 32, 33, 34
S_PSI = 47
S_PD, S_PS, S_PI, S_PE = 72, 82, 87, 88
V_PS, V_TR = 12, 13


def ps_setup(a):
    a(f"""
s_and_b32 s60, s2, 7
s_lshr_b32 s61, s2, 3
s_mul_i32 s62, s60, 12
s_mul_i32 s63, s60, 17
s_add_u32 s63, s63, 96
s_add_u32 s62, s62, s61
s_sub_u32 s62, s62, 8
s_add_u32 s64, s63, s61
s_sub_u32 s65, s64, 20
s_add_u32 s64, s64, 12
s_cmp_lt_u32 s61, 20
s_cselect_b32 s{S_PSI}, s62, s65
s_cmp_lt_u32 s61, 8
s_cselect_b32 s{S_PSI}, s64, s{S_PSI}
s_sub_u32 s61, s61, 5
s_cmp_lt_u32 s61, 3
s_cselect_b32 s{S_PSI}, 255, s{S_PSI}
s_mul_i32 s{S_PSB}, s{S_P}, 10240
s_add_u32 s{S_PSB}, s{S_PSB}, {LDS_PS}
v_lshrrev_b32 v{V_PS}, 2, v{LANE}
v_and_b32 v15, 3, v{LANE}
v_lshlrev_b32 v{V_TR}, 6, v{V_PS}
v_lshl_add_u32 v{V_TR}, v15, 3, v{V_TR}
v_add_u32 v{V_TR}, s{S_PSB}, v{V_TR}
s_cmp_ge_u32 s{S_PSI}, 96
s_cbranch_scc1 L_ps_b
s_cmp_ge_u32 s{S_PSI}, 48
s_cselect_b32 s60, s{P_W3}, s{P_W1}
s_cselect_b32 s61, s{P_W3 + 1}, s{P_W1 + 1}
s_cselect_b32 s62, 48, 0
s_cselect_b32 s66, 1024, 0
s_mov_b32 s{KS + 2}, {640 * 3072}
s_mov_b32 s{S_PI}, {16 * 3072}
s_sub_u32 s62, s{S_PSI}, s62
s_lshl_b32 s63, s62, 6
s_mul_i32 s64, s{S_P}, {32 * 3072}
s_add_u32 s63, s63, s64
v_mul_u32_u24 v{V_PS}, 3072, v{V_PS}
s_add_u32 s66, s66, {W13F}""")
    for i in range(5):
        a(f"s_add_u32 s{S_PS + i}, s63, {128 * 3072 * i}")
    for tl in range(2):
        a(f"""
s_lshl_b32 s63, s62, 1
s_add_u32 s63, s63, {tl}
s_mul_i32 s64, s63, 43691
s_lshr_b32 s64, s64, 18
s_mul_i32 s65, s64, 6
s_sub_u32 s65, s63, s65
s_mul_i32 s64, s64, {21 * 12288}
s_lshl_b32 s65, s65, 11
s_add_u32 s64, s64, s65
s_add_u32 s64, s64, s66
s_add_u32 s{S_PE + tl}, s64, {20 * 12288}
s_mul_i32 s65, s{S_P}, 12288
s_add_u32 s64, s64, s65""")
        for i in range(5):
            a(f"s_add_u32 s{S_PD + 2 * i + tl}, s64, {4 * 12288 * i}")
    a(f"""
s_branch L_ps_go
L_ps_b:
s_mov_b32 s{S_PE}, {OOB}
s_mov_b32 s{S_PE + 1}, {OOB}
s_sub_u32 s62, s{S_PSI}, 96
s_and_b32 s63, s62, 1
s_lshr_b32 s62, s62, 1
s_mul_i32 s63, s63, 10
s_add_u32 s63, s63, s{S_P}
s_cmp_lt_u32 s{S_P}, 2
s_cselect_b32 s67, 3, 2
s_cmp_ge_u32 s{S_PSI}, 232
s_cselect_b32 s67, 0, s67
s_cmp_ge_u32 s62, 20
s_cbranch_scc1 L_ps_w2
s_mov_b32 s60, s{P_WO}
s_mov_b32 s61, s{P_WO + 1}
s_mov_b32 s{KS + 2}, {640 * 1280}
s_mul_i32 s66, s62, 5120
s_add_u32 s66, s66, {WOF}
s_mov_b32 s68, 102400
v_lshrrev_b32 v14, 2, v{V_PS}
v_and_b32 v{V_PS}, 3, v{V_PS}
s_cmp_ge_u32 s62, 16
s_cbranch_scc1 L_ps_rem
s_mul_i32 s64, s62, 40
s_mov_b32 s{S_PI}, {8 * 1280}
v_lshrrev_b32 v10, 1, v14
v_mul_u32_u24 v10, 20, v10
v_and_b32 v14, 1, v14
v_lshl_add_u32 v14, v14, 2, v10
v_add3_u32 v{V_PS}, v14, v{V_PS}, s64
s_branch L_ps_rows
L_ps_rem:
s_sub_u32 s64, s62, 16
s_mul_i32 s64, s64, 160
s_add_u32 s64, s64, 16
s_mov_b32 s{S_PI}, {20 * 1280}
v_mul_u32_u24 v14, 40, v14
v_add3_u32 v{V_PS}, v14, v{V_PS}, s64
s_branch L_ps_rows
L_ps_w2:
s_mov_b32 s60, s{P_W2}
s_mov_b32 s61, s{P_W2 + 1}
s_mov_b32 s{KS + 2}, {1536 * 1280}
s_sub_u32 s62, s62, 20
s_lshl_b32 s64, s62, 5
s_mov_b32 s{S_PI}, {16 * 1280}
v_add_u32 v{V_PS}, s64, v{V_PS}
s_mul_i32 s66, s62, 5120
s_add_u32 s66, s66, {W2F}
s_mov_b32 s68, 245760
L_ps_rows:
v_mul_u32_u24 v{V_PS}, 1280, v{V_PS}""")
    for i in range(5):
        a(f"""
s_add_u32 s62, s63, {4 * i}
s_lshl_b32 s64, s62, 6
s_cmp_gt_u32 s67, {i}
s_cselect_b32 s{S_PS + i}, s64, {OOB}""")
        for tl in range(2):
            a(f"""
s_lshl_b32 s64, s62, 1
s_add_u32 s64, s64, {tl}
s_mul_i32 s65, s64, 52429
s_lshr_b32 s65, s65, 18
s_mul_i32 s69, s65, 5
s_sub_u32 s64, s64, s69
s_mul_i32 s65, s65, s68
s_lshl_b32 s64, s64, 10
s_add_u32 s64, s64, s65
s_add_u32 s64, s64, s66
s_cmp_gt_u32 s67, {i}
s_cselect_b32 s{S_PD + 2 * i + tl}, s64, {OOB}""")
    a(f"""
L_ps_go:
s_mov_b32 s{KS}, s60
s_mov_b32 s{KS + 1}, s61
s_mov_b32 s{KS + 3}, {SRD3}
v_lshl_add_u32 v{V_PS}, v15, 4, v{V_PS}""")


def addresses(a):
    a(f"""
v_lshrrev_b32 v{H}, 5, v{LANE}
v_and_b32 v{TOK}, 31, v{LANE}
s_mul_i32 s60, s{S_HALF}, 12288
v_add_u32 v{VA}, s60, v{VL16}
v_cmp_lt_u32 s[62:63], 20, v{TOK}
v_add_u32 v14, 1024, v{VA}
s_add_u32 s61, s60, {1024 + 336}
v_cndmask_b32 v{VV0}, v{VA}, v14, s[62:63]
v_lshrrev_b32 v14, 4, v{TOK}
v_lshlrev_b32 v14, 9, v14
v_and_b32 v15, 15, v{TOK}
v_lshl_add_u32 v14, v15, 3, v14
v_add_u32 v{VK4}, s61, v14
v_add_u32 v{VAX}, {X_OFF}, v{VA}
v_add_u32 v{VV0X}, {X_OFF}, v{VV0}
v_add_u32 v{VK4X}, {X_OFF}, v{VK4}
v_add_u32 v{VAR}, {LDS_KVW}, v{VA}
v_add_u32 v{VV0R}, {LDS_KVW}, v{VV0}
v_add_u32 v{VK4R}, {LDS_KVW}, v{VK4}
s_mul_i32 s{S_DST}, s{S_P}, 3072
s_add_u32 s{S_SRC}, s{S_DST}, {KV}
s_mul_i32 s61, s{S_HALF}, 1536
s_add_u32 s62, s{S_DST}, s61
s_add_u32 s62, s62, {LDS_Q}
s_sub_u32 s63, s{S_DST}, s61
s_add_u32 s63, s63, {LDS_Q + 1536}
v_add_u32 v209, s62, v{VL16}
v_add_u32 v210, s63, v{VL16}
v_lshlrev_b32 v14, 4, v{TOK}
v_add_u32 v211, s62, v14
v_add_u32 v212, s63, v14
v_mov_b32 v7, {LDS_MISC}""")


def young_prep(a, part):
    if part == 0:
        addresses(a)
    if part == 1:
        ps_setup(a)
    if part == 2:
        for r in range(CA, CA + 32):
            a(f"v_mov_b32 v{r}, 0")
    if part == 10:
        a(f"""
v_lshlrev_b32 v11, 7, v{LANE}
s_mov_b32 s61, {KVFLG}
s_cmp_eq_u32 s{S_W}, 7
s_cselect_b32 exec_lo, -1, 0
s_mov_b32 exec_hi, 0
buffer_load_dword v{T + 10}, v11, s[{WS}:{WS + 3}], s61 offen sc1
s_mov_b64 exec, -1""")
    if part == 11:
        a(f"""
s_cmp_lg_u32 s{S_W}, 7
s_cbranch_scc1 L_kv_noearly
s_mov_b32 exec_hi, 0
s_waitcnt vmcnt(0)
v_cmp_ne_u32 vcc, 8, v{T + 10}
v_mov_b32 v14, 1
v_mov_b32 v15, {LDS_READY}
s_nop 2
s_cbranch_vccnz L_kv_notyet
ds_write_b32 v15, v14
L_kv_notyet:
s_mov_b64 exec, -1
L_kv_noearly:""")


def young_tail(a):
    a(f"""
v_lshlrev_b32 v14, 7, v{LANE}
v_lshlrev_b32 v11, 3, v{LANE}
s_mov_b32 s61, {KVFLG}
v_mov_b32 v15, {LDS_READY}
s_cmp_lg_u32 s{S_W}, 7
s_cbranch_scc1 L_kv_lds
ds_read_b32 v10, v15
s_waitcnt lgkmcnt(0)
v_readfirstlane_b32 s62, v10
s_nop 3
s_cmp_lg_u32 s62, 0
s_cbranch_scc1 L_kv_seen""")
    a.poll(14, T, WS, "s61", 32, "8")
    a(f"""
v_mov_b32 v14, 1
ds_write_b32 v15, v14
s_branch L_kv_seen
L_kv_lds:
s_mov_b32 s60, 0
L_kv_spin:
ds_read_b32 v14, v15
s_add_u32 s60, s60, 1
s_waitcnt lgkmcnt(0)
v_readfirstlane_b32 s62, v14
s_cmp_ge_u32 s60, {SPIN_LIMIT * 16}
s_cbranch_scc1 L_kv_seen
s_nop 1
s_cmp_eq_u32 s62, 0
s_cbranch_scc1 L_kv_spin
L_kv_seen:""")
    a.stamp(58)
    a(f"""
s_mov_b32 s62, {KN}
buffer_load_dwordx2 v[{T + 4}:{T + 5}], v11, s[{WS}:{WS + 3}], s62 offen sc1
buffer_load_dwordx2 v[{T + 6}:{T + 7}], v11, s[{WS}:{WS + 3}], s62 offen offset:512 sc1""")
    for g in stage_groups(0):
        for x in g:
            a(x)
    a(f"""
v_mov_b32 v{T + 3}, {f32(SAFE_V)}
s_waitcnt vmcnt(6)
v_max_f32 v14, v{T + 4}, v{T + 5}
v_cmp_nle_f32 s[66:67], v{T + 6}, v{T + 3}
v_cmp_nle_f32 s[64:65], v{T + 7}, v{T + 3}""")
    a.wave_max(14)
    a(f"""
s_or_b64 s[66:67], s[66:67], s[64:65]
s_cselect_b32 s62, 0x7f800000, 0
s_nop 0
v_readlane_b32 s63, v14, 63
s_nop 3
s_or_b32 s62, s62, s63
v_mov_b32 v14, s62
ds_write_b32 v7, v14
s_waitcnt vmcnt(0)""")
    a.stamp(59)
    a("s_branch L_p1_x2")


def stage_groups(t):
    out = []
    for hf in range(2):
        for i in range(3):
            g = [f"s_add_u32 m0, s{S_DST}, {KV_SLOT[t] + hf * 12288}",
                 f"s_add_u32 s61, s{S_SRC}, {t * 12288 + hf * 32 * 3072}"] if i == 0 else []
            o = f" offset:{1024 * i}" if i else ""
            out.append(g + [f"buffer_load_dwordx4 v{VL16}, s[{WS}:{WS + 3}], s61 offen{o} sc1 lds"])
    return out


def phase2(a, tail):
    addresses(a)
    a("""
L_p1_x2:
s_waitcnt lgkmcnt(0)
s_barrier""")
    a.stamp(8)

    def tile_reads(buf, off):
        if off >= LDS_KVW:
            va, vv, vk, off = VAR, VV0R, VK4R, off - LDS_KVW
        elif off >= X_OFF:
            va, vv, vk, off = VAX, VV0X, VK4X, off - X_OFF
        else:
            va, vv, vk = VA, VV0, VK4
        return [f"ds_read_b128 {vr(KB[buf], 4)}, v{va} offset:{off}",
                f"ds_read_b64 {vr(KB[buf] + 4, 2)}, v{vk} offset:{off}",
                f"ds_read_b128 {vr(VB[buf], 4)}, v{vv} offset:{off + 1024}",
                f"ds_read_b128 {vr(VB[buf] + 4, 4)}, v{va} offset:{off + 2048}"]

    a(f"""
ds_read_b128 {vr(QA, 4)}, v209
ds_read_b64 {vr(QA + 4, 2)}, v211 offset:1024
ds_read_b128 {vr(QB, 4)}, v210
ds_read_b64 {vr(QB + 4, 2)}, v212 offset:1024
ds_read_b32 v10, v7""")
    for x in tile_reads(0, KV_SLOT[0]):
        a(x)
    a(f"""
v_cmp_eq_u32 s[64:65], 0, v{H}
v_mov_b32 v14, 0
v_mov_b32 v15, 0
v_mov_b32 v{T + 2}, {f32(SAFE_BOUND ** 2)}
s_waitcnt lgkmcnt(4)""")
    for r in (QA + 4, QA + 5, QB + 4, QB + 5):
        a(f"v_cndmask_b32 v{r}, 0, v{r}, s[64:65]")
    for j in range(6):
        a(f"v_dot2_f32_bf16 v14, v{QA + j}, v{QA + j}, v14")
        a(f"v_dot2_f32_bf16 v15, v{QB + j}, v{QB + j}, v15")
    a("s_nop 2")
    a.half_sum(14, T)
    a.half_sum(15, T)
    a(f"""
v_max_f32 v14, v14, v15
v_mul_f32 v14, v10, v14
v_cmp_nle_f32 vcc, v14, v{T + 2}
s_nop 4
s_cbranch_vccnz L_truemax
L_att_start:
s_waitcnt lgkmcnt(0)
{mfma(S0, KB[0], QA, CA)}
{mfma8(S0, KB[0] + 4, QA + 4, S0)}
s_cmp_ge_u32 s{S_W}, 4
s_nop 7
s_nop 2
s_cbranch_scc1 L_att_young""")
    prio = mcommon.OPT.get("prio", "flip")

    def job(cur, nxt, q, c, kb, o_cur, v_cur, o_prev, v_prev, fill, first=False, last=False, fresh=False):
        def ex(g):
            for x in fill[g]:
                a(x)
        if not last:
            a(mfma(nxt, kb, q, c))
        for j in range(0, 4):
            a(f"v_exp_f32 v{cur + j}, v{cur + j}")
        if not first:
            a(mfma(o_prev, v_prev + 4, P + 4, o_prev))
        ex(0)
        for j in range(4, 8):
            a(f"v_exp_f32 v{cur + j}, v{cur + j}")
        a(mfma8(nxt, kb + 4, q + 4, nxt) if not last else "s_nop 0")
        ex(1)
        for j in range(0, 4):
            a(f"v_cvt_pk_bf16_f32 v{P + j}, v{cur + 2 * j}, v{cur + 2 * j + 1}")
        for j in range(8, 12):
            a(f"v_exp_f32 v{cur + j}, v{cur + j}")
        a(mfma(o_cur, v_cur, P, "0" if fresh else o_cur))
        ex(2)
        for j in range(12, 16):
            a(f"v_exp_f32 v{cur + j}, v{cur + j}")
        ex(3)
        for j in range(4, 8):
            a(f"v_cvt_pk_bf16_f32 v{P + j}, v{cur + 2 * j}, v{cur + 2 * j + 1}")

    def stream(svc, waits, stamps):
        for t in range(8):
            for u in range(4):
                b, nb = u % 2, (u + 1) % 2
                ja = 8 * t + 2 * u
                last = t == 7 and u == 3
                fa = [[], [], [], []]
                if u < 3:
                    r = tile_reads(nb, KV_SLOT[t] + (u + 1) * 3072)
                    fa = [r[0:2], [r[2]], [r[3]], []]
                elif not last:
                    r = tile_reads(nb, KV_SLOT[t + 1])
                    fa = [waits.get(t, []) + ["s_barrier"] + r[0:2], [r[2]], [r[3]], []]
                fa = [fa[g] + svc.get((ja, g), []) for g in range(4)]
                if prio == "flip":
                    a("s_setprio 1")
                job(S0, S1, QB, CB, KB[b], OA, VB[b], OB, VB[nb], fa, first=(ja == 0), fresh=(ja == 0))
                if prio == "flip":
                    a("s_setprio 0")
                if not last:
                    a("s_waitcnt lgkmcnt(0)")
                job(S1, S0, QA, CA, KB[nb], OB, VB[b], OA, VB[b], [svc.get((ja + 1, g), []) for g in range(4)], last=last, fresh=(ja == 0))
            if stamps and t in (0, 3):
                a.stamp(11 if t == 0 else 12)
        a(f"s_nop 0\n{mfma(OB, VB[1] + 4, P + 4, OB)}")

    def put(svc, j, g, ins):
        svc.setdefault((j, g), []).extend(ins)

    a.stamp(10)
    svc = {}
    def spread(svc, j0, groups, per_job=3):
        for k, g in enumerate(groups):
            put(svc, j0 + k // per_job, k % per_job, g)
        return j0 + (len(groups) + per_job - 1) // per_job

    spread(svc, 0, stage_groups(1) + stage_groups(2))
    spread(svc, 7, stage_groups(3))
    for t in range(2, 6):
        spread(svc, 8 * t + 7, stage_groups(t + 2))
    put(svc, 56, 3, f"""s_lshl_b32 s60, s{S_RB}, 6
s_lshl_b32 s61, s{S_W}, 4
s_add_u32 s60, s60, s61
v_and_b32 v10, 15, v{LANE}
v_add_u32 v10, s60, v10
v_mul_u32_u24 v10, 1280, v10
v_lshrrev_b32 v12, 4, v{LANE}
v_lshl_add_u32 v10, v12, 3, v10
s_mul_i32 s60, s{S_CB}, 160""".split("\n"))
    spread(svc, 57, [[f"buffer_load_dwordx2 {vr(RES + 2 * m, 2)}, v10, s[{XS}:{XS + 3}], s60 offen offset:{32 * m}"] for m in range(5)])
    stream(svc, {t: [f"s_waitcnt vmcnt({ {0: 6, 1: 6}.get(t, 0) })"] for t in range(7)}, True)
    a.stamp(13)
    a("s_branch L_att_done")

    a("L_att_young:")
    svc = {}
    jt = int(mcommon.OPT.get("touch_at", 7))
    jl = int(mcommon.OPT.get("ps_issue", 17))
    jp = int(mcommon.OPT.get("ps_proc", 22))
    put(svc, jt, 0, f"""s_lshl_b32 s60, s2, 2
s_add_u32 s60, s60, s{S_P}
s_mul_i32 s61, s60, {15 * 128}
v_lshlrev_b32 v10, 7, v{LANE}
v_add_u32 v15, s61, v10
s_mul_i32 s61, s60, {25 * 32}
v_add_u32 v14, s61, v10
v_and_b32 v14, 0xffffff80, v14""".split("\n"))
    put(svc, jt, 2, f"""s_mov_b64 exec, 0x7fff
global_load_dword v{T + 30}, v15, s[{P_W1}:{P_W1 + 1}]
global_load_dword v{T + 31}, v15, s[{P_W3}:{P_W3 + 1}]
global_load_dword v{T + 32}, v15, s[{P_W2}:{P_W2 + 1}]
s_mov_b64 exec, 0x7f
global_load_dword v{T + 33}, v14, s[{P_WO}:{P_WO + 1}]
s_mov_b64 exec, -1""".split("\n"))
    g = []
    for i in range(5):
        g.append([f"s_add_u32 m0, s{S_PSB}, {2048 * i}", f"s_add_u32 s61, s{S_PS + i}, s{S_PI}",
                  f"buffer_load_dwordx4 v{V_PS}, s[{KS}:{KS + 3}], s{S_PS + i} offen lds"])
        g.append([f"s_add_u32 m0, s{S_PSB}, {2048 * i + 1024}", "s_nop 0",
                  f"buffer_load_dwordx4 v{V_PS}, s[{KS}:{KS + 3}], s61 offen lds"])
    spread(svc, jl, g)
    CS, ONE = T + 16, T + 24
    put(svc, jp - 1, 3, [f"v_mov_b32 v{ONE}, 0x3f803f80", f"v_mov_b32 v{ONE + 1}, 0x3f803f80"])
    assert jl + 3 < jp
    for i in range(5):
        ja = jp + 2 * i
        put(svc, ja, 1, ["s_waitcnt vmcnt(8)"])
        r = T + 8 * (i % 2)
        for tl in range(2):
            put(svc, ja, 2 + tl, [f"ds_read_b64_tr_b16 {vr(r + 4 * tl, 2)}, v{V_TR} offset:{2048 * i + 32 * tl}",
                                  f"ds_read_b64_tr_b16 {vr(r + 4 * tl + 2, 2)}, v{V_TR} offset:{2048 * i + 32 * tl + 1024}"])
            cs = CS + 4 * tl
            c0 = "0" if i == 0 else vr(cs, 4)
            put(svc, ja + 1, 2 * tl, [f"v_mfma_f32_4x4x4_16b_bf16 {vr(cs, 4)}, {vr(ONE, 2)}, {vr(r + 4 * tl, 2)}, {c0}",
                                      f"buffer_store_dwordx4 {vr(r + 4 * tl, 4)}, v{VL16}, s[{WS}:{WS + 3}], s{S_PD + 2 * i + tl} offen sc1"])
            put(svc, ja + 1, 2 * tl + 1, [f"v_mfma_f32_4x4x4_16b_bf16 {vr(cs, 4)}, {vr(ONE, 2)}, {vr(r + 4 * tl + 2, 2)}, {vr(cs, 4)}"])
    jf = jp + 10
    fin = []
    for tl in range(2):
        c, t1, o = CS + 4 * tl, T + 26 + tl, T + 4 * tl
        for width in (32, 16):
            fin += [[f"v_mov_b32 v{t1}, v{c}"], [f"v_permlane{width}_swap_b32 v{c}, v{t1}"], [f"v_add_f32 v{c}, v{c}, v{t1}"]]
        fin += [[f"v_cvt_pk_bf16_f32 v{o}, v{c}, v{c}", f"v_mov_b32 v{o + 2}, 0"],
                [f"v_and_b32 v{t1}, 0xffff0000, v{o}", f"v_sub_f32 v{t1}, v{c}, v{t1}"],
                [f"v_cvt_pk_bf16_f32 v{o + 1}, v{t1}, v{o + 2}", f"v_mov_b32 v{o + 3}, 0"]]
    fin += [[f"v_lshrrev_b32 v10, 4, v{LANE}", f"v_cmp_ne_u32 vcc, s{S_P}, v10"],
            ["v_cndmask_b32 v10, 0, 1, vcc", f"v_lshl_add_u32 v10, v10, 30, v{VL16}"],
            [f"buffer_store_dwordx4 {vr(T + 4 * tl, 4)}, v10, s[{WS}:{WS + 3}], s{S_PE + tl} offen sc1" for tl in range(2)]]
    fin = [fin[k] + fin[9 + k] for k in range(9)] + fin[18:]
    for k, g in enumerate(fin):
        put(svc, jf + k // 4, k % 4, g)
    tf = (jf + (len(fin) - 1) // 4 + 2) // 8
    jg = 8 * tf + 6
    put(svc, jg, 3, f"""s_lshl_b32 s60, s{S_IDX}, 2
s_add_u32 s60, s60, {PSFLG}
v_mov_b32 v10, 0
v_mov_b32 v14, 1
s_cmp_eq_u32 s{S_P}, 0
s_cselect_b32 exec_lo, 1, 0
s_mov_b32 exec_hi, 0
buffer_store_dword v14, v10, s[{WS}:{WS + 3}], s60 offen sc1
s_mov_b64 exec, -1""".split("\n"))
    jc = jg + int(mcommon.OPT.get("ps_gap", 5))
    put(svc, jc, 3, [f"s_mov_b32 s62, {PSFLG}",
                     f"buffer_load_dwordx4 {vr(T, 4)}, v{VL16}, s[{WS}:{WS + 3}], s62 offen sc1"])
    put(svc, jc + 3, 3, f"""s_waitcnt vmcnt(0)
v_and_b32 v{T}, v{T}, v{T + 1}
v_and_b32 v{T + 2}, v{T + 2}, v{T + 3}
v_and_b32 v{T}, v{T}, v{T + 2}
v_cmp_ne_u32 vcc, 1, v{T}
s_mul_i32 s60, s{S_P}, 25600
s_mul_i32 s61, s{S_CB}, 102400
s_add_u32 s61, s61, s60
s_add_u32 s63, s61, {WOF}
s_add_u32 s64, s60, {LDS_WO}
s_cbranch_vccnz L_ps_wait
L_ps_ready:""".split("\n"))
    j = jc + 4
    assert j >= 32, "the start-up K/V slots must be free"
    g = []
    for i in range(25):
        pre = [f"s_add_u32 m0, s64, {4096 * (i // 4)}", f"s_add_u32 s61, s63, {4096 * (i // 4)}"] if i % 4 == 0 else []
        o = f" offset:{1024 * (i % 4)}" if i % 4 else ""
        g.append(pre + [f"buffer_load_dwordx4 v{VL16}, s[{WS}:{WS + 3}], s61 offen{o} sc1 lds"])
    j = spread(svc, j, g, int(mcommon.OPT.get("wo_per", 3)))
    assert j < 62
    put(svc, j, 3, f"""s_lshr_b32 s60, s{S_FB}, 2
s_mul_i32 s60, s60, {4 * 21 * 12288}
s_and_b32 s61, s{S_IDX}, 31
s_lshl_b32 s61, s61, 2
s_add_u32 s61, s61, s{S_P}
s_mul_i32 s61, s61, {63 * 128}
s_add_u32 s60, s60, s61
s_add_u32 s60, s60, {W13F}
v_lshlrev_b32 v10, 7, v{LANE}
buffer_load_dword v{T + 8}, v10, s[{WS}:{WS + 3}], s60 offen sc1""".split("\n"))
    abl = mcommon.OPT.get("abl", "")
    if "p" in abl:
        svc = {k: v for k, v in svc.items() if k[0] >= jg}
    if "w" in abl:
        svc = {k: v for k, v in svc.items() if k[0] <= jc + 3}
    if "t" in abl:
        svc = {k: v for k, v in svc.items() if k[0] != jt}
    if "s" in abl:
        svc = {k: [x for x in v if "buffer_store_dwordx4" not in x] for k, v in svc.items()}
    print('re-layout schedule: fin', jf, 'flag', jg, 'check', jc, 'wo end', j)
    stream(svc, {tf: ["s_waitcnt vmcnt(0)"]}, False)
    a(f"""
L_att_done:
s_mul_i32 s60, s{S_W}, 3072
s_xor_b32 s61, s{S_W}, 4
s_mul_i32 s61, s61, 3072
v_add_u32 v10, s60, v{VL16}
v_add_u32 v11, s61, v{VL16}
s_lshl_b32 s62, s{S_RB}, 1
s_add_u32 s62, s62, s{S_HALF}
s_lshl_b32 s35, s{S_RB}, 7
s_lshl_b32 s63, s{S_CB}, 2
s_add_u32 s35, s35, s63
s_add_u32 s35, s35, {OFLG}
s_mul_i32 s62, s62, 40960
s_add_u32 s62, s62, {OF}
s_lshl_b32 s63, s{S_HEAD}, 9
s_add_u32 s63, s63, s62
s_lshr_b32 s64, s{S_HEAD}, 3
s_add_u32 s64, s64, 16
s_lshl_b32 s64, s64, 10
s_add_u32 s64, s64, s62
s_bfe_u32 s65, s{S_HEAD}, 0x20001
s_lshl_b32 s65, s65, 8
s_add_u32 s64, s64, s65
s_and_b32 s65, s{S_HEAD}, 1
s_lshl_b32 s65, s65, 3
s_add_u32 s64, s64, s65
v_lshrrev_b32 v12, 4, v{TOK}
v_mul_u32_u24 v12, 20480, v12
v_and_b32 v13, 15, v{TOK}
v_lshl_add_u32 v12, v13, 4, v12
v_lshl_add_u32 v13, v{H}, 8, v12
v_lshl_add_u32 v12, v{H}, 30, v12""")
    for j in range(3):
        a(f"ds_write_b128 v10, {vr(OB + 4 * j, 4)} offset:{1024 * j}")
    a("s_waitcnt lgkmcnt(0)\ns_barrier")
    a.stamp(30)
    for j in range(3):
        a(f"ds_read_b128 {vr(T + 12 + 4 * j, 4)}, v11 offset:{1024 * j}")
    a("s_waitcnt lgkmcnt(0)")
    for j in range(12):
        a(f"v_add_f32 v{OA + j}, v{OA + j}, v{T + 12 + j}")
    a(f"""
v_mov_b32 v14, v{OA + 8}
v_mov_b32 v15, v{OA + 8}
s_nop 1
v_permlane32_swap_b32 v14, v15
s_nop 1
v_rcp_f32 v15, v15
s_nop 0""")
    for j in range(12):
        a(f"v_mul_f32 v{OA + j}, v{OA + j}, v15")
    for j in range(6):
        a(f"v_cvt_pk_bf16_f32 v{T + j}, v{OA + 2 * j}, v{OA + 2 * j + 1}")
    a(f"""
buffer_store_dwordx4 {vr(T, 4)}, v13, s[{WS}:{WS + 3}], s63 offen sc1""")
    if "r" not in mcommon.OPT.get("abl", ""):
        a(f"buffer_store_dwordx2 {vr(T + 4, 2)}, v12, s[{WS}:{WS + 3}], s64 offen sc1")
    if "v" in mcommon.OPT.get("abl", ""):
        a("s_waitcnt vmcnt(2)")
    a.stamp(14)
    a("s_waitcnt vmcnt(0)")
    a.stamp(55)
    a(f"s_cmp_lg_u32 s{S_W}, 0\nv_mov_b32 v10, 0\nv_mov_b32 v12, 1\ns_cselect_b32 s60, 0, 1\ns_barrier")
    a(f"""
s_mov_b32 exec_lo, s60
s_mov_b32 exec_hi, 0
buffer_store_dword v12, v10, s[{WS}:{WS + 3}], s35 offen sc1
s_mov_b64 exec, -1""")

    b = tail
    b(f"""
L_ps_wait:
s_mov_b32 s60, 0
L_ps_spin:
buffer_load_dwordx4 {vr(T, 4)}, v{VL16}, s[{WS}:{WS + 3}], s62 offen sc1
s_add_u32 s60, s60, 1
s_waitcnt vmcnt(0)
v_and_b32 v{T}, v{T}, v{T + 1}
v_and_b32 v{T + 2}, v{T + 2}, v{T + 3}
v_and_b32 v{T}, v{T}, v{T + 2}
v_cmp_ne_u32 vcc, 1, v{T}
s_nop 4
s_cbranch_vccz L_ps_ready
s_cmp_lt_u32 s60, {SPIN_LIMIT}
s_cbranch_scc1 L_ps_spin
s_branch L_ps_ready""")
    MA, MB = T + 8, T + 9
    b(f"""
L_truemax:
v_mov_b32 v{MA}, 0xff800000
v_mov_b32 v{MB}, 0xff800000
s_mul_i32 s60, s{S_HALF}, 12288
v_subrev_u32 v10, s60, v{VK4}
s_mov_b32 s60, {KV}
L_tm_loop:
buffer_load_dwordx4 {vr(T, 4)}, v{VL16}, s[{WS}:{WS + 3}], s60 offen sc1
buffer_load_dwordx2 {vr(T + 4, 2)}, v10, s[{WS}:{WS + 3}], s60 offen sc1
s_waitcnt vmcnt(0)
{mfma(S0, T, QA, "0")}
{mfma(S1, T, QB, "0")}
{mfma8(S0, T + 4, QA + 4, S0)}
{mfma8(S1, T + 4, QB + 4, S1)}
s_nop 7
s_nop 7""")
    for j in range(8):
        b(f"v_max3_f32 v{MA}, v{S0 + 2 * j}, v{S0 + 2 * j + 1}, v{MA}")
        b(f"v_max3_f32 v{MB}, v{S1 + 2 * j}, v{S1 + 2 * j + 1}, v{MB}")
    b(f"""
s_add_u32 s60, s60, 3072
s_cmp_lt_u32 s60, {KV + 64 * 3072}
s_cbranch_scc1 L_tm_loop""")
    b.half_max(MA, T)
    b.half_max(MB, T)
    for j in range(16):
        b(f"v_sub_f32 v{CA + j}, 0, v{MA}")
        b(f"v_sub_f32 v{CB + j}, 0, v{MB}")
    b("s_nop 1\ns_branch L_att_start")
```

```python
from mcommon import *
import mcommon
from m2 import LDS_WO, RES

SLOT, NSLOT = 20480, 8
N4, NITEM = 21, 33
HRES = 240
DIST = 6


def loader(a):
    S_S13, S_S2, S_H = 33, 34, 46
    seq = []

    def dmas(tag, n, src, off, lds, pace=None, part=None):
        a(f"""
s_mul_i32 s60, s{S_P}, {n * 1024}
s_add_u32 s61, s60, {off}
s_add_u32 s61, s61, {src}
s_add_u32 s60, s60, {lds}""")
        lo, hi = part or (0, n)
        for i in range(lo, hi):
            if i == 4:
                a("s_add_u32 s60, s60, 4096\ns_add_u32 s61, s61, 4096")
            if pace is not None:
                a(f"s_waitcnt vmcnt({pace})")
            a.dma(VL16, WS, "s61", "s60" if i % 4 == 0 or i == lo else None, imm=1024 * (i % 4), aux="sc1")
            seq.append(tag)

    def weights(g, pace=None, part=None):
        if g < N4:
            dmas(g, 3, f"s{S_S13}", g * 12288, (g % NSLOT) * SLOT, pace)
        else:
            dmas(g, 5, f"s{S_S2}", (g - N4) * 20480, (g % NSLOT) * SLOT, pace, part)

    def tokens(g):
        if g < 20:
            a(f"s_lshl_b32 s60, s{S_P}, 11\ns_add_u32 s60, s60, {(g % NSLOT) * SLOT + 12288}\ns_add_u32 s61, s{S_H}, {g * 1024}")
            a.dma(VL16, WS, "s61", "s60", aux="sc1")
            a("s_add_u32 s60, s60, 1024\ns_add_u32 s61, s61, 20480")
            a.dma(VL16, WS, "s61", "s60", aux="sc1")
            seq.extend([g, g])

    def wait(c):
        last = max(i for i, x in enumerate(seq) if x == c)
        a(f"s_waitcnt vmcnt({len(seq) - 1 - last})")

    def poll_flags(tag, base, n):
        a(f"s_cmp_lg_u32 s{S_P}, 0\ns_cbranch_scc1 L_seen_{tag}\n{base}")
        if mcommon.OPT.get("predrain", "1") == "1":
            a("s_waitcnt vmcnt(0)")
        a.poll(11, 10, WS, "s62", n)
        a(f"L_seen_{tag}:\ns_barrier")

    a(f"""
L_loader:
v_lshrrev_b32 v11, 3, v{LANE}
v_lshlrev_b32 v11, 7, v11
v_and_b32 v12, 7, v{LANE}
v_lshl_add_u32 v11, v12, 2, v11
s_mul_i32 s{S_S13}, s{S_FB}, {21 * 12288}
s_add_u32 s{S_S13}, s{S_S13}, {W13F}
s_mul_i32 s{S_S2}, s{S_CB}, 245760
s_add_u32 s{S_S2}, s{S_S2}, {W2F}
s_lshl_b32 s60, s{S_RB2}, 2
s_add_u32 s60, s60, s{S_P}
s_mul_i32 s60, s60, 40960
s_add_u32 s{S_H}, s60, {HF}""")
    pace = int(mcommon.OPT.get("pace", 5))
    early = int(mcommon.OPT.get("early", 7))
    weights(0)
    weights(1)
    poll_flags("o", f"s_lshl_b32 s62, s{S_RB}, 7\ns_add_u32 s62, s62, {OFLG}", 8)
    a("s_barrier")
    for g in range(2, early):
        weights(g, pace)
    poll_flags("h", f"s_lshl_b32 s62, s{S_RB2}, 10\ns_add_u32 s62, s62, {HFLG}", 64)
    for g in range(7):
        tokens(g)
        if g >= early:
            weights(g)
    for c in range(NITEM):
        if c == N4:
            a("s_barrier")
            weights(27)
            weights(28)
            poll_flags("hh", f"s_lshl_b32 s62, s{S_RB}, 9\ns_add_u32 s62, s62, {HHFLG}", 32)
        wait(c)
        a("s_barrier")
        g = c + 6
        if c >= 23 and mcommon.OPT.get("w2pace", "1") == "1":
            k = c - 23
            if k < 8:
                weights(29 + k // 2, None, (0, 3) if k % 2 == 0 else (3, 5))
        elif c >= 1 and g < NITEM and g not in (27, 28):
            tokens(g)
            weights(g)
    a.stamp_out()
    a("s_endpgm")


def stream(a, frags, dist=DIST, group=2):
    n, nb = len(frags), dist + 1
    issued, last_of = 0, {}

    def read(i):
        nonlocal issued
        f = frags[i]
        for x in f.get("pre_read", []):
            a(x)
        for dst, addr, off in f.get("extra_reads", []):
            a(f"ds_read_b128 {vr(dst, 4)}, v{addr} offset:{off}")
            issued += 1
        a(f"ds_read_b128 {vr(f['abuf'] + 4 * (i % nb), 4)}, v{f['addr']} offset:{f['off']}")
        issued += 1
        last_of[i] = issued

    for i in range(min(dist, n)):
        read(i)
    for i, f in enumerate(frags):
        for x in f.get("pre_mma", []):
            a(x)
        if i % group == 0:
            a(f"s_waitcnt lgkmcnt({issued - last_of[min(i + group - 1, n - 1)]})")
        A = f["abuf"] + 4 * (i % nb)
        for k, (acc, b) in enumerate(zip(f["acc"], f["b"])):
            a(mfma16(acc, A, b, "0" if f["first"] else acc))
            if k == 0 and i + dist < n:
                read(i + dist)
        for x in f.get("post_mma", []):
            a(x)


def bloads(breg, s_base, step, nt):
    out = []
    for n in range(nt):
        if step % 4 == 0 and step:
            out.append(f"s_add_u32 s{s_base + n}, s{s_base + n}, 4096")
        out.append(f"buffer_load_dwordx4 {vr(breg + 4 * n, 4)}, v{VL16}, s[{WS}:{WS + 3}], s{s_base + n} offen"
                   + (f" offset:{1024 * (step % 4)}" if step % 4 else "") + " sc1")
    return out


def plan_b(fr, per, nsteps, W, BW, S_B, lead, nt=2, extra=()):
    order = [(s, nt) for s in range(lead)] + [("x", sum("buffer_load" in x for x in extra))]
    first = [x for s in range(lead) for x in bloads(BW + 4 * nt * (s % W), S_B, s, nt)] + list(extra)
    nxt = lead
    for s in range(nsteps):
        f0, fl = fr[s * per], fr[s * per + per - 1]
        pos = [k for k, _ in order].index(s)
        f0.setdefault("pre_mma", []).insert(0, f"s_waitcnt vmcnt({sum(c for _, c in order[pos + 1:])})")
        slots = [fr[s * per + per // 2 - 1], fl]
        for k, f in enumerate(slots):
            limit = s + W - 1 if k == 0 else s + W
            if nxt < nsteps and nxt <= limit:
                f.setdefault("post_mma", []).extend(bloads(BW + 4 * nt * (nxt % W), S_B, nxt, nt))
                order.append((nxt, nt))
                nxt += 1
    assert nxt == nsteps
    return first


def line_touch(vtmp, vdst, s_base, nlines, s_part, stride=128):
    if mcommon.OPT.get("atouch", "0") != "1":
        return []
    out = [f"s_mul_i32 s68, s{s_part}, {nlines * stride}", f"s_add_u32 s68, s68, s{s_base}",
           f"v_lshlrev_b32 v{vtmp}, 7, v{LANE}"]
    left, k = nlines, 0
    while left > 0:
        n = min(left, 64)
        if n < 64:
            m = (1 << n) - 1
            out += [f"s_mov_b32 exec_lo, {m & 0xffffffff:#x}", f"s_mov_b32 exec_hi, {m >> 32:#x}"]
        if k:
            out.append("s_add_u32 s68, s68, 8192")
        out.append(f"buffer_load_dword v{vdst}, v{vtmp}, s[{WS}:{WS + 3}], s68 offen sc1")
        if n < 64:
            out.append("s_mov_b64 exec, -1")
        left -= n
        k += 1
    return out


def add_bf16(a, acc, src, n):
    for j in range(n):
        r, t = acc + 2 * j, 12 + 2 * (j % 2)
        a(f"""
v_lshlrev_b32 v{t}, 16, v{src + j}
v_and_b32 v{t + 1}, 0xffff0000, v{src + j}
v_pk_add_f32 v[{r}:{r + 1}], v[{r}:{r + 1}], v[{t}:{t + 1}]""")


def compute345(a):
    S_B, S_TT = 46, 34
    VQ, VT, V4, VA = 4, 5, 6, 7
    D35 = int(mcommon.OPT.get("d35", 9))
    BW, AB, ACC = 16, 96, 148
    a(f"""
v_lshrrev_b32 v{VQ}, 4, v{LANE}
v_and_b32 v{VT}, 15, v{LANE}
v_lshlrev_b32 v{V4}, 2, v{LANE}
s_lshl_b32 s{S_TT}, s{S_RB}, 2
s_add_u32 s{S_TT}, s{S_TT}, s{S_W}
s_lshl_b32 s62, s{S_RB}, 7
s_add_u32 s62, s62, {OFLG}
s_mul_i32 s63, s{S_TT}, 20480
s_add_u32 s{S_B}, s63, {OF}
v_add_u32 v{VA}, {LDS_WO}, v{VL16}
v_add_u32 v{VA + 1}, {LDS_WO + 51200}, v{VL16}
s_barrier""")
    a.stamp(16)
    fr = []
    for s in range(20):
        for m in range(5):
            f = dict(addr=VA + s // 10, off=(s % 10) * 5120 + m * 1024, abuf=AB, acc=[ACC + 4 * m],
                     b=[BW + 4 * s], first=(s == 0))
            if m == 0 and s in (0, 10):
                f["pre_mma"] = a.stamp_lines(45 + s // 10)
            fr.append(f)
    a(f"s_mov_b32 s69, s{S_B}")
    for x in plan_b(fr, 5, 20, 20, BW, S_B, int(mcommon.OPT.get("lead3", 6)), 1, line_touch(11, 254, 69, 20, S_CB)):
        a(x)
    stream(a, fr, D35, 2)
    a.stamp(17)
    a("s_nop 7")
    add_bf16(a, ACC, RES, 10)
    for j in range(10):
        a(f"v_cvt_pk_bf16_f32 v{HRES + j}, v{ACC + 2 * j}, v{ACC + 2 * j + 1}")
    a(f"""
s_mov_b32 s60, s{S_TT}
s_mul_i32 s61, s60, 20480
s_mul_i32 s62, s{S_CB}, 5
s_lshr_b32 s62, s62, 1
s_lshl_b32 s62, s62, 10
s_add_u32 s61, s61, s62
s_add_u32 s61, s61, {HF}
s_bitcmp1_b32 s{S_CB}, 0
s_cbranch_scc1 L_p3_odd
buffer_store_dwordx4 {vr(HRES, 4)}, v{VL16}, s[{WS}:{WS + 3}], s61 offen sc1
buffer_store_dwordx4 {vr(HRES + 4, 4)}, v{VL16}, s[{WS}:{WS + 3}], s61 offen offset:1024 sc1
buffer_store_dwordx2 {vr(HRES + 8, 2)}, v{VL16}, s[{WS}:{WS + 3}], s61 offen offset:2048 sc1
s_branch L_p3_st
L_p3_odd:
buffer_store_dwordx2 {vr(HRES, 2)}, v{VL16}, s[{WS}:{WS + 3}], s61 offen offset:8 sc1
buffer_store_dwordx4 {vr(HRES + 2, 4)}, v{VL16}, s[{WS}:{WS + 3}], s61 offen offset:1024 sc1
buffer_store_dwordx4 {vr(HRES + 6, 4)}, v{VL16}, s[{WS}:{WS + 3}], s61 offen offset:2048 sc1
L_p3_st:
v_pk_mul_f32 v[12:13], v[{ACC}:{ACC + 1}], v[{ACC}:{ACC + 1}]
v_mov_b32 v14, v{ACC}
v_mov_b32 v15, v{ACC + 1}""")
    for j in range(1, 10):
        r = ACC + 2 * j
        a(f"v_pk_fma_f32 v[12:13], v[{r}:{r + 1}], v[{r}:{r + 1}], v[12:13]")
        a(f"v_pk_add_f32 v[14:15], v[14:15], v[{r}:{r + 1}]")
    a(f"""
v_add_f32 v11, v12, v13
v_add_f32 v10, v14, v15
s_lshl_b32 s60, s60, 10
s_lshl_b32 s61, s{S_CB}, 3
s_add_u32 s60, s60, s61
s_add_u32 s60, s60, {ST}""")
    a.quad_sum(10, 12)
    a.quad_sum(11, 12)
    a(f"""
v_lshlrev_b32 v13, 6, v{VT}
v_lshl_add_u32 v13, v{VQ}, 28, v13
s_lshl_b32 s61, s{S_TT}, 7
s_lshl_b32 s62, s{S_CB}, 2
s_add_u32 s61, s61, s62
s_add_u32 s61, s61, {HFLG}
buffer_store_dwordx2 v[10:11], v13, s[{WS}:{WS + 3}], s60 offen sc1
s_barrier""")
    a.stamp(48)
    a("s_waitcnt vmcnt(0)")
    a.set_flag(10, 12, WS, "s61")
    a.stamp(18)
    ACC, BW, AB, VB, STT = 16, 112, 192, 220, 224
    a(f"""
s_lshl_b32 s60, s{S_RB2}, 2
s_add_u32 s31, s60, s{S_W}
s_lshl_b32 s63, s31, 11
s_add_u32 s63, s63, {ST}
v_lshlrev_b32 v13, 6, v{VT}
v_lshl_add_u32 v13, v{VQ}, 4, v13
s_lshl_b32 s64, s{S_W}, 11
s_add_u32 s64, s64, 12288""")
    for j in range(3):
        a(f"v_add_u32 v{VA + j}, {3 * SLOT * j}, v{VL16}\nv_add_u32 v{VB + j}, s64, v{VA + j}")
    a("s_barrier")
    a.stamp(49)
    a("s_barrier")
    a.stamp(19)
    a(f"""
buffer_load_dwordx4 {vr(STT, 4)}, v13, s[{WS}:{WS + 3}], s63 offen sc1
buffer_load_dwordx4 {vr(STT + 4, 4)}, v13, s[{WS}:{WS + 3}], s63 offen offset:1024 sc1""")

    def acc4(fp, gu, n):
        return 16 + ((fp * 2 + gu) * 2 + n) * 4

    BX = 176
    fr = []
    for s in range(21):
        slot = s % NSLOT
        off = (slot % 3) * SLOT
        for m in range(12):
            breg = BW + 8 * (s % 2) if s < 20 else BX
            f = dict(addr=VA + slot // 3, off=off + m * 1024, abuf=AB,
                     acc=[acc4(m // 2, m % 2, 0), acc4(m // 2, m % 2, 1)], b=[breg, breg + 4], first=(s == 0))
            if m == 0 and s > 0:
                f["pre_read"] = ["s_barrier"]
            if m == 0 and s < 20:
                f["extra_reads"] = [(breg, VB + slot // 3, off), (breg + 4, VB + slot // 3, off + 1024)]
            if m == 0 and s in (0, 4, 8, 12, 16):
                f["pre_mma"] = a.stamp_lines(32 + s // 4)
            fr.append(f)
    fr[35].setdefault("post_mma", []).append("s_waitcnt vmcnt(0)")
    st = []
    for n in range(2):
        r = STT + 4 * n
        st += [f"v_add_f32 v{r}, v{r}, v{r + 2}", f"v_add_f32 v{r + 1}, v{r + 1}, v{r + 3}"]
    for n in range(2):
        for k in range(2):
            r = STT + 4 * n + k
            for width in (32, 16):
                st += [f"v_mov_b32 v12, v{r}", "s_nop 1", f"v_permlane{width}_swap_b32 v{r}, v12", "s_nop 1",
                       f"v_add_f32 v{r}, v{r}, v12"]
        r = STT + 4 * n
        st += [f"v_mul_f32 v{r}, {f32(1 / 640)}, v{r}", f"v_mul_f32 v{r + 1}, {f32(1 / 640)}, v{r + 1}",
               f"v_fma_f32 v{r + 1}, -v{r}, v{r}, v{r + 1}", f"v_max_f32 v{r + 1}, 0, v{r + 1}",
               f"v_add_f32 v{r + 1}, {f32(1e-5)}, v{r + 1}", f"v_rsq_f32 v{r + 1}, v{r + 1}"]
    ext = []
    for n in range(2):
        mean, bb = STT + 4 * n, BX + 4 * n
        ext += [f"v_cvt_pk_bf16_f32 v12, v{mean}, v{mean}", "v_and_b32 v13, 0xffff0000, v12",
                f"v_sub_f32 v13, v13, v{mean}", f"v_xor_b32 v{bb + 1}, 0x80008000, v12",
                "v_cvt_pk_bf16_f32 v13, v13, v13", f"v_mov_b32 v{bb + 2}, 0", f"v_mov_b32 v{bb + 3}, 0",
                f"v_and_b32 v12, 0xffff, v{bb + 1}", "v_lshlrev_b32 v13, 16, v13", f"v_or_b32 v{bb}, v12, v13"]
    for k in range(0, len(st), 2):
        fr[36 + k // 2].setdefault("post_mma", []).extend(st[k:k + 2])
    for k in range(0, len(ext), 2):
        fr[15 * 12 + k // 2].setdefault("post_mma", []).extend(ext[k:k + 2])
    stream(a, fr)
    a.stamp(20)
    C = [224, 228]
    for n in range(2):
        a(f"""
v_rcp_f32 v{C[n] + 2}, v{C[n] + 1}
v_mul_f32 v{C[n]}, {f32(-LOG2E)}, v{C[n] + 1}
v_mul_f32 v{C[n] + 2}, {f32(-LOG2E)}, v{C[n] + 2}""")
    a(f"""
s_mul_i32 s60, s31, 96
s_mul_i32 s61, s{S_FB}, 3
s_add_u32 s60, s60, s61
s_lshl_b32 s60, s60, 10
s_add_u32 s60, s60, {HHF}
s_add_u32 s61, s60, {48 * 1024}
s_lshl_b32 s62, s31, 8
s_lshr_b32 s63, s{S_FB}, 3
s_lshl_b32 s63, s63, 7
s_add_u32 s62, s62, s63
s_and_b32 s63, s{S_FB}, 7
s_lshl_b32 s63, s63, 2
s_add_u32 s62, s62, s63
s_add_u32 s62, s62, {HHFLG}""")
    TT, OO = 112, 128
    k = 0
    for sg in range(3):
        for n in range(2):
            g = [acc4(2 * sg, 0, n), acc4(2 * sg, 0, n) + 2, acc4(2 * sg + 1, 0, n), acc4(2 * sg + 1, 0, n) + 2]
            u = [acc4(2 * sg, 1, n), acc4(2 * sg, 1, n) + 2, acc4(2 * sg + 1, 1, n), acc4(2 * sg + 1, 1, n) + 2]
            o = OO + 4 * (k % 4)
            k += 1
            c1, kk = C[n], C[n] + 2
            for j in range(4):
                a(f"v_pk_mul_f32 v[{g[j]}:{g[j] + 1}], v[{g[j]}:{g[j] + 1}], v[{c1}:{c1 + 1}] op_sel_hi:[1,0]")
            for j in range(4):
                a(f"v_exp_f32 v{TT + 2 * j}, v{g[j]}\nv_exp_f32 v{TT + 2 * j + 1}, v{g[j] + 1}")
            for j in range(4):
                a(f"v_pk_mul_f32 v[{g[j]}:{g[j] + 1}], v[{g[j]}:{g[j] + 1}], v[{u[j]}:{u[j] + 1}]")
            for j in range(4):
                t = TT + 2 * j
                a(f"v_pk_fma_f32 v[{t}:{t + 1}], v[{t}:{t + 1}], v[{kk}:{kk + 1}], v[{kk}:{kk + 1}] op_sel_hi:[1,0,0]")
            for j in range(8):
                a(f"v_rcp_f32 v{TT + j}, v{TT + j}")
            for j in range(4):
                t = TT + 2 * j
                a(f"v_pk_mul_f32 v[{g[j]}:{g[j] + 1}], v[{g[j]}:{g[j] + 1}], v[{t}:{t + 1}]")
            for j in range(4):
                a(f"v_cvt_pk_bf16_f32 v{o + j}, v{g[j]}, v{g[j] + 1}")
            a(f"buffer_store_dwordx4 {vr(o, 4)}, v{VL16}, s[{WS}:{WS + 3}], s{60 + n} offen offset:{1024 * sg} sc1")
    a.stamp(21)
    a("s_barrier\ns_waitcnt vmcnt(0)")
    a.set_flag(10, 12, WS, "s62")
    a.stamp(22)
    ACC, AB, BW, W = 16, 40, 92, int(mcommon.OPT.get('w5', 12))
    a(f"""
s_lshl_b32 s62, s{S_RB}, 9
s_add_u32 s62, s62, {HHFLG}
s_mul_i32 s63, s{S_TT}, {48 * 1024}
s_add_u32 s{S_B}, s63, {HHF}
s_mov_b32 s69, s{S_B}
v_lshrrev_b32 v11, 3, v{LANE}
v_lshlrev_b32 v11, 7, v11
v_and_b32 v12, 7, v{LANE}
v_lshl_add_u32 v11, v12, 2, v11""")
    a.srd(TS, P_OUT, 2048 * 1280)
    a("s_barrier")
    a.stamp(23)
    fr = []
    for s in range(48):
        c, sg = divmod(s, 4)
        slot = (c + N4) % NSLOT
        for m in range(5):
            f = dict(addr=VA + slot // 3, off=(slot % 3) * SLOT + sg * 5120 + m * 1024, abuf=AB,
                     acc=[ACC + 4 * m], b=[BW + 4 * (s % W)], first=(s == 0))
            if m == 0 and sg == 0 and c > 0:
                f["pre_read"] = ["s_barrier"]
            if m == 0 and s in (0, 12, 24, 36):
                f["pre_mma"] = a.stamp_lines(40 + s // 12)
            fr.append(f)
    for x in plan_b(fr, 5, 48, W, BW, S_B, int(mcommon.OPT.get("lead5", 6)), 1, line_touch(11, 254, 69, 48, S_CB)):
        a(x)
    a("s_barrier")
    stream(a, fr, D35, 2)
    a.stamp(24)
    a("s_nop 7")
    add_bf16(a, ACC, HRES, 10)
    PK = BW
    oaux = " " + mcommon.OPT["oaux"].replace("+", " ") if mcommon.OPT.get("oaux") else ""
    for j in range(10):
        a(f"v_cvt_pk_bf16_f32 v{PK + j}, v{ACC + 2 * j}, v{ACC + 2 * j + 1}")
    a(f"""
s_lshl_b32 s60, s{S_RB}, 6
s_lshl_b32 s61, s{S_W}, 4
s_add_u32 s60, s60, s61
v_add_u32 v10, s60, v{VT}
v_mul_u32_u24 v10, 1280, v10
v_lshl_add_u32 v11, v{VQ}, 3, v10
v_and_b32 v12, 1, v{VQ}
v_lshl_add_u32 v10, v12, 5, v10
v_lshrrev_b32 v12, 1, v{VQ}
v_lshl_add_u32 v10, v12, 4, v10
s_mul_i32 s60, s{S_CB}, 160
buffer_store_dwordx2 {vr(PK + 8, 2)}, v11, s[{TS}:{TS + 3}], s60 offen offset:128{oaux}""")
    for j in range(2):
        r = PK + 4 * j
        a(f"""
v_permlane16_swap_b32 v{r}, v{r + 2}
v_permlane16_swap_b32 v{r + 1}, v{r + 3}
buffer_store_dwordx4 {vr(r, 4)}, v10, s[{TS}:{TS + 3}], s60 offen offset:{64 * j}{oaux}""")
    if mcommon.STAMPS:
        a("s_waitcnt vmcnt(0)")
    a.stamp(25)
    a.stamp(26, True)
    a.stamp_out()
    if mcommon.OPT.get("probe"):
        i, j, mult, real = (int(x) for x in mcommon.OPT["probe"].split(","))
        op = "s_memrealtime" if real else "s_memtime"
        a(f"""
s_cmp_lg_u32 s2, {mcommon.OPT.get("probewg", 0)}
s_cbranch_scc1 L_end
s_cmp_lg_u32 s{S_W}, 0
s_cbranch_scc1 L_end
v_readlane_b32 s60, v{V_STAMP}, {i}
v_readlane_b32 s61, v{V_STAMP}, {j}
{op} s[62:63]
s_waitcnt lgkmcnt(0)
s_sub_u32 s60, s61, s60
s_min_u32 s60, s60, 200000
s_mul_i32 s60, s60, {mult}
L_probe:
{op} s[64:65]
s_waitcnt lgkmcnt(0)
s_sub_u32 s64, s64, s62
s_cmp_lt_u32 s64, s60
s_cbranch_scc1 L_probe""")
```

```python
from mcommon import *
import mcommon

LDS_WR = 81920
LDS_KVW = 131072
LDS_Q = LDS_WR + 2 * 12288
LDS_PS = LDS_Q
W_LDS = [LDS_WR + 12288 * c for c in range(4)] + [LDS_KVW, LDS_KVW + 12288] + [12288 * c for c in range(4)]
LDS_MISC = 155648
LDS_PART = LDS_KVW + 26368
LDS_SYNC = 163600
LDS_READY = 163584
QSCALE = 20 ** -0.5 * LOG2E
SAFE_V = 2.0 ** 30
CA_INIT = (104, 136)


def phase1(a, tail, young_prep, young_tail):
    XR, T8, SUB = 16, 62, 63
    a(f"""
s_cmp_ge_u32 s2, 256
s_cbranch_scc1 L_end
s_load_dwordx8 s[36:43], s[0:1], 0
s_load_dwordx4 s[56:59], s[0:1], 80
s_load_dwordx2 s[44:45], s[0:1], 32
s_load_dwordx8 s[48:55], s[0:1], 48
v_lshrrev_b32 v1, 6, v0
v_and_b32 v{LANE}, 63, v0
v_readfirstlane_b32 s{S_W}, v1
s_and_b32 s60, s2, 7
s_lshr_b32 s61, s2, 3
s_lshl_b32 s{S_RB}, s60, 2
s_and_b32 s62, s61, 3
s_add_u32 s{S_RB}, s{S_RB}, s62
s_lshr_b32 s{S_CB}, s61, 2
s_lshl_b32 s{S_IDX}, s60, 5
s_add_u32 s{S_IDX}, s{S_IDX}, s61
s_lshr_b32 s{S_HALF}, s{S_W}, 2
s_and_b32 s{S_P}, s{S_W}, 3
s_lshl_b32 s{S_HEAD}, s{S_CB}, 2
s_add_u32 s{S_HEAD}, s{S_HEAD}, s{S_P}
s_and_b32 s62, s60, 1
s_lshl_b32 s62, s62, 3
s_and_b32 s63, s61, 7
s_add_u32 s{S_RB2}, s62, s63
s_lshr_b32 s62, s60, 1
s_lshl_b32 s62, s62, 2
s_lshr_b32 s63, s61, 3
s_add_u32 s{S_FB}, s62, s63
v_lshlrev_b32 v{VL16}, 4, v{LANE}
s_mul_i32 s32, s{S_CB}, 160
v_mov_b32 v4, {LDS_READY}
v_mov_b32 v6, 0
v_mov_b32 v7, 0
v_mov_b32 v8, 0
v_mov_b32 v9, 0
ds_write_b128 v4, v[6:9]
ds_write_b128 v4, v[6:9] offset:16
ds_write_b128 v4, v[6:9] offset:32
s_and_b32 s60, s{S_CB}, 6
s_add_u32 s60, s60, s{S_W}
s_and_b32 s31, s60, 7
s_lshl_b32 s60, s{S_RB}, 6
s_lshl_b32 s61, s31, 3
s_add_u32 s60, s60, s61
v_lshrrev_b32 v{T8}, 3, v{LANE}
v_and_b32 v{SUB}, 7, v{LANE}
v_add_u32 v5, s60, v{T8}
v_mul_u32_u24 v5, 1280, v5
v_lshl_add_u32 v5, v{SUB}, 4, v5
s_waitcnt lgkmcnt(0)
s_barrier""")
    a.stamp(0)
    a.stamp(1, True)
    a.srd(XS, P_X, 2048 * 1280)
    a.srd(WS, P_WS, WS_USED)
    a(f"""
s_and_b32 s60, s{S_IDX}, 31
s_lshl_b32 s60, s60, 3
s_add_u32 s35, s60, s{S_W}
s_cmp_lg_u32 s35, {31 * 8 + 3}
s_cbranch_scc1 L_p1_noclear
s_lshr_b32 s61, s{S_IDX}, 5
s_mul_i32 s60, s61, {FLG_BYTES // 8}
s_add_u32 s60, s60, {FLG}
v_mov_b32 v180, 0
v_mov_b32 v181, 0
v_mov_b32 v182, 0
v_mov_b32 v183, 0""")
    for i in range(FLG_BYTES // 8192):
        if i and i % 4 == 0:
            a("s_add_u32 s60, s60, 4096")
        a(f"buffer_store_dwordx4 v[180:183], v{VL16}, s[{WS}:{WS + 3}], s60 offen offset:{1024 * (i % 4)} sc1")
    a("L_p1_noclear:")
    xaux = " nt" if mcommon.OPT.get("xnt", "1") == "1" else ""
    for i in range(10):
        a(f"buffer_load_dwordx4 {vr(XR + 4 * i, 4)}, v5, s[{XS}:{XS + 3}], 0 offen offset:{128 * i}{xaux}")
    a(f"""
s_bitcmp1_b32 s{S_CB}, 0
s_cselect_b32 s{P_WK}, s{P_WV}, s{P_WK}
s_cselect_b32 s{P_WK + 1}, s{P_WV + 1}, s{P_WK + 1}""")
    a.srd(KS, P_WK, 640 * 40)
    a(f"""
s_mul_i32 s66, s{S_P}, 7168
s_add_u32 s65, s66, {LDS_KVW}
s_cmp_ge_u32 s{S_W}, 4
s_cbranch_scc1 L_p1_nokvw""")
    for i in range(7):
        if i == 4:
            a("s_add_u32 s65, s65, 4096\ns_add_u32 s66, s66, 4096")
        a.dma(VL16, KS, "s66", "s65" if i % 4 == 0 else None, imm=1024 * (i % 4))
    a("L_p1_nokvw:")
    a.srd(TS, P_WQ, 640 * 1280)
    a.srd(DS, P_DBG, 256)

    def w_voffs(sbase):
        for i in range(3):
            a(f"""
v_add_u32 v6, s{sbase}, v{LANE}
v_add_u32 v6, {64 * i}, v6
v_mul_u32_u24 v7, 43691, v6
v_lshrrev_b32 v7, 19, v7
v_mul_u32_u24 v8, 12, v7
v_sub_u32 v8, v6, v8
v_mul_u32_u24 v7, 1280, v7
v_lshl_add_u32 v{9 + i}, v8, 4, v7""")

    a(f"s_mul_i32 s61, s{S_P}, 192")
    w_voffs(61)
    SA, SB, QA, QB, RS, NB = 56, 57, 58, 59, 60, 61
    a(f"""
v_mov_b32 v{SA}, 0
v_mov_b32 v{SB}, 0
v_mov_b32 v{QA}, 0
v_mov_b32 v{QB}, 0
s_mov_b32 s67, 0x3f803f80
s_lshr_b32 s60, s31, 2
s_mul_i32 s60, s60, 40960
s_and_b32 s61, s31, 3
s_lshl_b32 s61, s61, 7
s_add_u32 s60, s60, s61
v_xor_b32 v6, v{T8}, v{SUB}
v_lshlrev_b32 v6, 4, v6
v_lshlrev_b32 v7, 9, v{SUB}
v_add3_u32 v13, v6, v7, s60""")
    for cls, younger in enumerate((7, 12)):
        if cls == 0:
            a(f"s_cmp_ge_u32 s{S_W}, 4\ns_cbranch_scc1 L_p1_stat_y")
        else:
            a(f"s_mul_i32 s63, s{S_P}, 3072\ns_add_u32 s63, s63, {LDS_WR}")
            for c in range(4):
                a(f"s_add_u32 s64, s32, {c * 64 * 1280}")
                for i in range(3):
                    a(f"s_add_u32 m0, s63, {c * 12288 + i * 1024}\ns_nop 0")
                    a(f"buffer_load_dwordx4 v{9 + i}, s[{TS}:{TS + 3}], s64 offen lds")
        for i in range(10):
            a(f"s_waitcnt vmcnt({9 + younger - i})")
            if i == 0:
                a.stamp(2)
            for j in range(4):
                r = XR + 4 * i + j
                s, q = (SA, QA) if j % 2 == 0 else (SB, QB)
                a(f"v_dot2_f32_bf16 v{s}, v{r}, s67, v{s}")
                a(f"v_dot2_f32_bf16 v{q}, v{r}, v{r}, v{q}")
        if cls == 0:
            a(f"v_lshlrev_b32 v7, 2, v{LANE}\nbuffer_load_dword v82, v7, s[{DS}:{DS + 3}], 0 offen sc1")
            a("s_branch L_p1_stat_done\nL_p1_stat_y:")
    a("L_p1_stat_done:")
    a.stamp(3)
    a(f"""
s_cmp_lg_u32 s35, {31 * 8 + 3}
s_cbranch_scc1 L_p1_noreport
s_lshr_b32 s61, s{S_IDX}, 5
s_lshl_b32 s61, s61, 2""")
    a.set_flag(180, 181, DS, "s61")
    a(f"""
L_p1_noreport:
s_nop 2
v_add_f32 v{SA}, v{SA}, v{SB}
v_add_f32 v{QA}, v{QA}, v{QB}""")
    for m in ("quad_perm:[1,0,3,2]", "quad_perm:[2,3,0,1]", "row_half_mirror"):
        a(f"""
s_nop 1
v_add_f32_dpp v{SA}, v{SA}, v{SA} {m} row_mask:0xf bank_mask:0xf
v_add_f32_dpp v{QA}, v{QA}, v{QA} {m} row_mask:0xf bank_mask:0xf""")
    a(f"""
s_nop 0
v_mul_f32 v{SA}, {f32(1 / 640)}, v{SA}
v_mul_f32 v{QA}, {f32(1 / 640)}, v{QA}
v_fma_f32 v{QA}, -v{SA}, v{SA}, v{QA}
v_max_f32 v{QA}, 0, v{QA}
v_add_f32 v{QA}, {f32(1e-5)}, v{QA}
v_rsq_f32 v{RS}, v{QA}
s_nop 0
v_mul_f32 v{NB}, v{SA}, v{RS}
v_sub_f32 v{NB}, 0, v{NB}""")
    TN = [64, 72]

    def unpack(i):
        for j in range(4):
            r, t = XR + 4 * i + j, TN[i % 2] + 2 * j
            a(f"v_lshlrev_b32 v{t}, 16, v{r}\nv_and_b32 v{t + 1}, 0xffff0000, v{r}")

    unpack(0)
    for i in range(10):
        for j in range(4):
            t = TN[i % 2] + 2 * j
            a(f"v_pk_fma_f32 v[{t}:{t + 1}], v[{t}:{t + 1}], v[{RS}:{RS + 1}], v[{RS}:{RS + 1}] op_sel:[0,0,1] op_sel_hi:[1,0,1]")
        if i < 9:
            unpack(i + 1)
        for j in range(4):
            t = TN[i % 2] + 2 * j
            a(f"v_cvt_pk_bf16_f32 v{XR + 4 * i + j}, v{t}, v{t + 1}")
        a(f"ds_write_b128 v13, {vr(XR + 4 * i, 4)} offset:{4096 * i}")
    a.stamp(4)
    BA, WA, KA, H, TOK = 84, 8, 14, 80, 81
    ACC0, ACC1, BUF = 16, 32, 48
    S_WN, S_WM = 33, 34
    a(f"""
s_and_b32 s{S_WN}, s{S_W}, 1
s_bfe_u32 s{S_WM}, s{S_W}, 0x10001
v_lshrrev_b32 v{H}, 5, v{LANE}
v_and_b32 v{TOK}, 31, v{LANE}
s_mul_i32 s60, s{S_WN}, 40960
v_and_b32 v12, 24, v{TOK}
v_and_b32 v13, 7, v{TOK}
v_lshlrev_b32 v93, 9, v{H}""")
    for q in range(4):
        a(f"""
v_or_b32 v15, {2 * q}, v{H}
v_xor_b32 v15, v15, v13
v_or_b32 v15, v15, v12
v_lshl_add_u32 v15, v15, 4, v93
v_add_u32 v15, s60, v15
v_add_u32 v{BA + q}, {1024 * q}, v15""")
    a(f"""
v_bfe_u32 v12, v{LANE}, 2, 2
v_lshl_add_u32 v12, v{H}, 3, v12
v_bfe_u32 v13, v{LANE}, 4, 1
v_lshlrev_b32 v13, 5, v13
v_and_b32 v15, 3, v{LANE}
v_lshl_add_u32 v13, v15, 3, v13
v_mul_u32_u24 v15, 192, v12
v_add_u32 v15, v15, v13
s_lshl_b32 s60, s{S_WM}, 7
v_add_u32 v94, s60, v15
v_add_u32 v{WA}, {LDS_WR}, v94
v_add_u32 v95, {LDS_KVW}, v94
v_mul_u32_u24 v15, 40, v12
v_add_u32 v15, v15, v13
v_add_u32 v{KA}, {LDS_KVW}, v15""")
    def ring():
        sq = []

        def chunk(c):
            a(f"s_add_u32 s64, s32, {c * 64 * 1280}")
            for i in range(3):
                a(f"s_add_u32 m0, s31, {W_LDS[c] + i * 1024}\ns_nop 0")
                a(f"buffer_load_dwordx4 v{96 + i}, s[{TS}:{TS + 3}], s64 offen lds")
                sq.append(c)

        def wait_for(tag):
            last = max(i for i, x in enumerate(sq) if x == tag)
            a(f"s_waitcnt vmcnt({len(sq) - 1 - last})")

        a(f"s_mul_i32 s31, s{S_P}, 3072\nv_mov_b32 v96, v9\nv_mov_b32 v97, v10\nv_mov_b32 v98, v11")
        a(f"buffer_load_dword v8, v7, s[{DS}:{DS + 3}], 0 offen sc1")
        sq.append("clr")
        chunk(4)
        chunk(5)
        young_prep(a, 1)
        a("s_barrier")
        for c in range(6, 10):
            chunk(c)
        wait_for(5)
        a("s_barrier")
        a(f"""
v_cmp_gt_u32 s[60:61], 8, v{LANE}
v_cmp_ne_u32 vcc, 1, v8
s_nop 4
s_and_b64 s[60:61], vcc, s[60:61]
s_cbranch_scc0 L_clr_ok""")
        a.poll(7, 8, DS, "0", 8)
        a("L_clr_ok:")
        young_prep(a, 0)
        young_prep(a, 2)
        wait_for(7)
        a("s_barrier")
        young_prep(a, 10)
        wait_for(9)
        a("s_barrier")
        young_prep(a, 11)

    KACC, AB, BB, VB0, VA0, Q4, T16 = 16, 24, 96, 88, 90, 91, 92

    def lds_wait(off, regs, tag):
        a(f"""
v_mov_b32 v12, {LDS_SYNC}
s_mov_b32 s60, 0
L_lw_{tag}:
ds_read_b128 v[76:79], v12 offset:{off}
s_add_u32 s60, s60, 1
s_waitcnt lgkmcnt(0)""")
        a(f"v_and_b32 v76, v{regs[0]}, v{regs[1]}")
        for r in regs[2:]:
            a(f"v_and_b32 v76, v76, v{r}")
        a(f"""
s_cmp_ge_u32 s60, {SPIN_LIMIT * 16}
s_cbranch_scc1 L_lw_done_{tag}
v_readfirstlane_b32 s61, v76
s_nop 3
s_cmp_eq_u32 s61, 0
s_cbranch_scc1 L_lw_{tag}
L_lw_done_{tag}:""")

    def lds_set(off):
        a(f"""
s_lshl_b32 s60, s{S_P}, 2
s_add_u32 s60, s60, {LDS_SYNC + off}
v_mov_b32 v76, s60
v_mov_b32 v77, 1
ds_write_b32 v76, v77""")

    def project():
        a(f"""
v_lshrrev_b32 v{Q4}, 4, v{LANE}
v_and_b32 v{T16}, 15, v{LANE}
s_lshr_b32 s63, s{S_CB}, 1
s_and_b32 s60, s63, 1
s_lshr_b32 s61, s63, 1
s_mul_i32 s62, s61, 40960
s_lshl_b32 s64, s60, 8
s_add_u32 s62, s62, s64
s_mul_i32 s64, s{S_P}, 10240
s_add_u32 s62, s62, s64
s_and_b32 s64, s{S_P}, 1
s_lshl_b32 s64, s64, 2
v_and_b32 v12, 8, v{T16}
v_and_b32 v13, 7, v{T16}
v_lshlrev_b32 v15, 9, v{Q4}
v_add_u32 v15, s62, v15
v_xor_b32 v13, v13, v{Q4}
v_or_b32 v14, v12, v13
v_xor_b32 v14, s64, v14
v_lshl_add_u32 v{VB0}, v14, 4, v15
v_xor_b32 v14, 4, v14
v_lshl_add_u32 v{VB0 + 1}, v14, 4, v15
v_bfe_u32 v12, v{LANE}, 2, 2
v_lshl_add_u32 v12, v{Q4}, 3, v12
v_mul_u32_u24 v12, 40, v12
v_and_b32 v13, 3, v{LANE}
v_lshl_add_u32 v12, v13, 3, v12
s_mul_i32 s64, s{S_P}, 6400
s_add_u32 s64, s64, {LDS_KVW}
v_add_u32 v{VA0}, s64, v12""")

        def rd(S):
            b = AB + 8 * S
            a(f"ds_read_b128 {vr(BB + 4 * S, 4)}, v{VB0 + S % 2} offset:{2048 * S}")
            for mt in range(2):
                a(f"ds_read_b64_tr_b16 {vr(b + 4 * mt, 2)}, v{VA0} offset:{1280 * S + 32 * mt}")
                a(f"ds_read_b64_tr_b16 {vr(b + 4 * mt + 2, 2)}, v{VA0} offset:{1280 * S + 32 * mt + 160}")
        for S in range(3):
            rd(S)
        a(f"""
s_lshl_b32 s64, s{S_RB}, 1
s_add_u32 s64, s64, s61
s_mul_i32 s65, s64, 3072
s_add_u32 s65, s65, {KV}
s_lshl_b32 s64, s{S_RB}, 2
s_add_u32 s64, s64, s63
s_lshl_b32 s64, s64, 2
s_add_u32 s64, s64, {KN}
s_mov_b32 s35, s60
s_lshl_b32 s61, s{S_P}, 11
s_add_u32 s61, s61, {LDS_PART - 2048}
v_add_u32 v12, s61, v{VL16}
s_bitcmp1_b32 s{S_CB}, 0
s_cbranch_scc1 L_kv_v""")
        for kind in "kv":
            for S in range(5):
                a(f"s_waitcnt lgkmcnt({5 * min(2, 4 - S)})")
                b, bb = AB + 8 * S, BB + 4 * S
                for mt in range(2):
                    c = "0" if S == 0 else KACC + 4 * mt
                    a(mfma16(KACC + 4 * mt, b + 4 * mt, bb, c) if kind == "k" else mfma16(KACC + 4 * mt, bb, b + 4 * mt, c))
                if S + 3 < 5:
                    rd(S + 3)
            if kind == "k":
                a("s_branch L_kv_part\nL_kv_v:")
        a(f"""
L_kv_part:
s_cmp_eq_u32 s{S_P}, 0
s_nop 7
s_cbranch_scc1 L_kv_kept
ds_write_b128 v12, {vr(KACC, 4)}
ds_write_b128 v12, {vr(KACC + 4, 4)} offset:1024
s_waitcnt lgkmcnt(0)""")
        lds_set(16)
        if mcommon.OPT.get("wtouch", "1") == "1":
            a(f"""
s_and_b32 s60, s{S_RB}, 3
s_mul_i32 s60, s60, 3
s_add_u32 s60, s60, s{S_P}
s_sub_u32 s60, s60, 1
s_mul_i32 s60, s60, {32 * 1280}
s_add_u32 s60, s60, {256 * 1280}
s_add_u32 s60, s60, s32
v_lshrrev_b32 v12, 1, v{LANE}
v_mul_u32_u24 v12, 1280, v12
v_and_b32 v13, 1, v{LANE}
v_mul_u32_u24 v13, 156, v13
v_add_u32 v12, v12, v13
buffer_load_dword v83, v12, s[{TS}:{TS + 3}], s60 offen""")
        a("s_branch L_kv_done\nL_kv_kept:")

    def gather():
        a(f"v_add_u32 v12, {LDS_PART}, v{VL16}")
        for q in range(6):
            a(f"ds_read_b128 {vr(32 + 4 * q, 4)}, v12 offset:{1024 * q}")
        for q in range(3):
            a(f"s_waitcnt lgkmcnt({4 - 2 * q})")
            for j in range(8):
                a(f"v_add_f32 v{KACC + j}, v{KACC + j}, v{32 + 8 * q + j}")

    def finish(kind):
        a(f"""
v_and_b32 v12, 1, v{Q4}
v_lshlrev_b32 v12, 9, v12
v_lshrrev_b32 v13, 1, v{Q4}
v_lshl_add_u32 v12, v13, 3, v12
v_lshl_add_u32 v12, v{T16}, 4, v12
s_mov_b32 s60, s35""")
        for j in range(4):
            a(f"v_cvt_pk_bf16_f32 v{24 + j}, v{KACC + 2 * j}, v{KACC + 2 * j + 1}")
        if kind == "k":
            a(f"""
s_lshl_b32 s61, s60, 8
s_add_u32 s61, s61, s65
buffer_store_dwordx2 v[24:25], v12, s[{WS}:{WS + 3}], s61 offen sc1
v_lshlrev_b32 v13, 3, v{T16}
v_lshl_add_u32 v13, v{Q4}, 28, v13
s_lshl_b32 s61, s60, 9
s_add_u32 s61, s61, s65
v_cmp_eq_u32 s[66:67], 0, v{Q4}
v_mul_f32 v28, v{KACC + 4}, v{KACC + 4}
buffer_store_dwordx2 v[26:27], v13, s[{WS}:{WS + 3}], s61 offen offset:{1024 + 336} sc1""")
            for j in range(5, 8):
                a(f"v_fmac_f32 v28, v{KACC + j}, v{KACC + j}")
            a("v_cndmask_b32 v28, 0, v28, s[66:67]")
            for j in range(4):
                a(f"v_fmac_f32 v28, v{KACC + j}, v{KACC + j}")
            a.quad_sum(28, 29)
        else:
            a(f"""
s_lshl_b32 s61, s60, 10
s_add_u32 s61, s61, s65
buffer_store_dwordx2 v[24:25], v12, s[{WS}:{WS + 3}], s61 offen offset:1024 sc1
v_cmp_gt_u32 s[66:67], 4, v{T16}
v_cmp_eq_u32 s[68:69], 4, v{T16}
v_mov_b32 v29, 0x3f803f80
s_cmp_eq_u32 s60, 0
s_cselect_b32 s62, 0x001f001f, -1
v_cndmask_b32 v29, 0, v29, s[68:69]
v_cndmask_b32 v26, v29, v26, s[66:67]
v_cndmask_b32 v27, v29, v27, s[66:67]
v_max3_f32 v28, |v{KACC + 4}|, |v{KACC + 5}|, |v{KACC + 6}|
v_max_f32 v28, |v{KACC + 7}|, v28
s_mov_b32 exec_lo, s62
s_mov_b32 exec_hi, s62
buffer_store_dwordx2 v[26:27], v12, s[{WS}:{WS + 3}], s61 offen offset:1280 sc1
s_mov_b64 exec, -1
v_cndmask_b32 v28, 0, v28, s[66:67]
v_max3_f32 v28, |v{KACC}|, |v{KACC + 1}|, v28
v_max3_f32 v28, |v{KACC + 2}|, |v{KACC + 3}|, v28""")
        a.wave_max(28)
        a(f"""
v_mov_b32 v12, 0
s_mov_b32 exec_lo, 0
s_mov_b32 exec_hi, 0x80000000
buffer_store_dword v28, v12, s[{WS}:{WS + 3}], s64 offen{'' if kind == 'k' else ' offset:512'} sc1
s_mov_b64 exec, -1""")

    a(f"""
s_cmp_lt_u32 s{S_W}, 4
s_cbranch_scc1 L_p1_compute""")
    a(f"""
v_lshlrev_b32 v7, 2, v{LANE}
s_waitcnt vmcnt(0) lgkmcnt(0)""")
    a.stamp(56)
    a(f"""
s_barrier""")
    ring()
    a("L_p1_ring_done:")
    young_tail(a)
    a(f"""
L_p1_compute:
s_waitcnt vmcnt(1) lgkmcnt(0)""")
    a.stamp(27)
    lds_set(0)
    lds_wait(0, (76, 77, 78, 79), "a")
    a.stamp(28)
    project()
    a.stamp(29)
    lds_wait(16, (77, 78, 79), "b")
    gather()
    a(f"s_bitcmp1_b32 s{S_CB}, 0\ns_cbranch_scc1 L_kv_fin_v")
    finish("k")
    a("s_branch L_kv_pub\nL_kv_fin_v:")
    finish("v")
    a(f"""
L_kv_pub:""")
    a.stamp(7)
    a("L_kv_done:")
    a(f"s_min_u32 s35, s{S_W}, 1\ns_waitcnt lgkmcnt(0)\ns_barrier")
    a.stamp(5)
    a(f"""
s_cmp_eq_u32 s{S_WM}, 0
s_cbranch_scc0 L_p1_mq""")

    checks = list(range(int(mcommon.OPT.get("kv0", 2)), int(mcommon.OPT.get("kv1", 24)) + 1, 2))
    BR = 96
    nb = int(mcommon.OPT.get("nb", 5))
    last_b = (38 - 2 + nb - 1) // nb

    def mainloop(kind):
        lds = []

        def a_reads(s):
            b = BUF + 8 * (s % 4)
            c, sg = divmod(s, 4)
            base = W_LDS[c] + sg * 3072
            if base >= LDS_KVW:
                reg, off = 95, base - LDS_KVW
            elif base >= LDS_WR:
                reg, off = WA, base - LDS_WR
            else:
                reg, off = 94, base
            out = []
            for tl in range(2 if kind == "m01" else 1):
                out += [(f"ds_read_b64_tr_b16 {vr(b + 4 * tl, 2)}, v{reg} offset:{off + 64 * tl}", ("a", s)),
                        (f"ds_read_b64_tr_b16 {vr(b + 4 * tl + 2, 2)}, v{reg} offset:{off + 64 * tl + 768}", ("a", s))]
            return out

        def b_read(s):
            return (f"ds_read_b128 {vr(BR + 4 * (s % 39), 4)}, v{BA + s % 4} offset:{(s // 4) * 4096}", ("b", s))

        def emit(ops):
            for x, tag in ops:
                a(x)
                if tag:
                    lds.append(tag)

        emit([b_read(0)] + a_reads(0) + [b_read(1)] + a_reads(1))
        nxt = 2
        for s in range(40):
            last = max(i for i, x in enumerate(lds) if x in (("a", s), ("b", s)))
            a(f"s_waitcnt lgkmcnt({min(len(lds) - 1 - last, 15)})")
            b, br = BUF + 8 * (s % 4), BR + 4 * (s % 39)
            r = a_reads(s + 2) if s + 2 < 40 else []
            if s + 2 in (16, 24, 32):
                r = [("s_barrier", None)] + r
            for _ in range(nb):
                if nxt < 40 and (nxt < 39 or s >= 1):
                    r.append(b_read(nxt))
                    nxt += 1
            if 20 <= s < 36:
                r += [(f"v_mov_b32 v{CA_INIT[0] + 2 * (s - 20) + k}, 0", None) for k in range(2)]
            c0, c1 = ("0", "0") if s == 0 else (ACC0, ACC1)
            if kind == "m01":
                a(mfma(ACC1, b + 4, br, c1))
                h = (len(r) + 1) // 2
                emit(r[:h])
                r = r[h:]
            a(mfma(ACC0, b, br, c0))
            emit(r)
            if s == last_b:
                assert nxt == 40
                a("s_waitcnt lgkmcnt(0)\ns_barrier")
            if kind == "m01" and s in checks:
                if s != checks[-1]:
                    a(f"s_getreg_b32 s60, hwreg(HW_REG_IB_STS, 0, 4)\ns_or_b32 s60, s60, s35\ns_cmp_eq_u32 s60, 0")
                else:
                    a("s_cmp_eq_u32 s35, 0")
                a(f"s_cbranch_scc1 L_kv_publish{s}\nL_kv_published{s}:")
        a.stamp(6)

    def qoff(cg):
        return (cg // 5) * 3072 + [0, 512, 8, 520, 1024][cg % 5]

    def qwrite(tiles):
        a(f"""
s_mul_i32 s60, s{S_WN}, 1536
v_lshl_add_u32 v12, v{TOK}, 4, s60
v_xor_b32 v13, 1, v{H}
s_mov_b32 s62, {f32(QSCALE)}
s_nop 7""")
        k = 0
        for acc, m, groups in tiles:
            for g in range(groups):
                lo, up = qoff(8 * m + 2 * g), qoff(8 * m + 2 * g + 1)
                base = min(lo, up)
                sel = H if up > lo else 13
                r = acc + 4 * g
                t = 4 + 2 * (k % 2)
                k += 1
                a(f"""
s_mov_b32 s61, {abs(up - lo)}
v_mul_f32 v{r}, s62, v{r}
v_mul_f32 v{r + 1}, s62, v{r + 1}
v_mul_f32 v{r + 2}, s62, v{r + 2}
v_mul_f32 v{r + 3}, s62, v{r + 3}
v_mad_u32_u24 v14, v{sel}, s61, v12
v_add_u32 v14, {LDS_Q + base}, v14
v_cvt_pk_bf16_f32 v{t}, v{r}, v{r + 1}
v_cvt_pk_bf16_f32 v{t + 1}, v{r + 2}, v{r + 3}
ds_write_b64 v14, {vr(t, 2)}""")

    mainloop("m01")
    qwrite([(ACC1, 1, 4), (ACC0, 0, 4)])
    a("s_branch L_p1_q_done\nL_p1_mq:")
    mainloop("q")
    qwrite([(ACC0, 2, 2)])
    a("L_p1_q_done:")
    for ck in checks:
        tail(f"""
L_kv_publish{ck}:
v_cmp_gt_u32 s[60:61], 8, v{LANE}
s_waitcnt vmcnt(0)
v_cmp_ne_u32 vcc, 1, v82
s_mov_b32 s35, 1
s_nop 3
s_and_b64 s[60:61], vcc, s[60:61]
s_cbranch_scc0 L_kv_clr{ck}""")
        tail.poll(7, 82, DS, "0", 8)
        tail(f"""
L_kv_clr{ck}:
s_lshl_b32 s61, s{S_RB}, 7
s_add_u32 s61, s61, {KVFLG}
v_mov_b32 v12, 0
v_mov_b32 v13, 1
s_mov_b64 exec, 1
buffer_atomic_add v13, v12, s[{WS}:{WS + 3}], s61 offen sc1
s_mov_b64 exec, -1""")
        tail.stamp(31)
        tail(f"s_branch L_kv_published{ck}")
```

```python
from mcommon import *
import mcommon
from m1 import LDS_Q, LDS_PS, LDS_WR, LDS_MISC, LDS_READY, SAFE_V

SLOT_KV = 24576
X_OFF = LDS_WR
KV_SLOT = [X_OFF, 0, SLOT_KV, X_OFF, 0, SLOT_KV, 0, SLOT_KV]
LDS_WO = 49152
SAFE_BOUND = 80.0 / 1.03
RES = 230

VA, VV0, VK4, H, TOK = 4, 5, 6, 8, 9
VAX, VV0X, VK4X = 28, 29, 30
QA, QB = 16, 22
S0, S1 = 32, 48
P = 64
OA, OB = 72, 88
CA, CB = 104, 120
KB = [136, 142]
VB = [148, 156]
T = 164
S_SRC, S_DST, S_PSB = 32, 33, 34
S_PSI = 47
S_PD, S_PS, S_PI, S_PE = 72, 82, 87, 88
V_PS, V_TR = 12, 13


def ps_setup(a):
    a(f"""
s_and_b32 s60, s2, 7
s_lshr_b32 s61, s2, 3
s_mul_i32 s62, s60, 12
s_mul_i32 s63, s60, 17
s_add_u32 s63, s63, 96
s_add_u32 s62, s62, s61
s_sub_u32 s62, s62, 8
s_add_u32 s64, s63, s61
s_sub_u32 s65, s64, 20
s_add_u32 s64, s64, 12
s_cmp_lt_u32 s61, 20
s_cselect_b32 s{S_PSI}, s62, s65
s_cmp_lt_u32 s61, 8
s_cselect_b32 s{S_PSI}, s64, s{S_PSI}
s_sub_u32 s61, s61, 5
s_cmp_lt_u32 s61, 3
s_cselect_b32 s{S_PSI}, 255, s{S_PSI}
s_mul_i32 s{S_PSB}, s{S_P}, 10240
s_add_u32 s{S_PSB}, s{S_PSB}, {LDS_PS}
v_lshrrev_b32 v{V_PS}, 2, v{LANE}
v_and_b32 v15, 3, v{LANE}
v_lshlrev_b32 v{V_TR}, 6, v{V_PS}
v_lshl_add_u32 v{V_TR}, v15, 3, v{V_TR}
v_add_u32 v{V_TR}, s{S_PSB}, v{V_TR}
s_cmp_ge_u32 s{S_PSI}, 96
s_cbranch_scc1 L_ps_b
s_cmp_ge_u32 s{S_PSI}, 48
s_cselect_b32 s60, s{P_W3}, s{P_W1}
s_cselect_b32 s61, s{P_W3 + 1}, s{P_W1 + 1}
s_cselect_b32 s62, 48, 0
s_cselect_b32 s66, 1024, 0
s_mov_b32 s{KS + 2}, {640 * 3072}
s_mov_b32 s{S_PI}, {16 * 3072}
s_sub_u32 s62, s{S_PSI}, s62
s_lshl_b32 s63, s62, 6
s_mul_i32 s64, s{S_P}, {32 * 3072}
s_add_u32 s63, s63, s64
v_mul_u32_u24 v{V_PS}, 3072, v{V_PS}
s_add_u32 s66, s66, {W13F}""")
    for i in range(5):
        a(f"s_add_u32 s{S_PS + i}, s63, {128 * 3072 * i}")
    for tl in range(2):
        a(f"""
s_lshl_b32 s63, s62, 1
s_add_u32 s63, s63, {tl}
s_mul_i32 s64, s63, 43691
s_lshr_b32 s64, s64, 18
s_mul_i32 s65, s64, 6
s_sub_u32 s65, s63, s65
s_mul_i32 s64, s64, {21 * 12288}
s_lshl_b32 s65, s65, 11
s_add_u32 s64, s64, s65
s_add_u32 s64, s64, s66
s_add_u32 s{S_PE + tl}, s64, {20 * 12288}
s_mul_i32 s65, s{S_P}, 12288
s_add_u32 s64, s64, s65""")
        for i in range(5):
            a(f"s_add_u32 s{S_PD + 2 * i + tl}, s64, {4 * 12288 * i}")
    a(f"""
s_branch L_ps_go
L_ps_b:
s_mov_b32 s{S_PE}, {OOB}
s_mov_b32 s{S_PE + 1}, {OOB}
s_sub_u32 s62, s{S_PSI}, 96
s_and_b32 s63, s62, 1
s_lshr_b32 s62, s62, 1
s_mul_i32 s63, s63, 10
s_add_u32 s63, s63, s{S_P}
s_cmp_lt_u32 s{S_P}, 2
s_cselect_b32 s67, 3, 2
s_cmp_ge_u32 s{S_PSI}, 232
s_cselect_b32 s67, 0, s67
s_cmp_ge_u32 s62, 20
s_cbranch_scc1 L_ps_w2
s_mov_b32 s60, s{P_WO}
s_mov_b32 s61, s{P_WO + 1}
s_mov_b32 s{KS + 2}, {640 * 1280}
s_mul_i32 s66, s62, 5120
s_add_u32 s66, s66, {WOF}
s_mov_b32 s68, 102400
v_lshrrev_b32 v14, 2, v{V_PS}
v_and_b32 v{V_PS}, 3, v{V_PS}
s_cmp_ge_u32 s62, 16
s_cbranch_scc1 L_ps_rem
s_mul_i32 s64, s62, 40
s_mov_b32 s{S_PI}, {8 * 1280}
v_lshrrev_b32 v10, 1, v14
v_mul_u32_u24 v10, 20, v10
v_and_b32 v14, 1, v14
v_lshl_add_u32 v14, v14, 2, v10
v_add3_u32 v{V_PS}, v14, v{V_PS}, s64
s_branch L_ps_rows
L_ps_rem:
s_sub_u32 s64, s62, 16
s_mul_i32 s64, s64, 160
s_add_u32 s64, s64, 16
s_mov_b32 s{S_PI}, {20 * 1280}
v_mul_u32_u24 v14, 40, v14
v_add3_u32 v{V_PS}, v14, v{V_PS}, s64
s_branch L_ps_rows
L_ps_w2:
s_mov_b32 s60, s{P_W2}
s_mov_b32 s61, s{P_W2 + 1}
s_mov_b32 s{KS + 2}, {1536 * 1280}
s_sub_u32 s62, s62, 20
s_lshl_b32 s64, s62, 5
s_mov_b32 s{S_PI}, {16 * 1280}
v_add_u32 v{V_PS}, s64, v{V_PS}
s_mul_i32 s64, s62, 43691
s_lshr_b32 s64, s64, 17
s_mul_i32 s65, s64, 3
s_sub_u32 s65, s62, s65
s_lshl_b32 s65, s65, 4
s_add_u32 s64, s64, s65
s_mul_i32 s66, s64, 5120
s_add_u32 s66, s66, {W2F}
s_mov_b32 s68, 245760
L_ps_rows:
v_mul_u32_u24 v{V_PS}, 1280, v{V_PS}""")
    for i in range(5):
        a(f"""
s_add_u32 s62, s63, {4 * i}
s_lshl_b32 s64, s62, 6
s_cmp_gt_u32 s67, {i}
s_cselect_b32 s{S_PS + i}, s64, {OOB}""")
        for tl in range(2):
            a(f"""
s_lshl_b32 s64, s62, 1
s_add_u32 s64, s64, {tl}
s_mul_i32 s65, s64, 52429
s_lshr_b32 s65, s65, 18
s_mul_i32 s69, s65, 5
s_sub_u32 s64, s64, s69
s_mul_i32 s65, s65, s68
s_lshl_b32 s64, s64, 10
s_add_u32 s64, s64, s65
s_add_u32 s64, s64, s66
s_cmp_gt_u32 s67, {i}
s_cselect_b32 s{S_PD + 2 * i + tl}, s64, {OOB}""")
    a(f"""
L_ps_go:
s_mov_b32 s{KS}, s60
s_mov_b32 s{KS + 1}, s61
s_mov_b32 s{KS + 3}, {SRD3}
v_lshl_add_u32 v{V_PS}, v15, 4, v{V_PS}""")


def addresses(a):
    a(f"""
v_lshrrev_b32 v{H}, 5, v{LANE}
v_and_b32 v{TOK}, 31, v{LANE}
s_mul_i32 s60, s{S_HALF}, 12288
v_add_u32 v{VA}, s60, v{VL16}
v_cmp_lt_u32 s[62:63], 20, v{TOK}
v_add_u32 v14, 1024, v{VA}
s_add_u32 s61, s60, {1024 + 336}
v_cndmask_b32 v{VV0}, v{VA}, v14, s[62:63]
v_lshrrev_b32 v14, 4, v{TOK}
v_lshlrev_b32 v14, 9, v14
v_and_b32 v15, 15, v{TOK}
v_lshl_add_u32 v14, v15, 3, v14
v_add_u32 v{VK4}, s61, v14
v_add_u32 v{VAX}, {X_OFF}, v{VA}
v_add_u32 v{VV0X}, {X_OFF}, v{VV0}
v_add_u32 v{VK4X}, {X_OFF}, v{VK4}
s_mul_i32 s{S_DST}, s{S_P}, 3072
s_add_u32 s{S_SRC}, s{S_DST}, {KV}
s_mul_i32 s61, s{S_HALF}, 1536
s_add_u32 s62, s{S_DST}, s61
s_add_u32 s62, s62, {LDS_Q}
s_sub_u32 s63, s{S_DST}, s61
s_add_u32 s63, s63, {LDS_Q + 1536}
v_add_u32 v209, s62, v{VL16}
v_add_u32 v210, s63, v{VL16}
v_lshlrev_b32 v14, 4, v{TOK}
v_add_u32 v211, s62, v14
v_add_u32 v212, s63, v14
v_mov_b32 v7, {LDS_MISC}""")


def young_prep(a, part):
    if part == 0:
        addresses(a)
    if part == 1:
        ps_setup(a)
    if part == 2:
        for r in range(CA, CA + 32):
            a(f"v_mov_b32 v{r}, 0")
    if part == 10:
        a(f"""
v_lshlrev_b32 v11, 7, v{LANE}
s_mov_b32 s61, {KVFLG}
s_cmp_eq_u32 s{S_W}, 7
s_cselect_b32 exec_lo, -1, 0
s_mov_b32 exec_hi, 0
buffer_load_dword v{T + 10}, v11, s[{WS}:{WS + 3}], s61 offen sc1
s_mov_b64 exec, -1""")
    if part == 11:
        a(f"""
s_cmp_lg_u32 s{S_W}, 7
s_cbranch_scc1 L_kv_noearly
s_mov_b32 exec_hi, 0
s_waitcnt vmcnt(0)
v_cmp_ne_u32 vcc, 8, v{T + 10}
v_mov_b32 v14, 1
v_mov_b32 v15, {LDS_READY}
s_nop 2
s_cbranch_vccnz L_kv_notyet
ds_write_b32 v15, v14
L_kv_notyet:
s_mov_b64 exec, -1
L_kv_noearly:""")


def young_tail(a):
    a(f"""
v_lshlrev_b32 v14, 7, v{LANE}
v_lshlrev_b32 v11, 3, v{LANE}
s_mov_b32 s61, {KVFLG}
v_mov_b32 v15, {LDS_READY}
s_cmp_lg_u32 s{S_W}, 7
s_cbranch_scc1 L_kv_lds
ds_read_b32 v10, v15
s_waitcnt lgkmcnt(0)
v_readfirstlane_b32 s62, v10
s_nop 3
s_cmp_lg_u32 s62, 0
s_cbranch_scc1 L_kv_seen""")
    a.poll(14, T, WS, "s61", 32, "8")
    a(f"""
v_mov_b32 v14, 1
ds_write_b32 v15, v14
s_branch L_kv_seen
L_kv_lds:
s_mov_b32 s60, 0
L_kv_spin:
ds_read_b32 v14, v15
s_add_u32 s60, s60, 1
s_waitcnt lgkmcnt(0)
v_readfirstlane_b32 s62, v14
s_cmp_ge_u32 s60, {SPIN_LIMIT * 16}
s_cbranch_scc1 L_kv_seen
s_nop 1
s_cmp_eq_u32 s62, 0
s_cbranch_scc1 L_kv_spin
L_kv_seen:""")
    a.stamp(58)
    a(f"""
s_mov_b32 s62, {KN}
buffer_load_dwordx2 v[{T + 4}:{T + 5}], v11, s[{WS}:{WS + 3}], s62 offen sc1
buffer_load_dwordx2 v[{T + 6}:{T + 7}], v11, s[{WS}:{WS + 3}], s62 offen offset:512 sc1""")
    for g in stage_groups(0):
        for x in g:
            a(x)
    a(f"""
v_mov_b32 v{T + 3}, {f32(SAFE_V)}
s_waitcnt vmcnt(6)
v_max_f32 v14, v{T + 4}, v{T + 5}
v_cmp_nle_f32 s[66:67], v{T + 6}, v{T + 3}
v_cmp_nle_f32 s[64:65], v{T + 7}, v{T + 3}""")
    a.wave_max(14)
    a(f"""
s_or_b64 s[66:67], s[66:67], s[64:65]
s_cselect_b32 s62, 0x7f800000, 0
s_nop 0
v_readlane_b32 s63, v14, 63
s_nop 3
s_or_b32 s62, s62, s63
v_mov_b32 v14, s62
ds_write_b32 v7, v14
s_waitcnt vmcnt(0)""")
    a.stamp(59)
    a("s_branch L_p1_x2")


def stage_groups(t):
    out = []
    for hf in range(2):
        for i in range(3):
            g = [f"s_add_u32 m0, s{S_DST}, {KV_SLOT[t] + hf * 12288}",
                 f"s_add_u32 s61, s{S_SRC}, {t * 12288 + hf * 32 * 3072}"] if i == 0 else []
            o = f" offset:{1024 * i}" if i else ""
            out.append(g + [f"buffer_load_dwordx4 v{VL16}, s[{WS}:{WS + 3}], s61 offen{o} sc1 lds"])
    return out


def phase2(a, tail):
    addresses(a)
    a("""
L_p1_x2:
s_waitcnt lgkmcnt(0)
s_barrier""")
    a.stamp(8)

    def tile_reads(buf, off):
        if off >= X_OFF:
            va, vv, vk, off = VAX, VV0X, VK4X, off - X_OFF
        else:
            va, vv, vk = VA, VV0, VK4
        return [f"ds_read_b128 {vr(KB[buf], 4)}, v{va} offset:{off}",
                f"ds_read_b64 {vr(KB[buf] + 4, 2)}, v{vk} offset:{off}",
                f"ds_read_b128 {vr(VB[buf], 4)}, v{vv} offset:{off + 1024}",
                f"ds_read_b128 {vr(VB[buf] + 4, 4)}, v{va} offset:{off + 2048}"]

    a(f"""
ds_read_b128 {vr(QA, 4)}, v209
ds_read_b64 {vr(QA + 4, 2)}, v211 offset:1024
ds_read_b128 {vr(QB, 4)}, v210
ds_read_b64 {vr(QB + 4, 2)}, v212 offset:1024
ds_read_b32 v10, v7""")
    for x in tile_reads(0, KV_SLOT[0]):
        a(x)
    a(f"""
v_cmp_eq_u32 s[64:65], 0, v{H}
v_mov_b32 v14, 0
v_mov_b32 v15, 0
v_mov_b32 v{T + 2}, {f32(SAFE_BOUND ** 2)}
s_waitcnt lgkmcnt(4)""")
    for r in (QA + 4, QA + 5, QB + 4, QB + 5):
        a(f"v_cndmask_b32 v{r}, 0, v{r}, s[64:65]")
    for j in range(6):
        a(f"v_dot2_f32_bf16 v14, v{QA + j}, v{QA + j}, v14")
        a(f"v_dot2_f32_bf16 v15, v{QB + j}, v{QB + j}, v15")
    a("s_nop 2")
    a.half_sum(14, T)
    a.half_sum(15, T)
    a(f"""
v_max_f32 v14, v14, v15
v_mul_f32 v14, v10, v14
v_cmp_nle_f32 vcc, v14, v{T + 2}
s_nop 4
s_cbranch_vccnz L_truemax
L_att_start:
s_waitcnt lgkmcnt(0)
{mfma(S0, KB[0], QA, CA)}
{mfma8(S0, KB[0] + 4, QA + 4, S0)}
s_cmp_ge_u32 s{S_W}, 4
s_nop 7
s_nop 2
s_cbranch_scc1 L_att_young""")
    prio = mcommon.OPT.get("prio", "flip")

    def job(cur, nxt, q, c, kb, o_cur, v_cur, o_prev, v_prev, fill, first=False, last=False, fresh=False):
        def ex(g):
            for x in fill[g]:
                a(x)
        if not last:
            a(mfma(nxt, kb, q, c))
        for j in range(0, 4):
            a(f"v_exp_f32 v{cur + j}, v{cur + j}")
        if not first:
            a(mfma(o_prev, v_prev + 4, P + 4, o_prev))
        ex(0)
        for j in range(4, 8):
            a(f"v_exp_f32 v{cur + j}, v{cur + j}")
        a(mfma8(nxt, kb + 4, q + 4, nxt) if not last else "s_nop 0")
        ex(1)
        for j in range(0, 4):
            a(f"v_cvt_pk_bf16_f32 v{P + j}, v{cur + 2 * j}, v{cur + 2 * j + 1}")
        for j in range(8, 12):
            a(f"v_exp_f32 v{cur + j}, v{cur + j}")
        a(mfma(o_cur, v_cur, P, "0" if fresh else o_cur))
        ex(2)
        for j in range(12, 16):
            a(f"v_exp_f32 v{cur + j}, v{cur + j}")
        ex(3)
        for j in range(4, 8):
            a(f"v_cvt_pk_bf16_f32 v{P + j}, v{cur + 2 * j}, v{cur + 2 * j + 1}")

    def stream(svc, waits, stamps):
        for t in range(8):
            for u in range(4):
                b, nb = u % 2, (u + 1) % 2
                ja = 8 * t + 2 * u
                last = t == 7 and u == 3
                fa = [[], [], [], []]
                if u < 3:
                    r = tile_reads(nb, KV_SLOT[t] + (u + 1) * 3072)
                    fa = [r[0:2], [r[2]], [r[3]], []]
                elif not last:
                    r = tile_reads(nb, KV_SLOT[t + 1])
                    fa = [waits.get(t, []) + ["s_barrier"] + r[0:2], [r[2]], [r[3]], []]
                fa = [fa[g] + svc.get((ja, g), []) for g in range(4)]
                if prio == "flip":
                    a("s_setprio 1")
                job(S0, S1, QB, CB, KB[b], OA, VB[b], OB, VB[nb], fa, first=(ja == 0), fresh=(ja == 0))
                if prio == "flip":
                    a("s_setprio 0")
                if not last:
                    a("s_waitcnt lgkmcnt(0)")
                job(S1, S0, QA, CA, KB[nb], OB, VB[b], OA, VB[b], [svc.get((ja + 1, g), []) for g in range(4)], last=last, fresh=(ja == 0))
            if stamps and t in (0, 3):
                a.stamp(11 if t == 0 else 12)
        a(f"s_nop 0\n{mfma(OB, VB[1] + 4, P + 4, OB)}")

    def put(svc, j, g, ins):
        svc.setdefault((j, g), []).extend(ins)

    a.stamp(10)
    a.stamp(60, True)
    svc = {}
    def spread(svc, j0, groups, per_job=3):
        for k, g in enumerate(groups):
            put(svc, j0 + k // per_job, k % per_job, g)
        return j0 + (len(groups) + per_job - 1) // per_job

    spread(svc, 0, stage_groups(1) + stage_groups(2))
    spread(svc, 7, stage_groups(3))
    for t in range(2, 6):
        spread(svc, 8 * t + 7, stage_groups(t + 2))
    put(svc, 56, 3, f"""s_lshl_b32 s60, s{S_RB}, 6
s_lshl_b32 s61, s{S_W}, 4
s_add_u32 s60, s60, s61
v_and_b32 v10, 15, v{LANE}
v_add_u32 v10, s60, v10
v_mul_u32_u24 v10, 1280, v10
v_lshrrev_b32 v12, 4, v{LANE}
v_lshl_add_u32 v10, v12, 3, v10
s_mul_i32 s60, s{S_CB}, 160""".split("\n"))
    spread(svc, 57, [[f"buffer_load_dwordx2 {vr(RES + 2 * m, 2)}, v10, s[{XS}:{XS + 3}], s60 offen offset:{32 * m}"] for m in range(5)])
    stream(svc, {t: [f"s_waitcnt vmcnt({ {0: 6, 1: 6}.get(t, 0) })"] for t in range(7)}, True)
    a.stamp(13)
    a("s_branch L_att_done")

    a("L_att_young:")
    svc = {}
    jt = int(mcommon.OPT.get("touch_at", 7))
    jl = int(mcommon.OPT.get("ps_issue", 17))
    jp = int(mcommon.OPT.get("ps_proc", 22))
    put(svc, jt, 0, f"""s_lshl_b32 s60, s2, 2
s_add_u32 s60, s60, s{S_P}
s_mul_i32 s61, s60, {15 * 128}
v_lshlrev_b32 v10, 7, v{LANE}
v_add_u32 v15, s61, v10
s_mul_i32 s61, s60, {25 * 32}
v_add_u32 v14, s61, v10
v_and_b32 v14, 0xffffff80, v14""".split("\n"))
    put(svc, jt, 2, f"""s_mov_b64 exec, 0x7fff
global_load_dword v{T + 30}, v15, s[{P_W1}:{P_W1 + 1}]
global_load_dword v{T + 31}, v15, s[{P_W3}:{P_W3 + 1}]
global_load_dword v{T + 32}, v15, s[{P_W2}:{P_W2 + 1}]
s_mov_b64 exec, 0x7f
global_load_dword v{T + 33}, v14, s[{P_WO}:{P_WO + 1}]
s_mov_b64 exec, -1""".split("\n"))
    g = []
    for i in range(5):
        g.append([f"s_add_u32 m0, s{S_PSB}, {2048 * i}", f"s_add_u32 s61, s{S_PS + i}, s{S_PI}",
                  f"buffer_load_dwordx4 v{V_PS}, s[{KS}:{KS + 3}], s{S_PS + i} offen lds"])
        g.append([f"s_add_u32 m0, s{S_PSB}, {2048 * i + 1024}", "s_nop 0",
                  f"buffer_load_dwordx4 v{V_PS}, s[{KS}:{KS + 3}], s61 offen lds"])
    spread(svc, jl, g)
    CS, ONE = T + 16, T + 24
    put(svc, jp - 1, 3, [f"v_mov_b32 v{ONE}, 0x3f803f80", f"v_mov_b32 v{ONE + 1}, 0x3f803f80"])
    assert jl + 3 < jp
    for i in range(5):
        ja = jp + 2 * i
        put(svc, ja, 1, ["s_waitcnt vmcnt(8)"])
        r = T + 8 * (i % 2)
        for tl in range(2):
            put(svc, ja, 2 + tl, [f"ds_read_b64_tr_b16 {vr(r + 4 * tl, 2)}, v{V_TR} offset:{2048 * i + 32 * tl}",
                                  f"ds_read_b64_tr_b16 {vr(r + 4 * tl + 2, 2)}, v{V_TR} offset:{2048 * i + 32 * tl + 1024}"])
            cs = CS + 4 * tl
            c0 = "0" if i == 0 else vr(cs, 4)
            put(svc, ja + 1, 2 * tl, [f"v_mfma_f32_4x4x4_16b_bf16 {vr(cs, 4)}, {vr(ONE, 2)}, {vr(r + 4 * tl, 2)}, {c0}",
                                      f"buffer_store_dwordx4 {vr(r + 4 * tl, 4)}, v{VL16}, s[{WS}:{WS + 3}], s{S_PD + 2 * i + tl} offen sc1"])
            put(svc, ja + 1, 2 * tl + 1, [f"v_mfma_f32_4x4x4_16b_bf16 {vr(cs, 4)}, {vr(ONE, 2)}, {vr(r + 4 * tl + 2, 2)}, {vr(cs, 4)}"])
    jf = jp + 10
    fin = []
    for tl in range(2):
        c, t1, o = CS + 4 * tl, T + 26 + tl, T + 4 * tl
        for width in (32, 16):
            fin += [[f"v_mov_b32 v{t1}, v{c}"], [f"v_permlane{width}_swap_b32 v{c}, v{t1}"], [f"v_add_f32 v{c}, v{c}, v{t1}"]]
        fin += [[f"v_cvt_pk_bf16_f32 v{o}, v{c}, v{c}", f"v_mov_b32 v{o + 2}, 0"],
                [f"v_and_b32 v{t1}, 0xffff0000, v{o}", f"v_sub_f32 v{t1}, v{c}, v{t1}"],
                [f"v_cvt_pk_bf16_f32 v{o + 1}, v{t1}, v{o + 2}", f"v_mov_b32 v{o + 3}, 0"]]
    fin += [[f"v_lshrrev_b32 v10, 4, v{LANE}", f"v_cmp_ne_u32 vcc, s{S_P}, v10"],
            ["v_cndmask_b32 v10, 0, 1, vcc", f"v_lshl_add_u32 v10, v10, 30, v{VL16}"],
            [f"buffer_store_dwordx4 {vr(T + 4 * tl, 4)}, v10, s[{WS}:{WS + 3}], s{S_PE + tl} offen sc1" for tl in range(2)]]
    fin = [fin[k] + fin[9 + k] for k in range(9)] + fin[18:]
    for k, g in enumerate(fin):
        put(svc, jf + k // 4, k % 4, g)
    tf = (jf + (len(fin) - 1) // 4 + 2) // 8
    jg = 8 * tf + 6
    put(svc, jg, 3, f"""s_lshl_b32 s60, s{S_IDX}, 2
s_add_u32 s60, s60, {PSFLG}
v_mov_b32 v10, 0
v_mov_b32 v14, 1
s_cmp_eq_u32 s{S_P}, 0
s_cselect_b32 exec_lo, 1, 0
s_mov_b32 exec_hi, 0
buffer_store_dword v14, v10, s[{WS}:{WS + 3}], s60 offen sc1
s_mov_b64 exec, -1""".split("\n"))
    jc = jg + int(mcommon.OPT.get("ps_gap", 5))
    put(svc, jc, 3, [f"s_mov_b32 s62, {PSFLG}",
                     f"buffer_load_dwordx4 {vr(T, 4)}, v{VL16}, s[{WS}:{WS + 3}], s62 offen sc1"])
    put(svc, jc + 3, 3, f"""s_waitcnt vmcnt(0)
v_and_b32 v{T}, v{T}, v{T + 1}
v_and_b32 v{T + 2}, v{T + 2}, v{T + 3}
v_and_b32 v{T}, v{T}, v{T + 2}
v_cmp_ne_u32 vcc, 1, v{T}
s_mul_i32 s60, s{S_P}, 25600
s_mul_i32 s61, s{S_CB}, 102400
s_add_u32 s61, s61, s60
s_add_u32 s63, s61, {WOF}
s_add_u32 s64, s60, {LDS_WO}
s_cbranch_vccnz L_ps_wait
L_ps_ready:""".split("\n"))
    j = jc + 4
    assert j >= 32, "the start-up K/V slots must be free"
    g = []
    for i in range(25):
        pre = [f"s_add_u32 m0, s64, {4096 * (i // 4)}", f"s_add_u32 s61, s63, {4096 * (i // 4)}"] if i % 4 == 0 else []
        o = f" offset:{1024 * (i % 4)}" if i % 4 else ""
        g.append(pre + [f"buffer_load_dwordx4 v{VL16}, s[{WS}:{WS + 3}], s61 offen{o} sc1 lds"])
    j = spread(svc, j, g, int(mcommon.OPT.get("wo_per", 3)))
    assert j < 62
    put(svc, j, 3, f"""s_lshr_b32 s60, s{S_FB}, 2
s_mul_i32 s60, s60, {4 * 21 * 12288}
s_and_b32 s61, s{S_IDX}, 31
s_lshl_b32 s61, s61, 2
s_add_u32 s61, s61, s{S_P}
s_mul_i32 s61, s61, {63 * 128}
s_add_u32 s60, s60, s61
s_add_u32 s60, s60, {W13F}
v_lshlrev_b32 v10, 7, v{LANE}
buffer_load_dword v{T + 8}, v10, s[{WS}:{WS + 3}], s60 offen sc1""".split("\n"))
    abl = mcommon.OPT.get("abl", "")
    if "p" in abl:
        svc = {k: v for k, v in svc.items() if k[0] >= jg}
    if "w" in abl:
        svc = {k: v for k, v in svc.items() if k[0] <= jc + 3}
    if "t" in abl:
        svc = {k: v for k, v in svc.items() if k[0] != jt}
    if "s" in abl:
        svc = {k: [x for x in v if "buffer_store_dwordx4" not in x] for k, v in svc.items()}
    print('re-layout schedule: fin', jf, 'flag', jg, 'check', jc, 'wo end', j)
    stream(svc, {tf: ["s_waitcnt vmcnt(0)"]}, False)
    a(f"""
L_att_done:
s_mul_i32 s60, s{S_W}, 3072
s_xor_b32 s61, s{S_W}, 4
s_mul_i32 s61, s61, 3072
v_add_u32 v10, s60, v{VL16}
v_add_u32 v11, s61, v{VL16}
s_lshl_b32 s62, s{S_RB}, 1
s_add_u32 s62, s62, s{S_HALF}
s_lshl_b32 s35, s{S_RB}, 7
s_lshl_b32 s63, s{S_CB}, 2
s_add_u32 s35, s35, s63
s_add_u32 s35, s35, {OFLG}
s_mul_i32 s62, s62, 40960
s_add_u32 s62, s62, {OF}
s_lshl_b32 s63, s{S_HEAD}, 9
s_add_u32 s63, s63, s62
s_lshr_b32 s64, s{S_HEAD}, 3
s_add_u32 s64, s64, 16
s_lshl_b32 s64, s64, 10
s_add_u32 s64, s64, s62
s_bfe_u32 s65, s{S_HEAD}, 0x20001
s_lshl_b32 s65, s65, 8
s_add_u32 s64, s64, s65
s_and_b32 s65, s{S_HEAD}, 1
s_lshl_b32 s65, s65, 3
s_add_u32 s64, s64, s65
v_lshrrev_b32 v12, 4, v{TOK}
v_mul_u32_u24 v12, 20480, v12
v_and_b32 v13, 15, v{TOK}
v_lshl_add_u32 v12, v13, 4, v12
v_lshl_add_u32 v13, v{H}, 8, v12
v_lshl_add_u32 v12, v{H}, 30, v12""")
    for j in range(3):
        a(f"ds_write_b128 v10, {vr(OB + 4 * j, 4)} offset:{1024 * j}")
    a("s_waitcnt lgkmcnt(0)\ns_barrier")
    a.stamp(30)
    a.stamp(54, True)
    for j in range(3):
        a(f"ds_read_b128 {vr(T + 12 + 4 * j, 4)}, v11 offset:{1024 * j}")
    a("s_waitcnt lgkmcnt(0)")
    for j in range(12):
        a(f"v_add_f32 v{OA + j}, v{OA + j}, v{T + 12 + j}")
    a(f"""
v_mov_b32 v14, v{OA + 8}
v_mov_b32 v15, v{OA + 8}
s_nop 1
v_permlane32_swap_b32 v14, v15
s_nop 1
v_rcp_f32 v15, v15
s_nop 0""")
    for j in range(12):
        a(f"v_mul_f32 v{OA + j}, v{OA + j}, v15")
    for j in range(6):
        a(f"v_cvt_pk_bf16_f32 v{T + j}, v{OA + 2 * j}, v{OA + 2 * j + 1}")
    a(f"""
buffer_store_dwordx4 {vr(T, 4)}, v13, s[{WS}:{WS + 3}], s63 offen sc1""")
    if "r" not in mcommon.OPT.get("abl", ""):
        a(f"buffer_store_dwordx2 {vr(T + 4, 2)}, v12, s[{WS}:{WS + 3}], s64 offen sc1")
    if "v" in mcommon.OPT.get("abl", ""):
        a("s_waitcnt vmcnt(2)")
    a.stamp(14)
    a("s_waitcnt vmcnt(0)")
    a.stamp(55)
    a(f"s_cmp_lg_u32 s{S_W}, 0\nv_mov_b32 v10, 0\nv_mov_b32 v12, 1\ns_cselect_b32 s60, 0, 1\ns_barrier")
    a(f"""
s_mov_b32 exec_lo, s60
s_mov_b32 exec_hi, 0
buffer_store_dword v12, v10, s[{WS}:{WS + 3}], s35 offen sc1
s_mov_b64 exec, -1""")

    b = tail
    b(f"""
L_ps_wait:
s_mov_b32 s60, 0
L_ps_spin:
buffer_load_dwordx4 {vr(T, 4)}, v{VL16}, s[{WS}:{WS + 3}], s62 offen sc1
s_add_u32 s60, s60, 1
s_waitcnt vmcnt(0)
v_and_b32 v{T}, v{T}, v{T + 1}
v_and_b32 v{T + 2}, v{T + 2}, v{T + 3}
v_and_b32 v{T}, v{T}, v{T + 2}
v_cmp_ne_u32 vcc, 1, v{T}
s_nop 4
s_cbranch_vccz L_ps_ready
s_cmp_lt_u32 s60, {SPIN_LIMIT}
s_cbranch_scc1 L_ps_spin
s_branch L_ps_ready""")
    MA, MB = T + 8, T + 9
    b(f"""
L_truemax:
v_mov_b32 v{MA}, 0xff800000
v_mov_b32 v{MB}, 0xff800000
s_mul_i32 s60, s{S_HALF}, 12288
v_subrev_u32 v10, s60, v{VK4}
s_mov_b32 s60, {KV}
L_tm_loop:
buffer_load_dwordx4 {vr(T, 4)}, v{VL16}, s[{WS}:{WS + 3}], s60 offen sc1
buffer_load_dwordx2 {vr(T + 4, 2)}, v10, s[{WS}:{WS + 3}], s60 offen sc1
s_waitcnt vmcnt(0)
{mfma(S0, T, QA, "0")}
{mfma(S1, T, QB, "0")}
{mfma8(S0, T + 4, QA + 4, S0)}
{mfma8(S1, T + 4, QB + 4, S1)}
s_nop 7
s_nop 7""")
    for j in range(8):
        b(f"v_max3_f32 v{MA}, v{S0 + 2 * j}, v{S0 + 2 * j + 1}, v{MA}")
        b(f"v_max3_f32 v{MB}, v{S1 + 2 * j}, v{S1 + 2 * j + 1}, v{MB}")
    b(f"""
s_add_u32 s60, s60, 3072
s_cmp_lt_u32 s60, {KV + 64 * 3072}
s_cbranch_scc1 L_tm_loop""")
    b.half_max(MA, T)
    b.half_max(MB, T)
    for j in range(16):
        b(f"v_sub_f32 v{CA + j}, 0, v{MA}")
        b(f"v_sub_f32 v{CB + j}, 0, v{MB}")
    b("s_nop 1\ns_branch L_att_start")
```

```python
import struct

NAME = "sequential_preLN__grouped_kv_mqa__glu_gated_swiglu__prompt"

KV = 0x0000000
KN = 0x0040000
FLG = 0x0050000
KVFLG = FLG
OFLG = FLG + 0x2000
PSFLG = FLG + 0x3000
HFLG = FLG + 0x4000
HHFLG = FLG + 0x8000
FLG_BYTES = 0x14000
OF = 0x0100000
HF = 0x0400000
ST = 0x0700000
WOF = 0x0800000
W13F = 0x0900000
W2F = 0x0D00000
HHF = 0x0F00000
WS_USED = 0x1500000
DIAG = 0x2000000
OOB = 0x40000000

SRD3 = "0x00020000"
LOG2E = 1.4426950408889634
SPIN_LIMIT = 1 << 18

STAMPS = False
OPT = {}


def f32(x):
    return "0x%08x" % struct.unpack("<I", struct.pack("<f", x))[0]


def vr(a, n=1):
    return f"v{a}" if n == 1 else f"v[{a}:{a + n - 1}]"


def mfma(d, a, b, c):
    cs = c if isinstance(c, str) else vr(c, 16)
    return f"v_mfma_f32_32x32x16_bf16 {vr(d, 16)}, {vr(a, 4)}, {vr(b, 4)}, {cs}"


def mfma8(d, a, b, c):
    cs = c if isinstance(c, str) else vr(c, 16)
    return f"v_mfma_f32_32x32x8_bf16 {vr(d, 16)}, {vr(a, 2)}, {vr(b, 2)}, {cs}"


def mfma16(d, a, b, c):
    cs = c if isinstance(c, str) else vr(c, 4)
    return f"v_mfma_f32_16x16x32_bf16 {vr(d, 4)}, {vr(a, 4)}, {vr(b, 4)}, {cs}"


WS, XS, TS, KS, DS = 4, 8, 12, 16, 20
S_W, S_RB, S_CB, S_IDX, S_HALF, S_P, S_HEAD = 24, 25, 26, 27, 28, 29, 30
S_RB2, S_FB = 70, 71
P_X, P_WQ, P_WK, P_WV, P_WO, P_W1, P_W3, P_W2, P_OUT, P_DBG, P_WS = 36, 38, 40, 42, 44, 48, 50, 52, 54, 56, 58
LANE, VL16 = 2, 3
V_STAMP = 255


class Asm:
    def __init__(self, name):
        self.lines = []
        self.name = name
        self.uid = 0

    def __call__(self, text):
        for ln in text.strip("\n").split("\n"):
            ln = ln.strip()
            if not ln:
                continue
            if ln.endswith(":") or ln.startswith("."):
                self.lines.append(ln)
            else:
                self.lines.append("    " + ln)

    def text(self):
        return "\n".join(self.lines) + "\n"

    def L(self, tag):
        return f"L_{tag}"

    def fresh(self, tag):
        self.uid += 1
        return f"L_{tag}_{self.uid}"

    def srd(self, d, ptr, nbytes):
        self(f"""
s_mov_b32 s{d}, s{ptr}
s_mov_b32 s{d + 1}, s{ptr + 1}
s_mov_b32 s{d + 2}, {nbytes}
s_mov_b32 s{d + 3}, {SRD3}""")

    def dma(self, voff, srd, soff, m0, imm=0, aux=""):
        if m0 is not None:
            self(f"s_mov_b32 m0, {m0}")
            self("s_nop 0")
        o = f" offset:{imm}" if imm else ""
        x = f" {aux}" if aux else ""
        self(f"buffer_load_dwordx4 v{voff}, s[{srd}:{srd + 3}], {soff} offen{o}{x} lds")

    def wave_max(self, v):
        for m in ("row_shr:1", "row_shr:2", "row_shr:4", "row_shr:8"):
            self("s_nop 1")
            self(f"v_max_f32_dpp v{v}, v{v}, v{v} {m} row_mask:0xf bank_mask:0xf")
        self("s_nop 1")
        self(f"v_max_f32_dpp v{v}, v{v}, v{v} row_bcast:15 row_mask:0xa bank_mask:0xf")
        self("s_nop 1")
        self(f"v_max_f32_dpp v{v}, v{v}, v{v} row_bcast:31 row_mask:0xc bank_mask:0xf")

    def xlane(self, op, v, t, width):
        self(f"v_mov_b32 v{t}, v{v}")
        self("s_nop 1")
        self(f"v_permlane{width}_swap_b32 v{v}, v{t}")
        self("s_nop 1")
        self(f"{op} v{v}, v{v}, v{t}")

    def half_sum(self, v, t):
        self.xlane("v_add_f32", v, t, 32)

    def half_max(self, v, t):
        self.xlane("v_max_f32", v, t, 32)

    def quad_sum(self, v, t):
        self.xlane("v_add_f32", v, t, 32)
        self.xlane("v_add_f32", v, t, 16)

    def poll(self, voff, vtmp, srd, soff, nlanes, expect="1"):
        top, done = self.fresh("poll"), self.fresh("polled")
        mask = (1 << nlanes) - 1
        self(f"""
s_mov_b32 exec_lo, {mask & 0xffffffff:#x}
s_mov_b32 exec_hi, {mask >> 32:#x}
s_mov_b32 s60, 0
{top}:
buffer_load_dword v{vtmp}, v{voff}, s[{srd}:{srd + 3}], {soff} offen sc1
s_add_u32 s60, s60, 1
s_waitcnt vmcnt(0)
v_cmp_ne_u32 vcc, {expect}, v{vtmp}
s_nop 4
s_cbranch_vccz {done}
s_cmp_lt_u32 s60, {SPIN_LIMIT}
s_cbranch_scc1 {top}
{done}:
s_mov_b64 exec, -1""")

    def set_flag(self, vaddr, vone, srd, soff, short=False):
        op = "buffer_store_short" if short else "buffer_store_dword"
        self(f"""
v_mov_b32 v{vaddr}, 0
v_mov_b32 v{vone}, 1
s_mov_b64 exec, 1
{op} v{vone}, v{vaddr}, s[{srd}:{srd + 3}], {soff} offen sc1
s_mov_b64 exec, -1""")

    def stamp(self, i, real=False):
        if not STAMPS:
            return
        op = "s_memrealtime" if real else "s_memtime"
        self(f"{op} s[96:97]\ns_waitcnt lgkmcnt(0)\nv_writelane_b32 v{V_STAMP}, s96, {i}")

    def stamp_lines(self, i):
        if not STAMPS:
            return []
        return ["s_memtime s[96:97]", "s_waitcnt lgkmcnt(0)", f"v_writelane_b32 v{V_STAMP}, s96, {i}"]

    def stamp_out(self):
        if not STAMPS:
            return
        self(f"""
s_mov_b32 s92, s{P_WS}
s_mov_b32 s93, s{P_WS + 1}
s_mov_b32 s94, 0x4000000
s_mov_b32 s95, {SRD3}
s_lshl_b32 s90, s2, 3
s_add_u32 s90, s90, s{S_W}
s_lshl_b32 s90, s90, 8
s_add_u32 s90, s90, {DIAG}
v_lshlrev_b32 v0, 2, v{LANE}
buffer_store_dword v{V_STAMP}, v0, s[92:95], s90 offen""")
```

```python
from mcommon import *
import mcommon
from m1 import LDS_Q, LDS_PS, LDS_WR, LDS_MISC, LDS_READY, SAFE_V

SLOT_KV = 24576
X_OFF = LDS_WR
KV_SLOT = [X_OFF, 0, SLOT_KV, X_OFF, 0, SLOT_KV, 0, SLOT_KV]
LDS_WO = 49152
SAFE_BOUND = 80.0 / 1.03
RES = 230

VA, VV0, VK4, H, TOK = 4, 5, 6, 8, 9
VAX, VV0X, VK4X = 28, 29, 30
QA, QB = 16, 22
S0, S1 = 32, 48
P = 64
OA, OB = 72, 88
CA, CB = 104, 120
KB = [136, 142]
VB = [148, 156]
T = 164
S_SRC, S_DST, S_PSB = 32, 33, 34
S_PSI = 47
S_PD, S_PS, S_PI, S_PE = 72, 82, 87, 88
V_PS, V_TR = 12, 13


def ps_setup(a):
    a(f"""
s_and_b32 s60, s2, 7
s_lshr_b32 s61, s2, 3
s_mul_i32 s62, s60, 12
s_mul_i32 s63, s60, 17
s_add_u32 s63, s63, 96
s_add_u32 s62, s62, s61
s_sub_u32 s62, s62, 8
s_add_u32 s64, s63, s61
s_sub_u32 s65, s64, 20
s_add_u32 s64, s64, 12
s_cmp_lt_u32 s61, 20
s_cselect_b32 s{S_PSI}, s62, s65
s_cmp_lt_u32 s61, 8
s_cselect_b32 s{S_PSI}, s64, s{S_PSI}
s_sub_u32 s61, s61, 5
s_cmp_lt_u32 s61, 3
s_cselect_b32 s{S_PSI}, 255, s{S_PSI}
s_mul_i32 s{S_PSB}, s{S_P}, 10240
s_add_u32 s{S_PSB}, s{S_PSB}, {LDS_PS}
v_lshrrev_b32 v{V_PS}, 2, v{LANE}
v_and_b32 v15, 3, v{LANE}
v_lshlrev_b32 v{V_TR}, 6, v{V_PS}
v_lshl_add_u32 v{V_TR}, v15, 3, v{V_TR}
v_add_u32 v{V_TR}, s{S_PSB}, v{V_TR}
s_cmp_ge_u32 s{S_PSI}, 96
s_cbranch_scc1 L_ps_b
s_cmp_ge_u32 s{S_PSI}, 48
s_cselect_b32 s60, s{P_W3}, s{P_W1}
s_cselect_b32 s61, s{P_W3 + 1}, s{P_W1 + 1}
s_cselect_b32 s62, 48, 0
s_cselect_b32 s66, 1024, 0
s_mov_b32 s{KS + 2}, {640 * 3072}
s_mov_b32 s{S_PI}, {16 * 3072}
s_sub_u32 s62, s{S_PSI}, s62
s_lshl_b32 s63, s62, 6
s_mul_i32 s64, s{S_P}, {32 * 3072}
s_add_u32 s63, s63, s64
v_mul_u32_u24 v{V_PS}, 3072, v{V_PS}
s_add_u32 s66, s66, {W13F}""")
    for i in range(5):
        a(f"s_add_u32 s{S_PS + i}, s63, {128 * 3072 * i}")
    for tl in range(2):
        a(f"""
s_lshl_b32 s63, s62, 1
s_add_u32 s63, s63, {tl}
s_mul_i32 s64, s63, 43691
s_lshr_b32 s64, s64, 18
s_mul_i32 s65, s64, 6
s_sub_u32 s65, s63, s65
s_mul_i32 s64, s64, {21 * 12288}
s_lshl_b32 s65, s65, 11
s_add_u32 s64, s64, s65
s_add_u32 s64, s64, s66
s_add_u32 s{S_PE + tl}, s64, {20 * 12288}
s_mul_i32 s65, s{S_P}, 12288
s_add_u32 s64, s64, s65""")
        for i in range(5):
            a(f"s_add_u32 s{S_PD + 2 * i + tl}, s64, {4 * 12288 * i}")
    a(f"""
s_branch L_ps_go
L_ps_b:
s_mov_b32 s{S_PE}, {OOB}
s_mov_b32 s{S_PE + 1}, {OOB}
s_sub_u32 s62, s{S_PSI}, 96
s_and_b32 s63, s62, 1
s_lshr_b32 s62, s62, 1
s_mul_i32 s63, s63, 10
s_add_u32 s63, s63, s{S_P}
s_cmp_lt_u32 s{S_P}, 2
s_cselect_b32 s67, 3, 2
s_cmp_ge_u32 s{S_PSI}, 232
s_cselect_b32 s67, 0, s67
s_cmp_ge_u32 s62, 20
s_cbranch_scc1 L_ps_w2
s_mov_b32 s60, s{P_WO}
s_mov_b32 s61, s{P_WO + 1}
s_mov_b32 s{KS + 2}, {640 * 1280}
s_mul_i32 s66, s62, 5120
s_add_u32 s66, s66, {WOF}
s_mov_b32 s68, 102400
v_lshrrev_b32 v14, 2, v{V_PS}
v_and_b32 v{V_PS}, 3, v{V_PS}
s_cmp_ge_u32 s62, 16
s_cbranch_scc1 L_ps_rem
s_mul_i32 s64, s62, 40
s_mov_b32 s{S_PI}, {8 * 1280}
v_lshrrev_b32 v10, 1, v14
v_mul_u32_u24 v10, 20, v10
v_and_b32 v14, 1, v14
v_lshl_add_u32 v14, v14, 2, v10
v_add3_u32 v{V_PS}, v14, v{V_PS}, s64
s_branch L_ps_rows
L_ps_rem:
s_sub_u32 s64, s62, 16
s_mul_i32 s64, s64, 160
s_add_u32 s64, s64, 16
s_mov_b32 s{S_PI}, {20 * 1280}
v_mul_u32_u24 v14, 40, v14
v_add3_u32 v{V_PS}, v14, v{V_PS}, s64
s_branch L_ps_rows
L_ps_w2:
s_mov_b32 s60, s{P_W2}
s_mov_b32 s61, s{P_W2 + 1}
s_mov_b32 s{KS + 2}, {1536 * 1280}
s_sub_u32 s62, s62, 20
s_lshl_b32 s64, s62, 5
s_mov_b32 s{S_PI}, {16 * 1280}
v_add_u32 v{V_PS}, s64, v{V_PS}
s_mul_i32 s64, s62, 43691
s_lshr_b32 s64, s64, 17
s_mul_i32 s65, s64, 3
s_sub_u32 s65, s62, s65
s_lshl_b32 s65, s65, 4
s_add_u32 s64, s64, s65
s_mul_i32 s66, s64, 5120
s_add_u32 s66, s66, {W2F}
s_mov_b32 s68, 245760
L_ps_rows:
v_mul_u32_u24 v{V_PS}, 1280, v{V_PS}""")
    for i in range(5):
        a(f"""
s_add_u32 s62, s63, {4 * i}
s_lshl_b32 s64, s62, 6
s_cmp_gt_u32 s67, {i}
s_cselect_b32 s{S_PS + i}, s64, {OOB}""")
        for tl in range(2):
            a(f"""
s_lshl_b32 s64, s62, 1
s_add_u32 s64, s64, {tl}
s_mul_i32 s65, s64, 52429
s_lshr_b32 s65, s65, 18
s_mul_i32 s69, s65, 5
s_sub_u32 s64, s64, s69
s_mul_i32 s65, s65, s68
s_lshl_b32 s64, s64, 10
s_add_u32 s64, s64, s65
s_add_u32 s64, s64, s66
s_cmp_gt_u32 s67, {i}
s_cselect_b32 s{S_PD + 2 * i + tl}, s64, {OOB}""")
    a(f"""
L_ps_go:
s_mov_b32 s{KS}, s60
s_mov_b32 s{KS + 1}, s61
s_mov_b32 s{KS + 3}, {SRD3}
v_lshl_add_u32 v{V_PS}, v15, 4, v{V_PS}""")


def addresses(a):
    a(f"""
v_lshrrev_b32 v{H}, 5, v{LANE}
v_and_b32 v{TOK}, 31, v{LANE}
s_mul_i32 s60, s{S_HALF}, 12288
v_add_u32 v{VA}, s60, v{VL16}
v_cmp_lt_u32 s[62:63], 20, v{TOK}
v_add_u32 v14, 1024, v{VA}
s_add_u32 s61, s60, {1024 + 336}
v_cndmask_b32 v{VV0}, v{VA}, v14, s[62:63]
v_lshrrev_b32 v14, 4, v{TOK}
v_lshlrev_b32 v14, 9, v14
v_and_b32 v15, 15, v{TOK}
v_lshl_add_u32 v14, v15, 3, v14
v_add_u32 v{VK4}, s61, v14
v_add_u32 v{VAX}, {X_OFF}, v{VA}
v_add_u32 v{VV0X}, {X_OFF}, v{VV0}
v_add_u32 v{VK4X}, {X_OFF}, v{VK4}
s_mul_i32 s{S_DST}, s{S_P}, 3072
s_add_u32 s{S_SRC}, s{S_DST}, {KV}
s_mul_i32 s61, s{S_HALF}, 1536
s_add_u32 s62, s{S_DST}, s61
s_add_u32 s62, s62, {LDS_Q}
s_sub_u32 s63, s{S_DST}, s61
s_add_u32 s63, s63, {LDS_Q + 1536}
v_add_u32 v209, s62, v{VL16}
v_add_u32 v210, s63, v{VL16}
v_lshlrev_b32 v14, 4, v{TOK}
v_add_u32 v211, s62, v14
v_add_u32 v212, s63, v14
v_mov_b32 v7, {LDS_MISC}""")


def young_prep(a, part):
    if part == 0:
        addresses(a)
    if part == 1:
        ps_setup(a)
    if part == 2:
        for r in range(CA, CA + 32):
            a(f"v_mov_b32 v{r}, 0")
    if part == 10:
        a(f"""
v_lshlrev_b32 v11, 7, v{LANE}
s_mov_b32 s61, {KVFLG}
s_cmp_eq_u32 s{S_W}, 7
s_cselect_b32 exec_lo, -1, 0
s_mov_b32 exec_hi, 0
buffer_load_dword v{T + 10}, v11, s[{WS}:{WS + 3}], s61 offen sc1
s_mov_b64 exec, -1""")
    if part == 11:
        a(f"""
s_cmp_lg_u32 s{S_W}, 7
s_cbranch_scc1 L_kv_noearly
s_mov_b32 exec_hi, 0
s_waitcnt vmcnt(0)
v_cmp_ne_u32 vcc, 8, v{T + 10}
v_mov_b32 v14, 1
v_mov_b32 v15, {LDS_READY}
s_nop 2
s_cbranch_vccnz L_kv_notyet
ds_write_b32 v15, v14
L_kv_notyet:
s_mov_b64 exec, -1
L_kv_noearly:""")


def young_tail(a):
    a(f"""
v_lshlrev_b32 v14, 7, v{LANE}
v_lshlrev_b32 v11, 3, v{LANE}
s_mov_b32 s61, {KVFLG}
v_mov_b32 v15, {LDS_READY}
s_cmp_lg_u32 s{S_W}, 7
s_cbranch_scc1 L_kv_lds
ds_read_b32 v10, v15
s_waitcnt lgkmcnt(0)
v_readfirstlane_b32 s62, v10
s_nop 3
s_cmp_lg_u32 s62, 0
s_cbranch_scc1 L_kv_seen""")
    a.poll(14, T, WS, "s61", 32, "8")
    a(f"""
v_mov_b32 v14, 1
ds_write_b32 v15, v14
s_branch L_kv_seen
L_kv_lds:
s_mov_b32 s60, 0
L_kv_spin:
ds_read_b32 v14, v15
s_add_u32 s60, s60, 1
s_waitcnt lgkmcnt(0)
v_readfirstlane_b32 s62, v14
s_cmp_ge_u32 s60, {SPIN_LIMIT * 16}
s_cbranch_scc1 L_kv_seen
s_nop 1
s_cmp_eq_u32 s62, 0
s_cbranch_scc1 L_kv_spin
L_kv_seen:""")
    a.stamp(58)
    a(f"""
s_mov_b32 s62, {KN}
buffer_load_dwordx2 v[{T + 4}:{T + 5}], v11, s[{WS}:{WS + 3}], s62 offen sc1
buffer_load_dwordx2 v[{T + 6}:{T + 7}], v11, s[{WS}:{WS + 3}], s62 offen offset:512 sc1""")
    for g in stage_groups(0):
        for x in g:
            a(x)
    a(f"""
v_mov_b32 v{T + 3}, {f32(SAFE_V)}
s_waitcnt vmcnt(6)
v_max_f32 v14, v{T + 4}, v{T + 5}
v_cmp_nle_f32 s[66:67], v{T + 6}, v{T + 3}
v_cmp_nle_f32 s[64:65], v{T + 7}, v{T + 3}""")
    a.wave_max(14)
    a(f"""
s_or_b64 s[66:67], s[66:67], s[64:65]
s_cselect_b32 s62, 0x7f800000, 0
s_nop 0
v_readlane_b32 s63, v14, 63
s_nop 3
s_or_b32 s62, s62, s63
v_mov_b32 v14, s62
ds_write_b32 v7, v14
s_waitcnt vmcnt(0)""")
    a.stamp(59)
    a("s_branch L_p1_x2")


def stage_groups(t):
    out = []
    for hf in range(2):
        for i in range(3):
            g = [f"s_add_u32 m0, s{S_DST}, {KV_SLOT[t] + hf * 12288}",
                 f"s_add_u32 s61, s{S_SRC}, {t * 12288 + hf * 32 * 3072}"] if i == 0 else []
            o = f" offset:{1024 * i}" if i else ""
            out.append(g + [f"buffer_load_dwordx4 v{VL16}, s[{WS}:{WS + 3}], s61 offen{o} sc1 lds"])
    return out


def phase2(a, tail):
    addresses(a)
    a("""
L_p1_x2:
s_waitcnt lgkmcnt(0)
s_barrier""")
    a.stamp(8)

    def tile_reads(buf, off):
        if off >= X_OFF:
            va, vv, vk, off = VAX, VV0X, VK4X, off - X_OFF
        else:
            va, vv, vk = VA, VV0, VK4
        return [f"ds_read_b128 {vr(KB[buf], 4)}, v{va} offset:{off}",
                f"ds_read_b64 {vr(KB[buf] + 4, 2)}, v{vk} offset:{off}",
                f"ds_read_b128 {vr(VB[buf], 4)}, v{vv} offset:{off + 1024}",
                f"ds_read_b128 {vr(VB[buf] + 4, 4)}, v{va} offset:{off + 2048}"]

    a(f"""
ds_read_b128 {vr(QA, 4)}, v209
ds_read_b64 {vr(QA + 4, 2)}, v211 offset:1024
ds_read_b128 {vr(QB, 4)}, v210
ds_read_b64 {vr(QB + 4, 2)}, v212 offset:1024
ds_read_b32 v10, v7""")
    for x in tile_reads(0, KV_SLOT[0]):
        a(x)
    a(f"""
v_cmp_eq_u32 s[64:65], 0, v{H}
v_mov_b32 v14, 0
v_mov_b32 v15, 0
v_mov_b32 v{T + 2}, {f32(SAFE_BOUND ** 2)}
s_waitcnt lgkmcnt(4)""")
    for r in (QA + 4, QA + 5, QB + 4, QB + 5):
        a(f"v_cndmask_b32 v{r}, 0, v{r}, s[64:65]")
    for j in range(6):
        a(f"v_dot2_f32_bf16 v14, v{QA + j}, v{QA + j}, v14")
        a(f"v_dot2_f32_bf16 v15, v{QB + j}, v{QB + j}, v15")
    a("s_nop 2")
    a.half_sum(14, T)
    a.half_sum(15, T)
    a(f"""
v_max_f32 v14, v14, v15
v_mul_f32 v14, v10, v14
v_cmp_nle_f32 vcc, v14, v{T + 2}
s_nop 4
s_cbranch_vccnz L_truemax
L_att_start:
s_waitcnt lgkmcnt(0)
{mfma(S0, KB[0], QA, CA)}
{mfma8(S0, KB[0] + 4, QA + 4, S0)}
s_cmp_ge_u32 s{S_W}, 4
s_nop 7
s_nop 2
s_cbranch_scc1 L_att_young""")
    prio = mcommon.OPT.get("prio", "old")

    def job(cur, nxt, q, c, kb, o_cur, v_cur, o_prev, v_prev, fill, first=False, last=False, fresh=False):
        def ex(g):
            for x in fill[g]:
                a(x)
        if not last:
            a(mfma(nxt, kb, q, c))
        for j in range(0, 4):
            a(f"v_exp_f32 v{cur + j}, v{cur + j}")
        if not first:
            a(mfma(o_prev, v_prev + 4, P + 4, o_prev))
        ex(0)
        for j in range(4, 8):
            a(f"v_exp_f32 v{cur + j}, v{cur + j}")
        a(mfma8(nxt, kb + 4, q + 4, nxt) if not last else "s_nop 0")
        ex(1)
        for j in range(0, 4):
            a(f"v_cvt_pk_bf16_f32 v{P + j}, v{cur + 2 * j}, v{cur + 2 * j + 1}")
        for j in range(8, 12):
            a(f"v_exp_f32 v{cur + j}, v{cur + j}")
        a(mfma(o_cur, v_cur, P, "0" if fresh else o_cur))
        ex(2)
        for j in range(12, 16):
            a(f"v_exp_f32 v{cur + j}, v{cur + j}")
        ex(3)
        for j in range(4, 8):
            a(f"v_cvt_pk_bf16_f32 v{P + j}, v{cur + 2 * j}, v{cur + 2 * j + 1}")

    def stream(svc, waits, stamps):
        for t in range(8):
            for u in range(4):
                b, nb = u % 2, (u + 1) % 2
                ja = 8 * t + 2 * u
                last = t == 7 and u == 3
                fa = [[], [], [], []]
                if u < 3:
                    r = tile_reads(nb, KV_SLOT[t] + (u + 1) * 3072)
                    fa = [r[0:2], [r[2]], [r[3]], []]
                elif not last:
                    r = tile_reads(nb, KV_SLOT[t + 1])
                    fa = [waits.get(t, []) + ["s_barrier"] + r[0:2], [r[2]], [r[3]], []]
                fa = [fa[g] + svc.get((ja, g), []) for g in range(4)]
                if prio == "flip" or (prio == "flip2" and u % 2 == 0):
                    a("s_setprio 1")
                if prio == "flip2" and u % 2 == 1:
                    a("s_setprio 0")
                job(S0, S1, QB, CB, KB[b], OA, VB[b], OB, VB[nb], fa, first=(ja == 0), fresh=(ja == 0))
                if prio == "flip":
                    a("s_setprio 0")
                if not last:
                    a("s_waitcnt lgkmcnt(0)")
                job(S1, S0, QA, CA, KB[nb], OB, VB[b], OA, VB[b], [svc.get((ja + 1, g), []) for g in range(4)], last=last, fresh=(ja == 0))
            if stamps and t in (0, 3):
                a.stamp(11 if t == 0 else 12)
        a(f"s_nop 0\n{mfma(OB, VB[1] + 4, P + 4, OB)}")

    def put(svc, j, g, ins):
        svc.setdefault((j, g), []).extend(ins)

    if prio == "old":
        a("s_setprio 1")
    a.stamp(10)
    a.stamp(60, True)
    svc = {}
    def spread(svc, j0, groups, per_job=3):
        for k, g in enumerate(groups):
            put(svc, j0 + k // per_job, k % per_job, g)
        return j0 + (len(groups) + per_job - 1) // per_job

    spread(svc, 0, stage_groups(1) + stage_groups(2))
    spread(svc, 7, stage_groups(3))
    for t in range(2, 6):
        spread(svc, 8 * t + 7, stage_groups(t + 2))
    put(svc, 56, 3, f"""s_lshl_b32 s60, s{S_RB}, 6
s_lshl_b32 s61, s{S_W}, 4
s_add_u32 s60, s60, s61
v_and_b32 v10, 15, v{LANE}
v_add_u32 v10, s60, v10
v_mul_u32_u24 v10, 1280, v10
v_lshrrev_b32 v12, 4, v{LANE}
v_lshl_add_u32 v10, v12, 3, v10
s_mul_i32 s60, s{S_CB}, 160""".split("\n"))
    spread(svc, 57, [[f"buffer_load_dwordx2 {vr(RES + 2 * m, 2)}, v10, s[{XS}:{XS + 3}], s60 offen offset:{32 * m}"] for m in range(5)])
    stream(svc, {t: [f"s_waitcnt vmcnt({ {0: 6, 1: 6}.get(t, 0) })"] for t in range(7)}, True)
    a.stamp(13)
    a("s_branch L_att_done")

    a("L_att_young:")
    if prio == "young":
        a("s_setprio 1")
    svc = {}
    jt = int(mcommon.OPT.get("touch_at", 7))
    jl = int(mcommon.OPT.get("ps_issue", 17))
    jp = int(mcommon.OPT.get("ps_proc", 22))
    put(svc, jt, 0, f"""s_lshl_b32 s60, s2, 2
s_add_u32 s60, s60, s{S_P}
s_mul_i32 s61, s60, {15 * 128}
v_lshlrev_b32 v10, 7, v{LANE}
v_add_u32 v15, s61, v10
s_mul_i32 s61, s60, {25 * 32}
v_add_u32 v14, s61, v10
v_and_b32 v14, 0xffffff80, v14""".split("\n"))
    put(svc, jt, 2, f"""s_mov_b64 exec, 0x7fff
global_load_dword v{T + 30}, v15, s[{P_W1}:{P_W1 + 1}]
global_load_dword v{T + 31}, v15, s[{P_W3}:{P_W3 + 1}]
global_load_dword v{T + 32}, v15, s[{P_W2}:{P_W2 + 1}]
s_mov_b64 exec, 0x7f
global_load_dword v{T + 33}, v14, s[{P_WO}:{P_WO + 1}]
s_mov_b64 exec, -1""".split("\n"))
    g = []
    for i in range(5):
        g.append([f"s_add_u32 m0, s{S_PSB}, {2048 * i}", f"s_add_u32 s61, s{S_PS + i}, s{S_PI}",
                  f"buffer_load_dwordx4 v{V_PS}, s[{KS}:{KS + 3}], s{S_PS + i} offen lds"])
        g.append([f"s_add_u32 m0, s{S_PSB}, {2048 * i + 1024}", "s_nop 0",
                  f"buffer_load_dwordx4 v{V_PS}, s[{KS}:{KS + 3}], s61 offen lds"])
    spread(svc, jl, g)
    CS, ONE = T + 16, T + 24
    put(svc, jp - 1, 3, [f"v_mov_b32 v{ONE}, 0x3f803f80", f"v_mov_b32 v{ONE + 1}, 0x3f803f80"])
    stride = int(mcommon.OPT.get("ps_stride", 2))
    assert jl + 3 < jp and jp % 2 == 0 and stride % 2 == 0
    for i in range(5):
        ja = jp + stride * i
        put(svc, ja, 1, ["s_waitcnt vmcnt(8)"])
        r = T + 8 * (i % 2)
        for tl in range(2):
            put(svc, ja, 2 + tl, [f"ds_read_b64_tr_b16 {vr(r + 4 * tl, 2)}, v{V_TR} offset:{2048 * i + 32 * tl}",
                                  f"ds_read_b64_tr_b16 {vr(r + 4 * tl + 2, 2)}, v{V_TR} offset:{2048 * i + 32 * tl + 1024}"])
            cs = CS + 4 * tl
            c0 = "0" if i == 0 else vr(cs, 4)
            put(svc, ja + 1, 2 * tl, [f"v_mfma_f32_4x4x4_16b_bf16 {vr(cs, 4)}, {vr(ONE, 2)}, {vr(r + 4 * tl, 2)}, {c0}"])
            put(svc, ja + 1 + (tl * 2 if i < 4 and stride >= 4 else 0), 2 * tl,
                [f"buffer_store_dwordx4 {vr(r + 4 * tl, 4)}, v{VL16}, s[{WS}:{WS + 3}], s{S_PD + 2 * i + tl} offen sc1"])
            put(svc, ja + 1, 2 * tl + 1, [f"v_mfma_f32_4x4x4_16b_bf16 {vr(cs, 4)}, {vr(ONE, 2)}, {vr(r + 4 * tl + 2, 2)}, {vr(cs, 4)}"])
    jf = jp + 4 * stride + 2
    fin = []
    for tl in range(2):
        c, t1, o = CS + 4 * tl, T + 26 + tl, T + 4 * tl
        for width in (32, 16):
            fin += [[f"v_mov_b32 v{t1}, v{c}"], [f"v_permlane{width}_swap_b32 v{c}, v{t1}"], [f"v_add_f32 v{c}, v{c}, v{t1}"]]
        fin += [[f"v_cvt_pk_bf16_f32 v{o}, v{c}, v{c}", f"v_mov_b32 v{o + 2}, 0"],
                [f"v_and_b32 v{t1}, 0xffff0000, v{o}", f"v_sub_f32 v{t1}, v{c}, v{t1}"],
                [f"v_cvt_pk_bf16_f32 v{o + 1}, v{t1}, v{o + 2}", f"v_mov_b32 v{o + 3}, 0"]]
    fin += [[f"v_lshrrev_b32 v10, 4, v{LANE}", f"v_cmp_ne_u32 vcc, s{S_P}, v10"],
            ["v_cndmask_b32 v10, 0, 1, vcc", f"v_lshl_add_u32 v10, v10, 30, v{VL16}"],
            [f"buffer_store_dwordx4 {vr(T + 4 * tl, 4)}, v10, s[{WS}:{WS + 3}], s{S_PE + tl} offen sc1" for tl in range(2)]]
    fin = [fin[k] + fin[9 + k] for k in range(9)] + fin[18:]
    for k, g in enumerate(fin):
        put(svc, jf + k // 4, k % 4, g)
    tf = (jf + (len(fin) - 1) // 4 + 2) // 8
    tf += int(mcommon.OPT.get("ps_tf", 0))
    jg = 8 * tf + 6
    put(svc, jg, 3, f"""s_lshl_b32 s60, s{S_IDX}, 2
s_add_u32 s60, s60, {PSFLG}
v_mov_b32 v10, 0
v_mov_b32 v14, 1
s_cmp_eq_u32 s{S_P}, 0
s_cselect_b32 exec_lo, 1, 0
s_mov_b32 exec_hi, 0
buffer_store_dword v14, v10, s[{WS}:{WS + 3}], s60 offen sc1
s_mov_b64 exec, -1""".split("\n"))
    jc = jg + int(mcommon.OPT.get("ps_gap", 5))
    put(svc, jc, 3, [f"s_mov_b32 s62, {PSFLG}",
                     f"buffer_load_dwordx4 {vr(T, 4)}, v{VL16}, s[{WS}:{WS + 3}], s62 offen sc1"])
    put(svc, jc + 3, 3, f"""s_waitcnt vmcnt(0)
v_and_b32 v{T}, v{T}, v{T + 1}
v_and_b32 v{T + 2}, v{T + 2}, v{T + 3}
v_and_b32 v{T}, v{T}, v{T + 2}
v_cmp_ne_u32 vcc, 1, v{T}
s_mul_i32 s60, s{S_P}, 25600
s_mul_i32 s61, s{S_CB}, 102400
s_add_u32 s61, s61, s60
s_add_u32 s63, s61, {WOF}
s_add_u32 s64, s60, {LDS_WO}
s_cbranch_vccnz L_ps_wait
L_ps_ready:""".split("\n"))
    j = jc + 4
    assert j >= 32, "the start-up K/V slots must be free"
    g = []
    for i in range(25):
        pre = [f"s_add_u32 m0, s64, {4096 * (i // 4)}", f"s_add_u32 s61, s63, {4096 * (i // 4)}"] if i % 4 == 0 else []
        o = f" offset:{1024 * (i % 4)}" if i % 4 else ""
        g.append(pre + [f"buffer_load_dwordx4 v{VL16}, s[{WS}:{WS + 3}], s61 offen{o} sc1 lds"])
    j = spread(svc, j, g, int(mcommon.OPT.get("wo_per", 3)))
    assert j < 63
    put(svc, j, 3, f"""s_lshr_b32 s60, s{S_FB}, 2
s_mul_i32 s60, s60, {4 * 21 * 12288}
s_and_b32 s61, s{S_IDX}, 31
s_lshl_b32 s61, s61, 2
s_add_u32 s61, s61, s{S_P}
s_mul_i32 s61, s61, {63 * 128}
s_add_u32 s60, s60, s61
s_add_u32 s60, s60, {W13F}
v_lshlrev_b32 v10, 7, v{LANE}
buffer_load_dword v{T + 8}, v10, s[{WS}:{WS + 3}], s60 offen sc1""".split("\n"))
    abl = mcommon.OPT.get("abl", "")
    if "p" in abl:
        svc = {k: v for k, v in svc.items() if k[0] >= jg}
    if "w" in abl:
        svc = {k: v for k, v in svc.items() if k[0] <= jc + 3}
    if "t" in abl:
        svc = {k: v for k, v in svc.items() if k[0] != jt}
    for ch, pat in (("l", "s[16:19]"), ("m", "4x4x4"), ("x", "_tr_b16"), ("k", "vmcnt(8)")):
        if ch in abl:
            svc = {k: [x for x in v if pat not in x] for k, v in svc.items()}
    if "f" in abl:
        svc = {k: v for k, v in svc.items() if not (jf <= k[0] < jf + 3)}
    if "o" in abl:
        svc = {k: [x.replace("s[4:7], s7", "s[4:7], s8") if False else x for x in v] for k, v in svc.items()}
        svc = {k: [x.replace(f"v{VL16}, s[{WS}:{WS + 3}], s7", f"v5, s[{WS}:{WS + 3}], s7").replace(f"v{VL16}, s[{WS}:{WS + 3}], s8", f"v5, s[{WS}:{WS + 3}], s8") for x in v] for k, v in svc.items()}
    if mcommon.OPT.get("psaux"):
        svc = {k: [x.replace(" sc1", " " + mcommon.OPT["psaux"].replace("+", " ")) if "buffer_store_dwordx4" in x else x for x in v] for k, v in svc.items()}
    if "n" in abl:
        svc = {k: [x.replace(" sc1", "") if "buffer_store_dwordx4" in x else x for x in v] for k, v in svc.items()}
    if "s" in abl:
        svc = {k: [x for x in v if "buffer_store_dwordx4" not in x] for k, v in svc.items()}
    print('re-layout schedule: fin', jf, 'flag', jg, 'check', jc, 'wo end', j)
    stream(svc, {tf: ["s_waitcnt vmcnt(0)"]}, False)
    a(f"""
L_att_done:
s_setprio 0
s_mul_i32 s60, s{S_W}, 3072
s_xor_b32 s61, s{S_W}, 4
s_mul_i32 s61, s61, 3072
v_add_u32 v10, s60, v{VL16}
v_add_u32 v11, s61, v{VL16}
s_lshl_b32 s62, s{S_RB}, 1
s_add_u32 s62, s62, s{S_HALF}
s_lshl_b32 s35, s{S_RB}, 7
s_lshl_b32 s63, s{S_CB}, 2
s_add_u32 s35, s35, s63
s_add_u32 s35, s35, {OFLG}
s_mul_i32 s62, s62, 40960
s_add_u32 s62, s62, {OF}
s_lshl_b32 s63, s{S_HEAD}, 9
s_add_u32 s63, s63, s62
s_lshr_b32 s64, s{S_HEAD}, 3
s_add_u32 s64, s64, 16
s_lshl_b32 s64, s64, 10
s_add_u32 s64, s64, s62
s_bfe_u32 s65, s{S_HEAD}, 0x20001
s_lshl_b32 s65, s65, 8
s_add_u32 s64, s64, s65
s_and_b32 s65, s{S_HEAD}, 1
s_lshl_b32 s65, s65, 3
s_add_u32 s64, s64, s65
v_lshrrev_b32 v12, 4, v{TOK}
v_mul_u32_u24 v12, 20480, v12
v_and_b32 v13, 15, v{TOK}
v_lshl_add_u32 v12, v13, 4, v12
v_lshl_add_u32 v13, v{H}, 8, v12
v_lshl_add_u32 v12, v{H}, 30, v12""")
    for j in range(3):
        a(f"ds_write_b128 v10, {vr(OB + 4 * j, 4)} offset:{1024 * j}")
    a("s_waitcnt lgkmcnt(0)\ns_barrier")
    a.stamp(30)
    a.stamp(54, True)
    for j in range(3):
        a(f"ds_read_b128 {vr(T + 12 + 4 * j, 4)}, v11 offset:{1024 * j}")
    a("s_waitcnt lgkmcnt(0)")
    for j in range(12):
        a(f"v_add_f32 v{OA + j}, v{OA + j}, v{T + 12 + j}")
    a(f"""
v_mov_b32 v14, v{OA + 8}
v_mov_b32 v15, v{OA + 8}
s_nop 1
v_permlane32_swap_b32 v14, v15
s_nop 1
v_rcp_f32 v15, v15
s_nop 0""")
    for j in range(12):
        a(f"v_mul_f32 v{OA + j}, v{OA + j}, v15")
    for j in range(6):
        a(f"v_cvt_pk_bf16_f32 v{T + j}, v{OA + 2 * j}, v{OA + 2 * j + 1}")
    a(f"""
buffer_store_dwordx4 {vr(T, 4)}, v13, s[{WS}:{WS + 3}], s63 offen sc1""")
    if "r" not in mcommon.OPT.get("abl", ""):
        a(f"buffer_store_dwordx2 {vr(T + 4, 2)}, v12, s[{WS}:{WS + 3}], s64 offen sc1")
    if "v" in mcommon.OPT.get("abl", ""):
        a("s_waitcnt vmcnt(2)")
    a.stamp(14)
    a("s_waitcnt vmcnt(0)")
    a.stamp(55)
    a(f"s_cmp_lg_u32 s{S_W}, 0\nv_mov_b32 v10, 0\nv_mov_b32 v12, 1\ns_cselect_b32 s60, 0, 1\ns_barrier")
    a(f"""
s_mov_b32 exec_lo, s60
s_mov_b32 exec_hi, 0
buffer_store_dword v12, v10, s[{WS}:{WS + 3}], s35 offen sc1
s_mov_b64 exec, -1""")

    b = tail
    b(f"""
L_ps_wait:
s_mov_b32 s60, 0
L_ps_spin:
buffer_load_dwordx4 {vr(T, 4)}, v{VL16}, s[{WS}:{WS + 3}], s62 offen sc1
s_add_u32 s60, s60, 1
s_waitcnt vmcnt(0)
v_and_b32 v{T}, v{T}, v{T + 1}
v_and_b32 v{T + 2}, v{T + 2}, v{T + 3}
v_and_b32 v{T}, v{T}, v{T + 2}
v_cmp_ne_u32 vcc, 1, v{T}
s_nop 4
s_cbranch_vccz L_ps_ready
s_cmp_lt_u32 s60, {SPIN_LIMIT}
s_cbranch_scc1 L_ps_spin
s_branch L_ps_ready""")
    MA, MB = T + 8, T + 9
    b(f"""
L_truemax:
v_mov_b32 v{MA}, 0xff800000
v_mov_b32 v{MB}, 0xff800000
s_mul_i32 s60, s{S_HALF}, 12288
v_subrev_u32 v10, s60, v{VK4}
s_mov_b32 s60, {KV}
L_tm_loop:
buffer_load_dwordx4 {vr(T, 4)}, v{VL16}, s[{WS}:{WS + 3}], s60 offen sc1
buffer_load_dwordx2 {vr(T + 4, 2)}, v10, s[{WS}:{WS + 3}], s60 offen sc1
s_waitcnt vmcnt(0)
{mfma(S0, T, QA, "0")}
{mfma(S1, T, QB, "0")}
{mfma8(S0, T + 4, QA + 4, S0)}
{mfma8(S1, T + 4, QB + 4, S1)}
s_nop 7
s_nop 7""")
    for j in range(8):
        b(f"v_max3_f32 v{MA}, v{S0 + 2 * j}, v{S0 + 2 * j + 1}, v{MA}")
        b(f"v_max3_f32 v{MB}, v{S1 + 2 * j}, v{S1 + 2 * j + 1}, v{MB}")
    b(f"""
s_add_u32 s60, s60, 3072
s_cmp_lt_u32 s60, {KV + 64 * 3072}
s_cbranch_scc1 L_tm_loop""")
    b.half_max(MA, T)
    b.half_max(MB, T)
    for j in range(16):
        b(f"v_sub_f32 v{CA + j}, 0, v{MA}")
        b(f"v_sub_f32 v{CB + j}, 0, v{MB}")
    b("s_nop 1\ns_branch L_att_start")
```

```python
from mcommon import *
import mcommon
from m2 import LDS_WO, RES

SLOT, NSLOT = 20480, 8
N4, NITEM = 21, 33
HRES = 240
DIST = 6


def loader(a):
    S_S13, S_S2, S_H = 33, 34, 46
    seq = []

    def dmas(tag, n, src, off, lds, pace=None, part=None):
        a(f"""
s_mul_i32 s60, s{S_P}, {n * 1024}
s_add_u32 s61, s60, {off}
s_add_u32 s61, s61, {src}
s_add_u32 s60, s60, {lds}""")
        lo, hi = part or (0, n)
        for i in range(lo, hi):
            if i == 4:
                a("s_add_u32 s60, s60, 4096\ns_add_u32 s61, s61, 4096")
            if pace is not None:
                a(f"s_waitcnt vmcnt({pace})")
            a.dma(VL16, WS, "s61", "s60" if i % 4 == 0 or i == lo else None, imm=1024 * (i % 4), aux="sc1")
            seq.append(tag)

    def weights(g, pace=None, part=None):
        if g < N4:
            dmas(g, 3, f"s{S_S13}", g * 12288, (g % NSLOT) * SLOT, pace)
        else:
            dmas(g, 5, f"s{S_S2}", (g - N4) * 20480, (g % NSLOT) * SLOT, pace, part)

    def tokens(g):
        if g < 20:
            a(f"s_lshl_b32 s60, s{S_P}, 11\ns_add_u32 s60, s60, {(g % NSLOT) * SLOT + 12288}\ns_add_u32 s61, s{S_H}, {g * 1024}")
            a.dma(VL16, WS, "s61", "s60", aux="sc1")
            a("s_add_u32 s60, s60, 1024\ns_add_u32 s61, s61, 20480")
            a.dma(VL16, WS, "s61", "s60", aux="sc1")
            seq.extend([g, g])

    def wait(c):
        last = max(i for i, x in enumerate(seq) if x == c)
        a(f"s_waitcnt vmcnt({len(seq) - 1 - last})")

    def poll_flags(tag, base, n, barrier=True):
        a(f"s_cmp_lg_u32 s{S_P}, 0\ns_cbranch_scc1 L_seen_{tag}\n{base}")
        if mcommon.OPT.get("predrain", "1") == "1":
            a("s_waitcnt vmcnt(0)")
        a.poll(11, 10, WS, "s62", n)
        a(f"L_seen_{tag}:")
        if barrier:
            a("s_barrier")

    a(f"""
L_loader:
v_lshrrev_b32 v11, 3, v{LANE}
v_lshlrev_b32 v11, 7, v11
v_and_b32 v12, 7, v{LANE}
v_lshl_add_u32 v11, v12, 2, v11
s_mul_i32 s{S_S13}, s{S_FB}, {21 * 12288}
s_add_u32 s{S_S13}, s{S_S13}, {W13F}
s_mul_i32 s{S_S2}, s{S_CB}, 245760
s_add_u32 s{S_S2}, s{S_S2}, {W2F}
s_lshl_b32 s60, s{S_RB2}, 2
s_add_u32 s60, s60, s{S_P}
s_mul_i32 s60, s60, 40960
s_add_u32 s{S_H}, s60, {HF}""")
    pace = int(mcommon.OPT.get("pace", 5))
    early = int(mcommon.OPT.get("early", 7))
    weights(0)
    weights(1)
    poll_flags("o", f"s_lshl_b32 s62, s{S_RB}, 7\ns_add_u32 s62, s62, {OFLG}", 8)
    a("s_barrier")
    for g in range(2, early):
        weights(g, pace)
    poll_flags("h", f"s_lshl_b32 s62, s{S_RB2}, 10\ns_add_u32 s62, s62, {HFLG}", 64)
    for g in range(7):
        tokens(g)
        if g >= early:
            weights(g)
    for c in range(NITEM):
        if c == N4:
            a("s_barrier")
            weights(27)
            weights(28)
            poll_flags("hh0", f"s_lshl_b32 s62, s{S_RB}, 9\ns_add_u32 s62, s62, {HHFLG}", 32)
        if c in (23, 27):
            sg = 1 if c == 23 else 2
            a(f"s_cmp_lg_u32 s{S_P}, 0\ns_cbranch_scc1 L_seen_hh{sg}")
            wait(("fl", sg))
            a(f"""
v_cmp_ne_u32 vcc, 1, v13
s_lshl_b32 s62, s{S_RB}, 9
s_add_u32 s62, s62, {HHFLG + 16384 * sg}
s_nop 2
s_cbranch_vccz L_seen_hh{sg}""")
            a.poll(11, 10, WS, "s62", 32)
            a(f"L_seen_hh{sg}:")
        wait(c)
        a("s_barrier")
        if c in (21, 24):
            sg = 1 if c == 21 else 2
            a(f"""
v_mov_b32 v13, 1
s_lshl_b32 s62, s{S_RB}, 9
s_add_u32 s62, s62, {HHFLG + 16384 * sg}
s_cmp_eq_u32 s{S_P}, 0
s_cselect_b32 s62, s62, {OOB}
s_mov_b32 exec_hi, 0
buffer_load_dword v13, v11, s[{WS}:{WS + 3}], s62 offen sc1
s_mov_b64 exec, -1""")
            seq.append(("fl", sg))
        g = c + 6
        if c >= 23 and mcommon.OPT.get("w2pace", "1") == "1":
            k = c - 23
            if k < 8:
                weights(29 + k // 2, None, (0, 3) if k % 2 == 0 else (3, 5))
        elif c >= 1 and g < NITEM and g not in (27, 28):
            tokens(g)
            weights(g)
    a.stamp_out()
    a("s_endpgm")


def stream(a, frags, dist=DIST, group=2):
    n, nb = len(frags), dist + 1
    issued, last_of = 0, {}

    def read(i):
        nonlocal issued
        f = frags[i]
        for x in f.get("pre_read", []):
            a(x)
        for dst, addr, off in f.get("extra_reads", []):
            a(f"ds_read_b128 {vr(dst, 4)}, v{addr} offset:{off}")
            issued += 1
        a(f"ds_read_b128 {vr(f['abuf'] + 4 * (i % nb), 4)}, v{f['addr']} offset:{f['off']}")
        issued += 1
        last_of[i] = issued

    for i in range(min(dist, n)):
        read(i)
    for i, f in enumerate(frags):
        for x in f.get("pre_mma", []):
            a(x)
        if i % group == 0:
            a(f"s_waitcnt lgkmcnt({issued - last_of[min(i + group - 1, n - 1)]})")
        A = f["abuf"] + 4 * (i % nb)
        for k, (acc, b) in enumerate(zip(f["acc"], f["b"])):
            a(mfma16(acc, A, b, "0" if f["first"] else acc))
            if k == 0 and i + dist < n:
                read(i + dist)
        for x in f.get("post_mma", []):
            a(x)


def bloads(breg, s_base, step, nt):
    out = []
    for n in range(nt):
        if step % 4 == 0 and step:
            out.append(f"s_add_u32 s{s_base + n}, s{s_base + n}, 4096")
        out.append(f"buffer_load_dwordx4 {vr(breg + 4 * n, 4)}, v{VL16}, s[{WS}:{WS + 3}], s{s_base + n} offen"
                   + (f" offset:{1024 * (step % 4)}" if step % 4 else "") + " sc1")
    return out


def plan_b(fr, per, nsteps, W, BW, S_B, lead, nt=2, extra=()):
    order = [(s, nt) for s in range(lead)] + [("x", sum("buffer_load" in x for x in extra))]
    first = [x for s in range(lead) for x in bloads(BW + 4 * nt * (s % W), S_B, s, nt)] + list(extra)
    nxt = lead
    for s in range(nsteps):
        f0, fl = fr[s * per], fr[s * per + per - 1]
        pos = [k for k, _ in order].index(s)
        f0.setdefault("pre_mma", []).insert(0, f"s_waitcnt vmcnt({sum(c for _, c in order[pos + 1:])})")
        slots = [fr[s * per + per // 2 - 1], fl]
        for k, f in enumerate(slots):
            limit = s + W - 1 if k == 0 else s + W
            if nxt < nsteps and nxt <= limit:
                f.setdefault("post_mma", []).extend(bloads(BW + 4 * nt * (nxt % W), S_B, nxt, nt))
                order.append((nxt, nt))
                nxt += 1
    assert nxt == nsteps
    return first


def line_touch(vtmp, vdst, s_base, nlines, s_part, stride=128):
    if mcommon.OPT.get("atouch", "0") != "1":
        return []
    out = [f"s_mul_i32 s68, s{s_part}, {nlines * stride}", f"s_add_u32 s68, s68, s{s_base}",
           f"v_lshlrev_b32 v{vtmp}, 7, v{LANE}"]
    left, k = nlines, 0
    while left > 0:
        n = min(left, 64)
        if n < 64:
            m = (1 << n) - 1
            out += [f"s_mov_b32 exec_lo, {m & 0xffffffff:#x}", f"s_mov_b32 exec_hi, {m >> 32:#x}"]
        if k:
            out.append("s_add_u32 s68, s68, 8192")
        out.append(f"buffer_load_dword v{vdst}, v{vtmp}, s[{WS}:{WS + 3}], s68 offen sc1")
        if n < 64:
            out.append("s_mov_b64 exec, -1")
        left -= n
        k += 1
    return out


def add_bf16(a, acc, src, n):
    for j in range(n):
        r, t = acc + 2 * j, 12 + 2 * (j % 2)
        a(f"""
v_lshlrev_b32 v{t}, 16, v{src + j}
v_and_b32 v{t + 1}, 0xffff0000, v{src + j}
v_pk_add_f32 v[{r}:{r + 1}], v[{r}:{r + 1}], v[{t}:{t + 1}]""")


def compute345(a):
    S_B, S_TT = 46, 34
    VQ, VT, V4, VA = 4, 5, 6, 7
    D35 = int(mcommon.OPT.get("d35", 9))
    BW, AB, ACC = 16, 96, 148
    a(f"""
v_lshrrev_b32 v{VQ}, 4, v{LANE}
v_and_b32 v{VT}, 15, v{LANE}
v_lshlrev_b32 v{V4}, 2, v{LANE}
s_lshl_b32 s{S_TT}, s{S_RB}, 2
s_add_u32 s{S_TT}, s{S_TT}, s{S_W}
s_lshl_b32 s62, s{S_RB}, 7
s_add_u32 s62, s62, {OFLG}
s_mul_i32 s63, s{S_TT}, 20480
s_add_u32 s{S_B}, s63, {OF}
v_add_u32 v{VA}, {LDS_WO}, v{VL16}
v_add_u32 v{VA + 1}, {LDS_WO + 51200}, v{VL16}
s_barrier""")
    a.stamp(16)
    a.stamp(61, True)
    fr = []
    for s in range(20):
        for m in range(5):
            f = dict(addr=VA + s // 10, off=(s % 10) * 5120 + m * 1024, abuf=AB, acc=[ACC + 4 * m],
                     b=[BW + 4 * s], first=(s == 0))
            if m == 0 and s in (0, 10):
                f["pre_mma"] = a.stamp_lines(45 + s // 10)
            fr.append(f)
    a(f"s_mov_b32 s69, s{S_B}")
    for x in plan_b(fr, 5, 20, 20, BW, S_B, int(mcommon.OPT.get("lead3", 6)), 1, line_touch(11, 254, 69, 20, S_CB)):
        a(x)
    stream(a, fr, D35, 2)
    a.stamp(17)
    a("s_nop 7")
    add_bf16(a, ACC, RES, 10)
    for j in range(10):
        a(f"v_cvt_pk_bf16_f32 v{HRES + j}, v{ACC + 2 * j}, v{ACC + 2 * j + 1}")
    a(f"""
s_mov_b32 s60, s{S_TT}
s_mul_i32 s61, s60, 20480
s_mul_i32 s62, s{S_CB}, 5
s_lshr_b32 s62, s62, 1
s_lshl_b32 s62, s62, 10
s_add_u32 s61, s61, s62
s_add_u32 s61, s61, {HF}
s_bitcmp1_b32 s{S_CB}, 0
s_cbranch_scc1 L_p3_odd
buffer_store_dwordx4 {vr(HRES, 4)}, v{VL16}, s[{WS}:{WS + 3}], s61 offen sc1
buffer_store_dwordx4 {vr(HRES + 4, 4)}, v{VL16}, s[{WS}:{WS + 3}], s61 offen offset:1024 sc1
buffer_store_dwordx2 {vr(HRES + 8, 2)}, v{VL16}, s[{WS}:{WS + 3}], s61 offen offset:2048 sc1
s_branch L_p3_st
L_p3_odd:
buffer_store_dwordx2 {vr(HRES, 2)}, v{VL16}, s[{WS}:{WS + 3}], s61 offen offset:8 sc1
buffer_store_dwordx4 {vr(HRES + 2, 4)}, v{VL16}, s[{WS}:{WS + 3}], s61 offen offset:1024 sc1
buffer_store_dwordx4 {vr(HRES + 6, 4)}, v{VL16}, s[{WS}:{WS + 3}], s61 offen offset:2048 sc1
L_p3_st:
v_pk_mul_f32 v[12:13], v[{ACC}:{ACC + 1}], v[{ACC}:{ACC + 1}]
v_mov_b32 v14, v{ACC}
v_mov_b32 v15, v{ACC + 1}""")
    for j in range(1, 10):
        r = ACC + 2 * j
        a(f"v_pk_fma_f32 v[12:13], v[{r}:{r + 1}], v[{r}:{r + 1}], v[12:13]")
        a(f"v_pk_add_f32 v[14:15], v[14:15], v[{r}:{r + 1}]")
    a(f"""
v_add_f32 v11, v12, v13
v_add_f32 v10, v14, v15
s_lshl_b32 s60, s60, 10
s_lshl_b32 s61, s{S_CB}, 3
s_add_u32 s60, s60, s61
s_add_u32 s60, s60, {ST}""")
    a.quad_sum(10, 12)
    a.quad_sum(11, 12)
    a(f"""
v_lshlrev_b32 v13, 6, v{VT}
v_lshl_add_u32 v13, v{VQ}, 28, v13
s_lshl_b32 s61, s{S_TT}, 7
s_lshl_b32 s62, s{S_CB}, 2
s_add_u32 s61, s61, s62
s_add_u32 s61, s61, {HFLG}
buffer_store_dwordx2 v[10:11], v13, s[{WS}:{WS + 3}], s60 offen sc1
s_barrier""")
    a.stamp(48)
    a("s_waitcnt vmcnt(0)")
    a.set_flag(10, 12, WS, "s61")
    a.stamp(18)
    ACC, BW, AB, VB, STT = 16, 112, 192, 220, 224
    a(f"""
s_lshl_b32 s60, s{S_RB2}, 2
s_add_u32 s31, s60, s{S_W}
s_lshl_b32 s63, s31, 11
s_add_u32 s63, s63, {ST}
v_lshlrev_b32 v13, 6, v{VT}
v_lshl_add_u32 v13, v{VQ}, 4, v13
s_lshl_b32 s64, s{S_W}, 11
s_add_u32 s64, s64, 12288""")
    for j in range(3):
        a(f"v_add_u32 v{VA + j}, {3 * SLOT * j}, v{VL16}\nv_add_u32 v{VB + j}, s64, v{VA + j}")
    a("s_barrier")
    a.stamp(49)
    a("s_barrier")
    a.stamp(19)
    a.stamp(62, True)
    a(f"""
buffer_load_dwordx4 {vr(STT, 4)}, v13, s[{WS}:{WS + 3}], s63 offen sc1
buffer_load_dwordx4 {vr(STT + 4, 4)}, v13, s[{WS}:{WS + 3}], s63 offen offset:1024 sc1""")

    def acc4(fp, gu, n):
        return 16 + ((fp * 2 + gu) * 2 + n) * 4

    BX = 176
    fr = []
    for s in range(21):
        slot = s % NSLOT
        off = (slot % 3) * SLOT
        for m in range(12):
            breg = BW + 8 * (s % 2) if s < 20 else BX
            f = dict(addr=VA + slot // 3, off=off + m * 1024, abuf=AB,
                     acc=[acc4(m // 2, m % 2, 0), acc4(m // 2, m % 2, 1)], b=[breg, breg + 4], first=(s == 0))
            if m == 0 and s > 0:
                f["pre_read"] = ["s_barrier"]
            if m == 0 and s < 20:
                f["extra_reads"] = [(breg, VB + slot // 3, off), (breg + 4, VB + slot // 3, off + 1024)]
            if m == 0 and s in (0, 4, 8, 12, 16):
                f["pre_mma"] = a.stamp_lines(32 + s // 4)
            fr.append(f)
    fr[35].setdefault("post_mma", []).append("s_waitcnt vmcnt(0)")
    st = []
    for n in range(2):
        r = STT + 4 * n
        st += [f"v_add_f32 v{r}, v{r}, v{r + 2}", f"v_add_f32 v{r + 1}, v{r + 1}, v{r + 3}"]
    for n in range(2):
        for k in range(2):
            r = STT + 4 * n + k
            for width in (32, 16):
                st += [f"v_mov_b32 v12, v{r}", "s_nop 1", f"v_permlane{width}_swap_b32 v{r}, v12", "s_nop 1",
                       f"v_add_f32 v{r}, v{r}, v12"]
        r = STT + 4 * n
        st += [f"v_mul_f32 v{r}, {f32(1 / 640)}, v{r}", f"v_mul_f32 v{r + 1}, {f32(1 / 640)}, v{r + 1}",
               f"v_fma_f32 v{r + 1}, -v{r}, v{r}, v{r + 1}", f"v_max_f32 v{r + 1}, 0, v{r + 1}",
               f"v_add_f32 v{r + 1}, {f32(1e-5)}, v{r + 1}", f"v_rsq_f32 v{r + 1}, v{r + 1}"]
    ext = []
    for n in range(2):
        mean, bb = STT + 4 * n, BX + 4 * n
        ext += [f"v_cvt_pk_bf16_f32 v12, v{mean}, v{mean}", "v_and_b32 v13, 0xffff0000, v12",
                f"v_sub_f32 v13, v13, v{mean}", f"v_xor_b32 v{bb + 1}, 0x80008000, v12",
                "v_cvt_pk_bf16_f32 v13, v13, v13", f"v_mov_b32 v{bb + 2}, 0", f"v_mov_b32 v{bb + 3}, 0",
                f"v_and_b32 v12, 0xffff, v{bb + 1}", "v_lshlrev_b32 v13, 16, v13", f"v_or_b32 v{bb}, v12, v13"]
    for k in range(0, len(st), 2):
        fr[36 + k // 2].setdefault("post_mma", []).extend(st[k:k + 2])
    for k in range(0, len(ext), 2):
        fr[15 * 12 + k // 2].setdefault("post_mma", []).extend(ext[k:k + 2])
    stream(a, fr)
    a.stamp(20)
    C = [224, 228]
    for n in range(2):
        a(f"""
v_rcp_f32 v{C[n] + 2}, v{C[n] + 1}
v_mul_f32 v{C[n]}, {f32(-LOG2E)}, v{C[n] + 1}
v_mul_f32 v{C[n] + 2}, {f32(-LOG2E)}, v{C[n] + 2}""")
    a(f"""
s_mul_i32 s60, s31, 96
s_add_u32 s60, s60, s{S_FB}
s_lshl_b32 s60, s60, 10
s_add_u32 s60, s60, {HHF}
s_add_u32 s61, s60, {48 * 1024}
s_lshl_b32 s62, s31, 8
s_lshr_b32 s63, s{S_FB}, 3
s_lshl_b32 s63, s63, 7
s_add_u32 s62, s62, s63
s_and_b32 s63, s{S_FB}, 7
s_lshl_b32 s63, s63, 2
s_add_u32 s62, s62, s63
s_add_u32 s62, s62, {HHFLG}""")
    TT, OO = 112, 128

    def third_flag(sg, younger):
        a(f"s_waitcnt vmcnt({younger})")
        a.set_flag(10, 11, WS, "s62")
        a("s_add_u32 s62, s62, 16384")

    f0pos = int(mcommon.OPT.get("f0pos", 1))
    k = 0
    for sg in range(3):
        for n in range(2):
            g = [acc4(2 * sg, 0, n), acc4(2 * sg, 0, n) + 2, acc4(2 * sg + 1, 0, n), acc4(2 * sg + 1, 0, n) + 2]
            u = [acc4(2 * sg, 1, n), acc4(2 * sg, 1, n) + 2, acc4(2 * sg + 1, 1, n), acc4(2 * sg + 1, 1, n) + 2]
            o = OO + 4 * (k % 4)
            k += 1
            c1, kk = C[n], C[n] + 2
            for j in range(4):
                a(f"v_pk_mul_f32 v[{g[j]}:{g[j] + 1}], v[{g[j]}:{g[j] + 1}], v[{c1}:{c1 + 1}] op_sel_hi:[1,0]")
            for j in range(4):
                a(f"v_exp_f32 v{TT + 2 * j}, v{g[j]}\nv_exp_f32 v{TT + 2 * j + 1}, v{g[j] + 1}")
            for j in range(4):
                a(f"v_pk_mul_f32 v[{g[j]}:{g[j] + 1}], v[{g[j]}:{g[j] + 1}], v[{u[j]}:{u[j] + 1}]")
            for j in range(4):
                t = TT + 2 * j
                a(f"v_pk_fma_f32 v[{t}:{t + 1}], v[{t}:{t + 1}], v[{kk}:{kk + 1}], v[{kk}:{kk + 1}] op_sel_hi:[1,0,0]")
            if (sg, n) == (2, f0pos):
                third_flag(0, 2 + f0pos)
            for j in range(8):
                a(f"v_rcp_f32 v{TT + j}, v{TT + j}")
            for j in range(4):
                t = TT + 2 * j
                a(f"v_pk_mul_f32 v[{g[j]}:{g[j] + 1}], v[{g[j]}:{g[j] + 1}], v[{t}:{t + 1}]")
            for j in range(4):
                a(f"v_cvt_pk_bf16_f32 v{o + j}, v{g[j]}, v{g[j] + 1}")
            a(f"buffer_store_dwordx4 {vr(o, 4)}, v{VL16}, s[{WS}:{WS + 3}], s{60 + n} offen sc1")
            if sg < 2:
                a(f"s_add_u32 s{60 + n}, s{60 + n}, 16384")
    a.stamp(21)
    a("s_barrier")
    third_flag(1, 3 - f0pos)
    third_flag(2, 0)
    a.stamp(22)
    ACC, AB, BW, W = 16, 40, 92, 9
    a(f"""
s_lshl_b32 s62, s{S_RB}, 9
s_add_u32 s62, s62, {HHFLG}
s_mul_i32 s63, s{S_TT}, {48 * 1024}
s_add_u32 s{S_B}, s63, {HHF}
s_mov_b32 s69, s{S_B}
v_lshrrev_b32 v11, 3, v{LANE}
v_lshlrev_b32 v11, 7, v11
v_and_b32 v12, 7, v{LANE}
v_lshl_add_u32 v11, v12, 2, v11""")
    a.srd(TS, P_OUT, 2048 * 1280)
    a("s_barrier")
    a.stamp(23)
    a.stamp(63, True)
    fr = []
    for s in range(48):
        c, sg = divmod(s, 4)
        slot = (c + N4) % NSLOT
        for m in range(5):
            f = dict(addr=VA + slot // 3, off=(slot % 3) * SLOT + sg * 5120 + m * 1024, abuf=AB,
                     acc=[ACC + 4 * m], b=[BW + 4 * (s % W)], first=(s == 0))
            if m == 0 and sg == 0 and c > 0:
                f["pre_read"] = ["s_barrier"]
            if m == 0 and s in (0, 12, 24, 36):
                f["pre_mma"] = a.stamp_lines(40 + s // 12)
            fr.append(f)
    for x in plan_b(fr, 5, 48, W, BW, S_B, int(mcommon.OPT.get("lead5", 6)), 1, line_touch(11, 254, 69, 48, S_CB)):
        a(x)
    a("s_barrier")
    stream(a, fr, D35, 2)
    a.stamp(24)
    a("s_nop 7")
    add_bf16(a, ACC, HRES, 10)
    PK = BW
    oaux = " " + mcommon.OPT["oaux"].replace("+", " ") if mcommon.OPT.get("oaux") else ""
    for j in range(10):
        a(f"v_cvt_pk_bf16_f32 v{PK + j}, v{ACC + 2 * j}, v{ACC + 2 * j + 1}")
    a(f"""
s_lshl_b32 s60, s{S_RB}, 6
s_lshl_b32 s61, s{S_W}, 4
s_add_u32 s60, s60, s61
v_add_u32 v10, s60, v{VT}
v_mul_u32_u24 v10, 1280, v10
v_lshl_add_u32 v11, v{VQ}, 3, v10
v_and_b32 v12, 1, v{VQ}
v_lshl_add_u32 v10, v12, 5, v10
v_lshrrev_b32 v12, 1, v{VQ}
v_lshl_add_u32 v10, v12, 4, v10
s_mul_i32 s60, s{S_CB}, 160
buffer_store_dwordx2 {vr(PK + 8, 2)}, v11, s[{TS}:{TS + 3}], s60 offen offset:128{oaux}""")
    for j in range(2):
        r = PK + 4 * j
        a(f"""
v_permlane16_swap_b32 v{r}, v{r + 2}
v_permlane16_swap_b32 v{r + 1}, v{r + 3}
buffer_store_dwordx4 {vr(r, 4)}, v10, s[{TS}:{TS + 3}], s60 offen offset:{64 * j}{oaux}""")
    if mcommon.STAMPS:
        a("s_waitcnt vmcnt(0)")
    a.stamp(25)
    a.stamp(26, True)
    a.stamp_out()
    if mcommon.OPT.get("probe"):
        i, j, mult, real = (int(x) for x in mcommon.OPT["probe"].split(","))
        op = "s_memrealtime" if real else "s_memtime"
        gapcode = ""
        if mcommon.OPT.get("gap"):
            gapcode = f"""s_mov_b32 s66, {DIAG + 0x100000}
v_mov_b32 v0, 0
buffer_load_dword v1, v0, s[92:95], s66 offen sc1
s_waitcnt vmcnt(0)
v_readfirstlane_b32 s60, v1
s_nop 3"""
        a(f"""
s_cmp_lg_u32 s2, {mcommon.OPT.get("probewg", 0)}
s_cbranch_scc1 L_end
s_cmp_lg_u32 s{S_W}, 0
s_cbranch_scc1 L_end
v_readlane_b32 s60, v{V_STAMP}, {i}
v_readlane_b32 s61, v{V_STAMP}, {j}
{gapcode}
{op} s[62:63]
s_waitcnt lgkmcnt(0)
s_sub_u32 s60, s61, s60
s_min_u32 s60, s60, 200000
s_mul_i32 s60, s60, {mult}
L_probe:
{op} s[64:65]
s_waitcnt lgkmcnt(0)
s_sub_u32 s64, s64, s62
s_cmp_lt_u32 s64, s60
s_cbranch_scc1 L_probe""")
```

```python
import sys
import mcommon
from mcommon import *

def build(out):
    from m1 import phase1
    from m2 import phase2, young_prep, young_tail
    from m345 import loader, compute345
    header = open("cdna_kernels/" + NAME + ".s.ref").read().split("; Override launch geometry")[0]
    k = NAME + "_kernel"
    a, tail = Asm(k), Asm(k)
    tail.uid = 100000
    phase1(a, tail, young_prep, young_tail)
    phase2(a, tail)
    a(f"s_cmp_ge_u32 s{S_W}, 4\ns_cbranch_scc1 L_loader")
    compute345(a)
    a("L_end:\ns_endpgm")
    loader(a)
    pre = ""
    if mcommon.OPT.get("gap"):
        txt = header + f"; @launch kernel=pre_kernel grid=(1,1,1) block=(64,1,1) lds=0\n; @launch kernel={k} grid=(256,1,1) block=(512,1,1) lds=163840\n"
        pre = f""".text
.globl pre_kernel
.p2align 8
.type pre_kernel,@function
pre_kernel:
    s_load_dwordx2 s[4:5], s[0:1], 88
    s_waitcnt lgkmcnt(0)
    s_mov_b32 s8, s4
    s_mov_b32 s9, s5
    s_mov_b32 s10, 0x4000000
    s_mov_b32 s11, {SRD3}
    s_mov_b32 s12, {DIAG + 0x100000}
    v_mov_b32 v0, 0
    s_memrealtime s[6:7]
    s_waitcnt lgkmcnt(0)
    v_mov_b32 v1, s6
    buffer_store_dword v1, v0, s[8:11], s12 offen
    s_endpgm
.section .rodata,"a"
.p2align 6
.amdhsa_kernel pre_kernel
  .amdhsa_next_free_vgpr 8
  .amdhsa_next_free_sgpr 32
  .amdhsa_accum_offset 8
  .amdhsa_group_segment_fixed_size 0
  .amdhsa_kernarg_size 96
  .amdhsa_user_sgpr_count 2
  .amdhsa_user_sgpr_kernarg_segment_ptr 1
  .amdhsa_system_sgpr_workgroup_id_x 1
.end_amdhsa_kernel
"""
    else:
        txt = header + "; @launch grid=(256,1,1) block=(512,1,1) lds=163840\n"
    txt += f'.amdgcn_target "amdgcn-amd-amdhsa--gfx950"\n.text\n.globl {k}\n.p2align 8\n.type {k},@function\n{k}:\n'
    txt += a.text() + tail.text() + pre
    txt += f""".section .rodata,"a"
.p2align 6
.amdhsa_kernel {k}
  .amdhsa_next_free_vgpr 256
  .amdhsa_next_free_sgpr 102
  .amdhsa_accum_offset 256
  .amdhsa_group_segment_fixed_size 0
  .amdhsa_kernarg_size 96
  .amdhsa_user_sgpr_count 2
  .amdhsa_user_sgpr_kernarg_segment_ptr 1
  .amdhsa_system_sgpr_workgroup_id_x 1
  .amdhsa_float_denorm_mode_32 3
.end_amdhsa_kernel
"""
    open(out, "w").write(txt)

if __name__ == "__main__":
    if "--diag" in sys.argv:
        sys.argv.remove("--diag"); mcommon.STAMPS = True
    while "--opt" in sys.argv:
        i = sys.argv.index("--opt"); kk, vv = sys.argv[i + 1].split("="); mcommon.OPT[kk] = vv; del sys.argv[i:i + 2]
    build(sys.argv[1])
```

```python
from mcommon import *
import mcommon

LDS_WR = 81920
LDS_KVW = 131072
LDS_Q = LDS_WR + 2 * 12288
LDS_PS = 49152
LDS_MISC = 155648
LDS_PART = LDS_KVW + 26368
LDS_SYNC = 163600
LDS_READY = 163584
QSCALE = 20 ** -0.5 * LOG2E
SAFE_V = 2.0 ** 30
CA_INIT = (104, 136)


def phase1(a, tail, young_prep, young_tail):
    XR, T8, SUB = 16, 62, 63
    a(f"""
s_cmp_ge_u32 s2, 256
s_cbranch_scc1 L_end
s_load_dwordx8 s[36:43], s[0:1], 0
s_load_dwordx4 s[56:59], s[0:1], 80
s_load_dwordx2 s[44:45], s[0:1], 32
s_load_dwordx8 s[48:55], s[0:1], 48
v_lshrrev_b32 v1, 6, v0
v_and_b32 v{LANE}, 63, v0
v_readfirstlane_b32 s{S_W}, v1
s_and_b32 s60, s2, 7
s_lshr_b32 s61, s2, 3
s_lshl_b32 s{S_RB}, s60, 2
s_and_b32 s62, s61, 3
s_add_u32 s{S_RB}, s{S_RB}, s62
s_lshr_b32 s{S_CB}, s61, 2
s_lshl_b32 s{S_IDX}, s60, 5
s_add_u32 s{S_IDX}, s{S_IDX}, s61
s_lshr_b32 s{S_HALF}, s{S_W}, 2
s_and_b32 s{S_P}, s{S_W}, 3
s_lshl_b32 s{S_HEAD}, s{S_CB}, 2
s_add_u32 s{S_HEAD}, s{S_HEAD}, s{S_P}
s_and_b32 s62, s60, 1
s_lshl_b32 s62, s62, 3
s_and_b32 s63, s61, 7
s_add_u32 s{S_RB2}, s62, s63
s_lshr_b32 s62, s60, 1
s_lshl_b32 s62, s62, 2
s_lshr_b32 s63, s61, 3
s_add_u32 s{S_FB}, s62, s63
v_lshlrev_b32 v{VL16}, 4, v{LANE}
s_mul_i32 s32, s{S_CB}, 160
v_mov_b32 v4, {LDS_READY}
v_mov_b32 v6, 0
v_mov_b32 v7, 0
v_mov_b32 v8, 0
v_mov_b32 v9, 0
ds_write_b128 v4, v[6:9]
ds_write_b128 v4, v[6:9] offset:16
ds_write_b128 v4, v[6:9] offset:32
s_and_b32 s60, s{S_CB}, 6
s_add_u32 s60, s60, s{S_W}
s_and_b32 s31, s60, 7
s_lshl_b32 s60, s{S_RB}, 6
s_lshl_b32 s61, s31, 3
s_add_u32 s60, s60, s61
v_lshrrev_b32 v{T8}, 3, v{LANE}
v_and_b32 v{SUB}, 7, v{LANE}
v_add_u32 v5, s60, v{T8}
v_mul_u32_u24 v5, 1280, v5
v_lshl_add_u32 v5, v{SUB}, 4, v5
s_waitcnt lgkmcnt(0)
s_barrier""")
    a.stamp(0)
    a.stamp(1, True)
    a.srd(XS, P_X, 2048 * 1280)
    a.srd(WS, P_WS, WS_USED)
    a(f"""
s_and_b32 s60, s{S_IDX}, 31
s_lshl_b32 s60, s60, 3
s_add_u32 s35, s60, s{S_W}
s_cmp_lg_u32 s35, {31 * 8 + 3}
s_cbranch_scc1 L_p1_noclear
s_lshr_b32 s61, s{S_IDX}, 5
s_mul_i32 s60, s61, {FLG_BYTES // 8}
s_add_u32 s60, s60, {FLG}
s_add_u32 s62, s60, 4096
v_mov_b32 v180, 0
v_mov_b32 v181, 0
v_mov_b32 v182, 0
v_mov_b32 v183, 0""")
    for i in range(6):
        a(f"buffer_store_dwordx4 v[180:183], v{VL16}, s[{WS}:{WS + 3}], s{60 if i < 4 else 62} offen offset:{1024 * (i % 4)} sc1")
    a("L_p1_noclear:")
    xaux = " nt" if mcommon.OPT.get("xnt", "1") == "1" else ""
    for i in range(10):
        a(f"buffer_load_dwordx4 {vr(XR + 4 * i, 4)}, v5, s[{XS}:{XS + 3}], 0 offen offset:{128 * i}{xaux}")
    a(f"""
s_bitcmp1_b32 s{S_CB}, 0
s_cselect_b32 s{P_WK}, s{P_WV}, s{P_WK}
s_cselect_b32 s{P_WK + 1}, s{P_WV + 1}, s{P_WK + 1}""")
    a.srd(KS, P_WK, 640 * 40)
    a(f"""
s_mul_i32 s66, s{S_P}, 7168
s_add_u32 s65, s66, {LDS_KVW}
s_cmp_ge_u32 s{S_W}, 4
s_cbranch_scc1 L_p1_nokvw""")
    for i in range(7):
        if i == 4:
            a("s_add_u32 s65, s65, 4096\ns_add_u32 s66, s66, 4096")
        a.dma(VL16, KS, "s66", "s65" if i % 4 == 0 else None, imm=1024 * (i % 4))
    a("L_p1_nokvw:")
    a.srd(TS, P_WQ, 640 * 1280)
    a.srd(DS, P_DBG, 256)

    def w_voffs(sbase):
        for i in range(3):
            a(f"""
v_add_u32 v6, s{sbase}, v{LANE}
v_add_u32 v6, {64 * i}, v6
v_mul_u32_u24 v7, 43691, v6
v_lshrrev_b32 v7, 19, v7
v_mul_u32_u24 v8, 12, v7
v_sub_u32 v8, v6, v8
v_mul_u32_u24 v7, 1280, v7
v_lshl_add_u32 v{9 + i}, v8, 4, v7""")

    a(f"s_mul_i32 s61, s{S_P}, 192")
    w_voffs(61)
    SA, SB, QA, QB, RS, NB = 56, 57, 58, 59, 60, 61
    a(f"""
v_mov_b32 v{SA}, 0
v_mov_b32 v{SB}, 0
v_mov_b32 v{QA}, 0
v_mov_b32 v{QB}, 0
s_mov_b32 s67, 0x3f803f80
s_lshr_b32 s60, s31, 2
s_mul_i32 s60, s60, 40960
s_and_b32 s61, s31, 3
s_lshl_b32 s61, s61, 7
s_add_u32 s60, s60, s61
v_xor_b32 v6, v{T8}, v{SUB}
v_lshlrev_b32 v6, 4, v6
v_lshlrev_b32 v7, 9, v{SUB}
v_add3_u32 v13, v6, v7, s60""")
    WREG = 100
    seq = []
    npre = int(mcommon.OPT.get("wpre", 0))
    nmid = int(mcommon.OPT.get("wmid", 0))
    late = int(mcommon.OPT.get("wlate", 1))

    def wload(c):
        a(f"s_add_u32 s69, s32, {c * 64 * 1280}")
        for i in range(3):
            a(f"buffer_load_dwordx4 {vr(WREG + 4 * (3 * (c - 4) + i), 4)}, v{9 + i}, s[{TS}:{TS + 3}], s69 offen")
            seq.append(("w", c))

    for cls, younger in enumerate((7, 12 + 3 * npre)):
        if cls == 0:
            a(f"s_cmp_ge_u32 s{S_W}, 4\ns_cbranch_scc1 L_p1_stat_y")
        else:
            a(f"s_mul_i32 s63, s{S_P}, 3072\ns_add_u32 s63, s63, {LDS_WR}")
            for c in range(4):
                a(f"s_add_u32 s64, s32, {c * 64 * 1280}")
                for i in range(3):
                    a(f"s_add_u32 m0, s63, {c * 12288 + i * 1024}\ns_nop 0")
                    a(f"buffer_load_dwordx4 v{9 + i}, s[{TS}:{TS + 3}], s64 offen lds")
            for c in range(4, 4 + npre):
                wload(c)
        for i in range(10):
            a(f"s_waitcnt vmcnt({9 + younger - i})")
            if i == 0:
                a.stamp(2)
            for j in range(4):
                r = XR + 4 * i + j
                s, q = (SA, QA) if j % 2 == 0 else (SB, QB)
                a(f"v_dot2_f32_bf16 v{s}, v{r}, s67, v{s}")
                a(f"v_dot2_f32_bf16 v{q}, v{r}, v{r}, v{q}")
        if cls == 0:
            a(f"v_lshlrev_b32 v7, 2, v{LANE}\nbuffer_load_dword v100, v7, s[{DS}:{DS + 3}], 0 offen sc1")
            a("s_branch L_p1_stat_done\nL_p1_stat_y:")
        else:
            for c in range(4 + npre, 4 + npre + nmid):
                wload(c)
    a("L_p1_stat_done:")
    a.stamp(3)
    a(f"""
s_cmp_lg_u32 s35, {31 * 8 + 3}
s_cbranch_scc1 L_p1_noreport
s_lshr_b32 s61, s{S_IDX}, 5
s_lshl_b32 s61, s61, 2""")
    a.set_flag(180, 181, DS, "s61")
    a(f"""
L_p1_noreport:
s_nop 2
v_add_f32 v{SA}, v{SA}, v{SB}
v_add_f32 v{QA}, v{QA}, v{QB}""")
    for m in ("quad_perm:[1,0,3,2]", "quad_perm:[2,3,0,1]", "row_half_mirror"):
        a(f"""
s_nop 1
v_add_f32_dpp v{SA}, v{SA}, v{SA} {m} row_mask:0xf bank_mask:0xf
v_add_f32_dpp v{QA}, v{QA}, v{QA} {m} row_mask:0xf bank_mask:0xf""")
    a(f"""
s_nop 0
v_mul_f32 v{SA}, {f32(1 / 640)}, v{SA}
v_mul_f32 v{QA}, {f32(1 / 640)}, v{QA}
v_fma_f32 v{QA}, -v{SA}, v{SA}, v{QA}
v_max_f32 v{QA}, 0, v{QA}
v_add_f32 v{QA}, {f32(1e-5)}, v{QA}
v_rsq_f32 v{RS}, v{QA}
s_nop 0
v_mul_f32 v{NB}, v{SA}, v{RS}
v_sub_f32 v{NB}, 0, v{NB}""")
    TN = [64, 72]

    def unpack(i):
        for j in range(4):
            r, t = XR + 4 * i + j, TN[i % 2] + 2 * j
            a(f"v_lshlrev_b32 v{t}, 16, v{r}\nv_and_b32 v{t + 1}, 0xffff0000, v{r}")

    unpack(0)
    for i in range(10):
        for j in range(4):
            t = TN[i % 2] + 2 * j
            a(f"v_pk_fma_f32 v[{t}:{t + 1}], v[{t}:{t + 1}], v[{RS}:{RS + 1}], v[{RS}:{RS + 1}] op_sel:[0,0,1] op_sel_hi:[1,0,1]")
        if i < 9:
            unpack(i + 1)
        for j in range(4):
            t = TN[i % 2] + 2 * j
            a(f"v_cvt_pk_bf16_f32 v{XR + 4 * i + j}, v{t}, v{t + 1}")
        a(f"ds_write_b128 v13, {vr(XR + 4 * i, 4)} offset:{4096 * i}")
    a.stamp(4)
    BA, WA, KA, H, TOK = 96, 8, 14, 176, 177
    ACC0, ACC1, BUF = 16, 32, 48
    S_WN, S_WM = 33, 34
    a(f"""
s_and_b32 s{S_WN}, s{S_W}, 1
s_bfe_u32 s{S_WM}, s{S_W}, 0x10001
v_lshrrev_b32 v{H}, 5, v{LANE}
v_and_b32 v{TOK}, 31, v{LANE}
s_mul_i32 s60, s{S_WN}, 40960
v_and_b32 v12, 24, v{TOK}
v_and_b32 v13, 7, v{TOK}
v_lshlrev_b32 v86, 9, v{H}""")
    for q in range(4):
        a(f"""
v_or_b32 v15, {2 * q}, v{H}
v_xor_b32 v15, v15, v13
v_or_b32 v15, v15, v12
v_lshl_add_u32 v15, v15, 4, v86
v_add_u32 v15, s60, v15
v_add_u32 v{BA + q}, {1024 * q}, v15""")
    a(f"""
v_bfe_u32 v12, v{LANE}, 2, 2
v_lshl_add_u32 v12, v{H}, 3, v12
v_bfe_u32 v13, v{LANE}, 4, 1
v_lshlrev_b32 v13, 5, v13
v_and_b32 v15, 3, v{LANE}
v_lshl_add_u32 v13, v15, 3, v13
v_mul_u32_u24 v15, 192, v12
v_add_u32 v15, v15, v13
s_lshl_b32 s60, s{S_WM}, 7
s_add_u32 s60, s60, {LDS_WR}
v_add_u32 v{WA}, s60, v15
v_mul_u32_u24 v15, 40, v12
v_add_u32 v15, v15, v13
v_add_u32 v{KA}, {LDS_KVW}, v15""")
    def ring():
        sq = list(seq)

        def wait_for(tag):
            last = max(i for i, x in enumerate(sq) if x == tag)
            a(f"s_waitcnt vmcnt({len(sq) - 1 - last})")

        def more(c):
            a(f"s_add_u32 s69, s32, {c * 64 * 1280}")
            for i in range(3):
                a(f"buffer_load_dwordx4 {vr(WREG + 4 * (3 * (c - 4) + i), 4)}, v{9 + i}, s[{TS}:{TS + 3}], s69 offen")
                sq.append(("w", c))

        def cleared():
            ok = a.fresh("clr")
            wait_for("clr")
            a(f"""
v_cmp_gt_u32 s[60:61], 8, v{LANE}
v_cmp_ne_u32 vcc, 1, v8
s_nop 4
s_and_b64 s[60:61], vcc, s[60:61]
s_cbranch_scc0 {ok}""")
            a.poll(7, 8, DS, "0", 8)
            a(f"{ok}:")

        a(f"buffer_load_dword v8, v7, s[{DS}:{DS + 3}], 0 offen sc1")
        sq.append("clr")
        if 4 + npre <= 6:
            more(6)
        for k in range(2, 10):
            a("s_barrier")
            c = k + 2 - late
            if 4 <= c < 10:
                wait_for(("w", c))
                for i in range(3):
                    a(f"ds_write_b128 v93, {vr(WREG + 4 * (3 * (c - 4) + i), 4)} offset:{(c % 4) * 12288 + i * 1024}")
            if 4 + npre <= k + 5 < 10:
                more(k + 5)
            if k == 4:
                cleared()
            if k in (5, 6, 9):
                young_prep(a, {5: 0, 6: 1, 9: 2}[k])
            if k == 6:
                young_prep(a, 10)
            if k == 8:
                young_prep(a, 11)
            if 4 <= c < 10:
                a("s_waitcnt lgkmcnt(0)")
        a("s_branch L_p1_ring_done")

    KACC, AB, BB, VB0, VA0, Q4, T16 = 16, 24, 64, 88, 90, 91, 92

    def lds_wait(off, regs, tag):
        a(f"""
v_mov_b32 v12, {LDS_SYNC}
s_mov_b32 s60, 0
L_lw_{tag}:
ds_read_b128 v[84:87], v12 offset:{off}
s_add_u32 s60, s60, 1
s_waitcnt lgkmcnt(0)""")
        a(f"v_and_b32 v84, v{regs[0]}, v{regs[1]}")
        for r in regs[2:]:
            a(f"v_and_b32 v84, v84, v{r}")
        a(f"""
s_cmp_ge_u32 s60, {SPIN_LIMIT * 16}
s_cbranch_scc1 L_lw_done_{tag}
v_readfirstlane_b32 s61, v84
s_nop 3
s_cmp_eq_u32 s61, 0
s_cbranch_scc1 L_lw_{tag}
L_lw_done_{tag}:""")

    def lds_set(off):
        a(f"""
s_lshl_b32 s60, s{S_P}, 2
s_add_u32 s60, s60, {LDS_SYNC + off}
v_mov_b32 v84, s60
v_mov_b32 v85, 1
ds_write_b32 v84, v85""")

    def project():
        a(f"""
v_lshrrev_b32 v{Q4}, 4, v{LANE}
v_and_b32 v{T16}, 15, v{LANE}
s_lshr_b32 s63, s{S_CB}, 1
s_and_b32 s60, s63, 1
s_lshr_b32 s61, s63, 1
s_mul_i32 s62, s61, 40960
s_lshl_b32 s64, s60, 8
s_add_u32 s62, s62, s64
s_mul_i32 s64, s{S_P}, 10240
s_add_u32 s62, s62, s64
s_and_b32 s64, s{S_P}, 1
s_lshl_b32 s64, s64, 2
v_and_b32 v12, 8, v{T16}
v_and_b32 v13, 7, v{T16}
v_lshlrev_b32 v15, 9, v{Q4}
v_add_u32 v15, s62, v15
v_xor_b32 v13, v13, v{Q4}
v_or_b32 v14, v12, v13
v_xor_b32 v14, s64, v14
v_lshl_add_u32 v{VB0}, v14, 4, v15
v_xor_b32 v14, 4, v14
v_lshl_add_u32 v{VB0 + 1}, v14, 4, v15
v_bfe_u32 v12, v{LANE}, 2, 2
v_lshl_add_u32 v12, v{Q4}, 3, v12
v_mul_u32_u24 v12, 40, v12
v_and_b32 v13, 3, v{LANE}
v_lshl_add_u32 v12, v13, 3, v12
s_mul_i32 s64, s{S_P}, 6400
s_add_u32 s64, s64, {LDS_KVW}
v_add_u32 v{VA0}, s64, v12""")

        def rd(S):
            b = AB + 8 * S
            a(f"ds_read_b128 {vr(BB + 4 * S, 4)}, v{VB0 + S % 2} offset:{2048 * S}")
            for mt in range(2):
                a(f"ds_read_b64_tr_b16 {vr(b + 4 * mt, 2)}, v{VA0} offset:{1280 * S + 32 * mt}")
                a(f"ds_read_b64_tr_b16 {vr(b + 4 * mt + 2, 2)}, v{VA0} offset:{1280 * S + 32 * mt + 160}")
        for S in range(3):
            rd(S)
        a(f"""
s_lshl_b32 s64, s{S_RB}, 1
s_add_u32 s64, s64, s61
s_mul_i32 s65, s64, 3072
s_add_u32 s65, s65, {KV}
s_lshl_b32 s64, s{S_RB}, 2
s_add_u32 s64, s64, s63
s_lshl_b32 s64, s64, 2
s_add_u32 s64, s64, {KN}
s_mov_b32 s35, s60
s_lshl_b32 s61, s{S_P}, 11
s_add_u32 s61, s61, {LDS_PART - 2048}
v_add_u32 v12, s61, v{VL16}
s_bitcmp1_b32 s{S_CB}, 0
s_cbranch_scc1 L_kv_v""")
        for kind in "kv":
            for S in range(5):
                a(f"s_waitcnt lgkmcnt({5 * min(2, 4 - S)})")
                b, bb = AB + 8 * S, BB + 4 * S
                for mt in range(2):
                    c = "0" if S == 0 else KACC + 4 * mt
                    a(mfma16(KACC + 4 * mt, b + 4 * mt, bb, c) if kind == "k" else mfma16(KACC + 4 * mt, bb, b + 4 * mt, c))
                if S + 3 < 5:
                    rd(S + 3)
            if kind == "k":
                a("s_branch L_kv_part\nL_kv_v:")
        a(f"""
L_kv_part:
s_cmp_eq_u32 s{S_P}, 0
s_nop 7
s_cbranch_scc1 L_kv_kept
ds_write_b128 v12, {vr(KACC, 4)}
ds_write_b128 v12, {vr(KACC + 4, 4)} offset:1024
s_waitcnt lgkmcnt(0)""")
        lds_set(16)
        if mcommon.OPT.get("wtouch", "1") == "1":
            a(f"""
s_and_b32 s60, s{S_RB}, 3
s_mul_i32 s60, s60, 3
s_add_u32 s60, s60, s{S_P}
s_sub_u32 s60, s60, 1
s_mul_i32 s60, s60, {32 * 1280}
s_add_u32 s60, s60, {256 * 1280}
s_add_u32 s60, s60, s32
v_lshrrev_b32 v12, 1, v{LANE}
v_mul_u32_u24 v12, 1280, v12
v_and_b32 v13, 1, v{LANE}
v_mul_u32_u24 v13, 156, v13
v_add_u32 v12, v12, v13
buffer_load_dword v200, v12, s[{TS}:{TS + 3}], s60 offen""")
        a("s_branch L_kv_done\nL_kv_kept:")

    def gather():
        a(f"v_add_u32 v12, {LDS_PART}, v{VL16}")
        for q in range(6):
            a(f"ds_read_b128 {vr(32 + 4 * q, 4)}, v12 offset:{1024 * q}")
        for q in range(3):
            a(f"s_waitcnt lgkmcnt({4 - 2 * q})")
            for j in range(8):
                a(f"v_add_f32 v{KACC + j}, v{KACC + j}, v{32 + 8 * q + j}")

    def finish(kind):
        a(f"""
v_and_b32 v12, 1, v{Q4}
v_lshlrev_b32 v12, 9, v12
v_lshrrev_b32 v13, 1, v{Q4}
v_lshl_add_u32 v12, v13, 3, v12
v_lshl_add_u32 v12, v{T16}, 4, v12
s_mov_b32 s60, s35""")
        for j in range(4):
            a(f"v_cvt_pk_bf16_f32 v{24 + j}, v{KACC + 2 * j}, v{KACC + 2 * j + 1}")
        if kind == "k":
            a(f"""
s_lshl_b32 s61, s60, 8
s_add_u32 s61, s61, s65
buffer_store_dwordx2 v[24:25], v12, s[{WS}:{WS + 3}], s61 offen sc1
v_lshlrev_b32 v13, 3, v{T16}
v_lshl_add_u32 v13, v{Q4}, 28, v13
s_lshl_b32 s61, s60, 9
s_add_u32 s61, s61, s65
v_cmp_eq_u32 s[66:67], 0, v{Q4}
v_mul_f32 v28, v{KACC + 4}, v{KACC + 4}
buffer_store_dwordx2 v[26:27], v13, s[{WS}:{WS + 3}], s61 offen offset:{1024 + 336} sc1""")
            for j in range(5, 8):
                a(f"v_fmac_f32 v28, v{KACC + j}, v{KACC + j}")
            a("v_cndmask_b32 v28, 0, v28, s[66:67]")
            for j in range(4):
                a(f"v_fmac_f32 v28, v{KACC + j}, v{KACC + j}")
            a.quad_sum(28, 29)
        else:
            a(f"""
s_lshl_b32 s61, s60, 10
s_add_u32 s61, s61, s65
buffer_store_dwordx2 v[24:25], v12, s[{WS}:{WS + 3}], s61 offen offset:1024 sc1
v_cmp_gt_u32 s[66:67], 4, v{T16}
v_cmp_eq_u32 s[68:69], 4, v{T16}
v_mov_b32 v29, 0x3f803f80
s_cmp_eq_u32 s60, 0
s_cselect_b32 s62, 0x001f001f, -1
v_cndmask_b32 v29, 0, v29, s[68:69]
v_cndmask_b32 v26, v29, v26, s[66:67]
v_cndmask_b32 v27, v29, v27, s[66:67]
v_max3_f32 v28, |v{KACC + 4}|, |v{KACC + 5}|, |v{KACC + 6}|
v_max_f32 v28, |v{KACC + 7}|, v28
s_mov_b32 exec_lo, s62
s_mov_b32 exec_hi, s62
buffer_store_dwordx2 v[26:27], v12, s[{WS}:{WS + 3}], s61 offen offset:1280 sc1
s_mov_b64 exec, -1
v_cndmask_b32 v28, 0, v28, s[66:67]
v_max3_f32 v28, |v{KACC}|, |v{KACC + 1}|, v28
v_max3_f32 v28, |v{KACC + 2}|, |v{KACC + 3}|, v28""")
        a.wave_max(28)
        a(f"""
v_mov_b32 v12, 0
s_mov_b32 exec_lo, 0
s_mov_b32 exec_hi, 0x80000000
buffer_store_dword v28, v12, s[{WS}:{WS + 3}], s64 offen{'' if kind == 'k' else ' offset:512'} sc1
s_mov_b64 exec, -1""")

    a(f"""
s_cmp_lt_u32 s{S_W}, 4
s_cbranch_scc1 L_p1_compute""")
    npre += nmid
    for c in range(4 + npre, 6):
        wload(c)
    a(f"""
s_mul_i32 s60, s{S_P}, 3072
s_add_u32 s60, s60, {LDS_WR}
v_add_u32 v93, s60, v{VL16}
v_lshlrev_b32 v7, 2, v{LANE}
s_waitcnt vmcnt({len(seq)}) lgkmcnt(0)""")
    a.stamp(56)
    a(f"""
s_barrier""")
    ring()
    a("L_p1_ring_done:")
    young_tail(a)
    a(f"""
L_p1_compute:
s_waitcnt vmcnt(1) lgkmcnt(0)""")
    a.stamp(27)
    lds_set(0)
    lds_wait(0, (84, 85, 86, 87), "a")
    a.stamp(28)
    project()
    a.stamp(29)
    lds_wait(16, (85, 86, 87), "b")
    gather()
    a(f"s_bitcmp1_b32 s{S_CB}, 0\ns_cbranch_scc1 L_kv_fin_v")
    finish("k")
    a("s_branch L_kv_pub\nL_kv_fin_v:")
    finish("v")
    a(f"""
L_kv_pub:""")
    a.stamp(7)
    a("L_kv_done:")
    for r in range(*CA_INIT):
        a(f"v_mov_b32 v{r}, 0")
    a(f"s_min_u32 s35, s{S_W}, 1\ns_waitcnt lgkmcnt(0)\ns_barrier")
    a.stamp(5)
    a(f"""
s_cmp_eq_u32 s{S_WM}, 0
s_cbranch_scc0 L_p1_mq""")

    def reads(s, kind):
        b = BUF + 12 * (s % 4)
        c, sg = divmod(s, 4)
        wo = (c % 4) * 12288 + sg * 3072
        out = [f"ds_read_b128 {vr(b + 8, 4)}, v{BA + s % 4} offset:{c * 4096}",
               f"ds_read_b64_tr_b16 {vr(b, 2)}, v{WA} offset:{wo}",
               f"ds_read_b64_tr_b16 {vr(b + 2, 2)}, v{WA} offset:{wo + 768}"]
        if kind == "m01":
            out += [f"ds_read_b64_tr_b16 {vr(b + 4, 2)}, v{WA} offset:{wo + 64}",
                    f"ds_read_b64_tr_b16 {vr(b + 6, 2)}, v{WA} offset:{wo + 64 + 768}"]
        return out

    checks = list(range(int(mcommon.OPT.get("kv0", 2)), int(mcommon.OPT.get("kv1", 18)) + 1, 2))

    def mainloop(kind):
        n = len(reads(0, kind))
        for x in reads(0, kind) + reads(1, kind):
            a(x)
        for s in range(40):
            b = BUF + 12 * (s % 4)
            a(f"s_waitcnt lgkmcnt({n if s < 39 else 0})")
            r = reads(s + 2, kind) if s + 2 < 40 else []
            if r and (s + 2) % 4 == 0 and s > 2:
                r = ["s_barrier"] + r
            c0, c1 = ("0", "0") if s == 0 else (ACC0, ACC1)
            if kind == "m01":
                a(mfma(ACC1, b + 4, b + 8, c1))
                for x in r[:len(r) - 2]:
                    a(x)
                r = r[len(r) - 2:]
            a(mfma(ACC0, b, b + 8, c0))
            for x in r:
                a(x)
            if kind == "m01" and s in checks:
                if s != checks[-1]:
                    a(f"s_getreg_b32 s60, hwreg(HW_REG_IB_STS, 0, 4)\ns_or_b32 s60, s60, s35\ns_cmp_eq_u32 s60, 0")
                else:
                    a("s_cmp_eq_u32 s35, 0")
                a(f"s_cbranch_scc1 L_kv_publish{s}\nL_kv_published{s}:")
        a.stamp(6)

    def qoff(cg):
        return (cg // 5) * 3072 + [0, 512, 8, 520, 1024][cg % 5]

    def qwrite(tiles):
        a(f"""
s_mul_i32 s60, s{S_WN}, 1536
v_lshl_add_u32 v12, v{TOK}, 4, s60
v_xor_b32 v13, 1, v{H}
s_mov_b32 s62, {f32(QSCALE)}
s_nop 7""")
        k = 0
        for acc, m, groups in tiles:
            for g in range(groups):
                lo, up = qoff(8 * m + 2 * g), qoff(8 * m + 2 * g + 1)
                base = min(lo, up)
                sel = H if up > lo else 13
                r = acc + 4 * g
                t = 4 + 2 * (k % 2)
                k += 1
                a(f"""
s_mov_b32 s61, {abs(up - lo)}
v_mul_f32 v{r}, s62, v{r}
v_mul_f32 v{r + 1}, s62, v{r + 1}
v_mul_f32 v{r + 2}, s62, v{r + 2}
v_mul_f32 v{r + 3}, s62, v{r + 3}
v_mad_u32_u24 v14, v{sel}, s61, v12
v_add_u32 v14, {LDS_Q + base}, v14
v_cvt_pk_bf16_f32 v{t}, v{r}, v{r + 1}
v_cvt_pk_bf16_f32 v{t + 1}, v{r + 2}, v{r + 3}
ds_write_b64 v14, {vr(t, 2)}""")

    mainloop("m01")
    qwrite([(ACC1, 1, 4), (ACC0, 0, 4)])
    a("s_branch L_p1_q_done\nL_p1_mq:")
    mainloop("q")
    qwrite([(ACC0, 2, 2)])
    a("L_p1_q_done:")
    for ck in checks:
        tail(f"""
L_kv_publish{ck}:
v_cmp_gt_u32 s[60:61], 8, v{LANE}
s_waitcnt vmcnt(0)
v_cmp_ne_u32 vcc, 1, v100
s_mov_b32 s35, 1
s_nop 3
s_and_b64 s[60:61], vcc, s[60:61]
s_cbranch_scc0 L_kv_clr{ck}""")
        tail.poll(7, 100, DS, "0", 8)
        tail(f"""
L_kv_clr{ck}:
s_lshl_b32 s61, s{S_RB}, 7
s_add_u32 s61, s61, {KVFLG}
v_mov_b32 v12, 0
v_mov_b32 v13, 1
s_mov_b64 exec, 1
buffer_atomic_add v13, v12, s[{WS}:{WS + 3}], s61 offen sc1
s_mov_b64 exec, -1""")
        tail.stamp(31)
        tail(f"s_branch L_kv_published{ck}")
```

```python
from mcommon import *
import mcommon
from m2 import LDS_WO, RES

SLOT, NSLOT = 20480, 8
N4, NITEM = 21, 33
HRES = 240
DIST = 6


def loader(a):
    S_S13, S_S2, S_H = 33, 34, 46
    seq = []

    def dmas(tag, n, src, off, lds, pace=None, part=None):
        a(f"""
s_mul_i32 s60, s{S_P}, {n * 1024}
s_add_u32 s61, s60, {off}
s_add_u32 s61, s61, {src}
s_add_u32 s60, s60, {lds}""")
        lo, hi = part or (0, n)
        for i in range(lo, hi):
            if i == 4:
                a("s_add_u32 s60, s60, 4096\ns_add_u32 s61, s61, 4096")
            if pace is not None:
                a(f"s_waitcnt vmcnt({pace})")
            a.dma(VL16, WS, "s61", "s60" if i % 4 == 0 or i == lo else None, imm=1024 * (i % 4), aux="sc1")
            seq.append(tag)

    def weights(g, pace=None, part=None):
        if g < N4:
            dmas(g, 3, f"s{S_S13}", g * 12288, (g % NSLOT) * SLOT, pace)
        else:
            dmas(g, 5, f"s{S_S2}", (g - N4) * 20480, (g % NSLOT) * SLOT, pace, part)

    def tokens(g):
        if g < 20:
            a(f"s_lshl_b32 s60, s{S_P}, 11\ns_add_u32 s60, s60, {(g % NSLOT) * SLOT + 12288}\ns_add_u32 s61, s{S_H}, {g * 1024}")
            a.dma(VL16, WS, "s61", "s60", aux="sc1")
            a("s_add_u32 s60, s60, 1024\ns_add_u32 s61, s61, 20480")
            a.dma(VL16, WS, "s61", "s60", aux="sc1")
            seq.extend([g, g])

    def wait(c):
        last = max(i for i, x in enumerate(seq) if x == c)
        a(f"s_waitcnt vmcnt({len(seq) - 1 - last})")

    def poll_flags(tag, base, n):
        a(f"s_cmp_lg_u32 s{S_P}, 0\ns_cbranch_scc1 L_seen_{tag}\n{base}")
        if mcommon.OPT.get("predrain", "1") == "1":
            a("s_waitcnt vmcnt(0)")
        a.poll(11, 10, WS, "s62", n)
        a(f"L_seen_{tag}:\ns_barrier")

    a(f"""
L_loader:
v_lshrrev_b32 v11, 3, v{LANE}
v_lshlrev_b32 v11, 7, v11
v_and_b32 v12, 7, v{LANE}
v_lshl_add_u32 v11, v12, 2, v11
s_mul_i32 s{S_S13}, s{S_FB}, {21 * 12288}
s_add_u32 s{S_S13}, s{S_S13}, {W13F}
s_mul_i32 s{S_S2}, s{S_CB}, 245760
s_add_u32 s{S_S2}, s{S_S2}, {W2F}
s_lshl_b32 s60, s{S_RB2}, 2
s_add_u32 s60, s60, s{S_P}
s_mul_i32 s60, s60, 40960
s_add_u32 s{S_H}, s60, {HF}""")
    pace = int(mcommon.OPT.get("pace", 5))
    early = int(mcommon.OPT.get("early", 7))
    weights(0)
    weights(1)
    poll_flags("o", f"s_lshl_b32 s62, s{S_RB}, 7\ns_add_u32 s62, s62, {OFLG}", 8)
    a("s_barrier")
    for g in range(2, early):
        weights(g, pace)
    poll_flags("h", f"s_lshl_b32 s62, s{S_RB2}, 10\ns_add_u32 s62, s62, {HFLG}", 64)
    for g in range(7):
        tokens(g)
        if g >= early:
            weights(g)
    for c in range(NITEM):
        if c == N4:
            a("s_barrier")
            weights(27)
            weights(28)
            poll_flags("hh", f"s_lshl_b32 s62, s{S_RB}, 9\ns_add_u32 s62, s62, {HHFLG}", 32)
        wait(c)
        a("s_barrier")
        g = c + 6
        if c >= 23 and mcommon.OPT.get("w2pace", "1") == "1":
            k = c - 23
            if k < 8:
                weights(29 + k // 2, None, (0, 3) if k % 2 == 0 else (3, 5))
        elif c >= 1 and g < NITEM and g not in (27, 28):
            tokens(g)
            weights(g)
    a.stamp_out()
    a("s_endpgm")


def stream(a, frags, dist=DIST, group=2):
    n, nb = len(frags), dist + 1
    issued, last_of = 0, {}

    def read(i):
        nonlocal issued
        f = frags[i]
        for x in f.get("pre_read", []):
            a(x)
        for dst, addr, off in f.get("extra_reads", []):
            a(f"ds_read_b128 {vr(dst, 4)}, v{addr} offset:{off}")
            issued += 1
        a(f"ds_read_b128 {vr(f['abuf'] + 4 * (i % nb), 4)}, v{f['addr']} offset:{f['off']}")
        issued += 1
        last_of[i] = issued

    for i in range(min(dist, n)):
        read(i)
    for i, f in enumerate(frags):
        for x in f.get("pre_mma", []):
            a(x)
        if i % group == 0:
            a(f"s_waitcnt lgkmcnt({issued - last_of[min(i + group - 1, n - 1)]})")
        A = f["abuf"] + 4 * (i % nb)
        for k, (acc, b) in enumerate(zip(f["acc"], f["b"])):
            a(mfma16(acc, A, b, "0" if f["first"] else acc))
            if k == 0 and i + dist < n:
                read(i + dist)
        for x in f.get("post_mma", []):
            a(x)


def bloads(breg, s_base, step, nt):
    out = []
    for n in range(nt):
        if step % 4 == 0 and step:
            out.append(f"s_add_u32 s{s_base + n}, s{s_base + n}, 4096")
        out.append(f"buffer_load_dwordx4 {vr(breg + 4 * n, 4)}, v{VL16}, s[{WS}:{WS + 3}], s{s_base + n} offen"
                   + (f" offset:{1024 * (step % 4)}" if step % 4 else "") + " sc1")
    return out


def plan_b(fr, per, nsteps, W, BW, S_B, lead, nt=2, extra=()):
    order = [(s, nt) for s in range(lead)] + [("x", sum("buffer_load" in x for x in extra))]
    first = [x for s in range(lead) for x in bloads(BW + 4 * nt * (s % W), S_B, s, nt)] + list(extra)
    nxt = lead
    for s in range(nsteps):
        f0, fl = fr[s * per], fr[s * per + per - 1]
        pos = [k for k, _ in order].index(s)
        f0.setdefault("pre_mma", []).insert(0, f"s_waitcnt vmcnt({sum(c for _, c in order[pos + 1:])})")
        slots = [fr[s * per + per // 2 - 1], fl]
        for k, f in enumerate(slots):
            limit = s + W - 1 if k == 0 else s + W
            if nxt < nsteps and nxt <= limit:
                f.setdefault("post_mma", []).extend(bloads(BW + 4 * nt * (nxt % W), S_B, nxt, nt))
                order.append((nxt, nt))
                nxt += 1
    assert nxt == nsteps
    return first


def line_touch(vtmp, vdst, s_base, nlines, s_part, stride=128):
    if mcommon.OPT.get("atouch", "0") != "1":
        return []
    out = [f"s_mul_i32 s68, s{s_part}, {nlines * stride}", f"s_add_u32 s68, s68, s{s_base}",
           f"v_lshlrev_b32 v{vtmp}, 7, v{LANE}"]
    left, k = nlines, 0
    while left > 0:
        n = min(left, 64)
        if n < 64:
            m = (1 << n) - 1
            out += [f"s_mov_b32 exec_lo, {m & 0xffffffff:#x}", f"s_mov_b32 exec_hi, {m >> 32:#x}"]
        if k:
            out.append("s_add_u32 s68, s68, 8192")
        out.append(f"buffer_load_dword v{vdst}, v{vtmp}, s[{WS}:{WS + 3}], s68 offen sc1")
        if n < 64:
            out.append("s_mov_b64 exec, -1")
        left -= n
        k += 1
    return out


def add_bf16(a, acc, src, n):
    for j in range(n):
        r, t = acc + 2 * j, 12 + 2 * (j % 2)
        a(f"""
v_lshlrev_b32 v{t}, 16, v{src + j}
v_and_b32 v{t + 1}, 0xffff0000, v{src + j}
v_pk_add_f32 v[{r}:{r + 1}], v[{r}:{r + 1}], v[{t}:{t + 1}]""")


def compute345(a):
    S_B, S_TT = 46, 34
    VQ, VT, V4, VA = 4, 5, 6, 7
    D35 = int(mcommon.OPT.get("d35", 9))
    BW, AB, ACC = 16, 96, 148
    a(f"""
v_lshrrev_b32 v{VQ}, 4, v{LANE}
v_and_b32 v{VT}, 15, v{LANE}
v_lshlrev_b32 v{V4}, 2, v{LANE}
s_lshl_b32 s{S_TT}, s{S_RB}, 2
s_add_u32 s{S_TT}, s{S_TT}, s{S_W}
s_lshl_b32 s62, s{S_RB}, 7
s_add_u32 s62, s62, {OFLG}
s_mul_i32 s63, s{S_TT}, 20480
s_add_u32 s{S_B}, s63, {OF}
v_add_u32 v{VA}, {LDS_WO}, v{VL16}
v_add_u32 v{VA + 1}, {LDS_WO + 51200}, v{VL16}
s_barrier""")
    a.stamp(16)
    fr = []
    for s in range(20):
        for m in range(5):
            f = dict(addr=VA + s // 10, off=(s % 10) * 5120 + m * 1024, abuf=AB, acc=[ACC + 4 * m],
                     b=[BW + 4 * s], first=(s == 0))
            if m == 0 and s in (0, 10):
                f["pre_mma"] = a.stamp_lines(45 + s // 10)
            fr.append(f)
    a(f"s_mov_b32 s69, s{S_B}")
    for x in plan_b(fr, 5, 20, 20, BW, S_B, int(mcommon.OPT.get("lead3", 6)), 1, line_touch(11, 254, 69, 20, S_CB)):
        a(x)
    stream(a, fr, D35, 2)
    a.stamp(17)
    a("s_nop 7")
    add_bf16(a, ACC, RES, 10)
    for j in range(10):
        a(f"v_cvt_pk_bf16_f32 v{HRES + j}, v{ACC + 2 * j}, v{ACC + 2 * j + 1}")
    a(f"""
s_mov_b32 s60, s{S_TT}
s_mul_i32 s61, s60, 20480
s_mul_i32 s62, s{S_CB}, 5
s_lshr_b32 s62, s62, 1
s_lshl_b32 s62, s62, 10
s_add_u32 s61, s61, s62
s_add_u32 s61, s61, {HF}
s_bitcmp1_b32 s{S_CB}, 0
s_cbranch_scc1 L_p3_odd
buffer_store_dwordx4 {vr(HRES, 4)}, v{VL16}, s[{WS}:{WS + 3}], s61 offen sc1
buffer_store_dwordx4 {vr(HRES + 4, 4)}, v{VL16}, s[{WS}:{WS + 3}], s61 offen offset:1024 sc1
buffer_store_dwordx2 {vr(HRES + 8, 2)}, v{VL16}, s[{WS}:{WS + 3}], s61 offen offset:2048 sc1
s_branch L_p3_st
L_p3_odd:
buffer_store_dwordx2 {vr(HRES, 2)}, v{VL16}, s[{WS}:{WS + 3}], s61 offen offset:8 sc1
buffer_store_dwordx4 {vr(HRES + 2, 4)}, v{VL16}, s[{WS}:{WS + 3}], s61 offen offset:1024 sc1
buffer_store_dwordx4 {vr(HRES + 6, 4)}, v{VL16}, s[{WS}:{WS + 3}], s61 offen offset:2048 sc1
L_p3_st:
v_pk_mul_f32 v[12:13], v[{ACC}:{ACC + 1}], v[{ACC}:{ACC + 1}]
v_mov_b32 v14, v{ACC}
v_mov_b32 v15, v{ACC + 1}""")
    for j in range(1, 10):
        r = ACC + 2 * j
        a(f"v_pk_fma_f32 v[12:13], v[{r}:{r + 1}], v[{r}:{r + 1}], v[12:13]")
        a(f"v_pk_add_f32 v[14:15], v[14:15], v[{r}:{r + 1}]")
    a(f"""
v_add_f32 v11, v12, v13
v_add_f32 v10, v14, v15
s_lshl_b32 s60, s60, 10
s_lshl_b32 s61, s{S_CB}, 3
s_add_u32 s60, s60, s61
s_add_u32 s60, s60, {ST}""")
    a.quad_sum(10, 12)
    a.quad_sum(11, 12)
    a(f"""
v_lshlrev_b32 v13, 6, v{VT}
v_lshl_add_u32 v13, v{VQ}, 28, v13
s_lshl_b32 s61, s{S_TT}, 7
s_lshl_b32 s62, s{S_CB}, 2
s_add_u32 s61, s61, s62
s_add_u32 s61, s61, {HFLG}
buffer_store_dwordx2 v[10:11], v13, s[{WS}:{WS + 3}], s60 offen sc1
s_barrier""")
    a.stamp(48)
    a("s_waitcnt vmcnt(0)")
    a.set_flag(10, 12, WS, "s61")
    a.stamp(18)
    ACC, BW, AB, VB, STT = 16, 112, 192, 220, 224
    a(f"""
s_lshl_b32 s60, s{S_RB2}, 2
s_add_u32 s31, s60, s{S_W}
s_lshl_b32 s63, s31, 11
s_add_u32 s63, s63, {ST}
v_lshlrev_b32 v13, 6, v{VT}
v_lshl_add_u32 v13, v{VQ}, 4, v13
s_lshl_b32 s64, s{S_W}, 11
s_add_u32 s64, s64, 12288""")
    for j in range(3):
        a(f"v_add_u32 v{VA + j}, {3 * SLOT * j}, v{VL16}\nv_add_u32 v{VB + j}, s64, v{VA + j}")
    a("s_barrier")
    a.stamp(49)
    a("s_barrier")
    a.stamp(19)
    a(f"""
buffer_load_dwordx4 {vr(STT, 4)}, v13, s[{WS}:{WS + 3}], s63 offen sc1
buffer_load_dwordx4 {vr(STT + 4, 4)}, v13, s[{WS}:{WS + 3}], s63 offen offset:1024 sc1""")

    def acc4(fp, gu, n):
        return 16 + ((fp * 2 + gu) * 2 + n) * 4

    BX = 176
    fr = []
    for s in range(21):
        slot = s % NSLOT
        off = (slot % 3) * SLOT
        for m in range(12):
            breg = BW + 8 * (s % 2) if s < 20 else BX
            f = dict(addr=VA + slot // 3, off=off + m * 1024, abuf=AB,
                     acc=[acc4(m // 2, m % 2, 0), acc4(m // 2, m % 2, 1)], b=[breg, breg + 4], first=(s == 0))
            if m == 0 and s > 0:
                f["pre_read"] = ["s_barrier"]
            if m == 0 and s < 20:
                f["extra_reads"] = [(breg, VB + slot // 3, off), (breg + 4, VB + slot // 3, off + 1024)]
            if m == 0 and s in (0, 4, 8, 12, 16):
                f["pre_mma"] = a.stamp_lines(32 + s // 4)
            fr.append(f)
    fr[35].setdefault("post_mma", []).append("s_waitcnt vmcnt(0)")
    st = []
    for n in range(2):
        r = STT + 4 * n
        st += [f"v_add_f32 v{r}, v{r}, v{r + 2}", f"v_add_f32 v{r + 1}, v{r + 1}, v{r + 3}"]
    for n in range(2):
        for k in range(2):
            r = STT + 4 * n + k
            for width in (32, 16):
                st += [f"v_mov_b32 v12, v{r}", "s_nop 1", f"v_permlane{width}_swap_b32 v{r}, v12", "s_nop 1",
                       f"v_add_f32 v{r}, v{r}, v12"]
        r = STT + 4 * n
        st += [f"v_mul_f32 v{r}, {f32(1 / 640)}, v{r}", f"v_mul_f32 v{r + 1}, {f32(1 / 640)}, v{r + 1}",
               f"v_fma_f32 v{r + 1}, -v{r}, v{r}, v{r + 1}", f"v_max_f32 v{r + 1}, 0, v{r + 1}",
               f"v_add_f32 v{r + 1}, {f32(1e-5)}, v{r + 1}", f"v_rsq_f32 v{r + 1}, v{r + 1}"]
    ext = []
    for n in range(2):
        mean, bb = STT + 4 * n, BX + 4 * n
        ext += [f"v_cvt_pk_bf16_f32 v12, v{mean}, v{mean}", "v_and_b32 v13, 0xffff0000, v12",
                f"v_sub_f32 v13, v13, v{mean}", f"v_xor_b32 v{bb + 1}, 0x80008000, v12",
                "v_cvt_pk_bf16_f32 v13, v13, v13", f"v_mov_b32 v{bb + 2}, 0", f"v_mov_b32 v{bb + 3}, 0",
                f"v_and_b32 v12, 0xffff, v{bb + 1}", "v_lshlrev_b32 v13, 16, v13", f"v_or_b32 v{bb}, v12, v13"]
    for k in range(0, len(st), 2):
        fr[36 + k // 2].setdefault("post_mma", []).extend(st[k:k + 2])
    for k in range(0, len(ext), 2):
        fr[15 * 12 + k // 2].setdefault("post_mma", []).extend(ext[k:k + 2])
    stream(a, fr)
    a.stamp(20)
    C = [224, 228]
    for n in range(2):
        a(f"""
v_rcp_f32 v{C[n] + 2}, v{C[n] + 1}
v_mul_f32 v{C[n]}, {f32(-LOG2E)}, v{C[n] + 1}
v_mul_f32 v{C[n] + 2}, {f32(-LOG2E)}, v{C[n] + 2}""")
    a(f"""
s_mul_i32 s60, s31, 96
s_mul_i32 s61, s{S_FB}, 3
s_add_u32 s60, s60, s61
s_lshl_b32 s60, s60, 10
s_add_u32 s60, s60, {HHF}
s_add_u32 s61, s60, {48 * 1024}
s_lshl_b32 s62, s31, 8
s_lshr_b32 s63, s{S_FB}, 3
s_lshl_b32 s63, s63, 7
s_add_u32 s62, s62, s63
s_and_b32 s63, s{S_FB}, 7
s_lshl_b32 s63, s63, 2
s_add_u32 s62, s62, s63
s_add_u32 s62, s62, {HHFLG}""")
    TT, OO = 112, 128
    k = 0
    for sg in range(3):
        for n in range(2):
            g = [acc4(2 * sg, 0, n), acc4(2 * sg, 0, n) + 2, acc4(2 * sg + 1, 0, n), acc4(2 * sg + 1, 0, n) + 2]
            u = [acc4(2 * sg, 1, n), acc4(2 * sg, 1, n) + 2, acc4(2 * sg + 1, 1, n), acc4(2 * sg + 1, 1, n) + 2]
            o = OO + 4 * (k % 4)
            k += 1
            c1, kk = C[n], C[n] + 2
            for j in range(4):
                a(f"v_pk_mul_f32 v[{g[j]}:{g[j] + 1}], v[{g[j]}:{g[j] + 1}], v[{c1}:{c1 + 1}] op_sel_hi:[1,0]")
            for j in range(4):
                a(f"v_exp_f32 v{TT + 2 * j}, v{g[j]}\nv_exp_f32 v{TT + 2 * j + 1}, v{g[j] + 1}")
            for j in range(4):
                a(f"v_pk_mul_f32 v[{g[j]}:{g[j] + 1}], v[{g[j]}:{g[j] + 1}], v[{u[j]}:{u[j] + 1}]")
            for j in range(4):
                t = TT + 2 * j
                a(f"v_pk_fma_f32 v[{t}:{t + 1}], v[{t}:{t + 1}], v[{kk}:{kk + 1}], v[{kk}:{kk + 1}] op_sel_hi:[1,0,0]")
            for j in range(8):
                a(f"v_rcp_f32 v{TT + j}, v{TT + j}")
            for j in range(4):
                t = TT + 2 * j
                a(f"v_pk_mul_f32 v[{g[j]}:{g[j] + 1}], v[{g[j]}:{g[j] + 1}], v[{t}:{t + 1}]")
            for j in range(4):
                a(f"v_cvt_pk_bf16_f32 v{o + j}, v{g[j]}, v{g[j] + 1}")
            a(f"buffer_store_dwordx4 {vr(o, 4)}, v{VL16}, s[{WS}:{WS + 3}], s{60 + n} offen offset:{1024 * sg} sc1")
    a.stamp(21)
    a("s_barrier\ns_waitcnt vmcnt(0)")
    a.set_flag(10, 12, WS, "s62")
    a.stamp(22)
    ACC, AB, BW, W = 16, 40, 92, int(mcommon.OPT.get('w5', 12))
    a(f"""
s_lshl_b32 s62, s{S_RB}, 9
s_add_u32 s62, s62, {HHFLG}
s_mul_i32 s63, s{S_TT}, {48 * 1024}
s_add_u32 s{S_B}, s63, {HHF}
s_mov_b32 s69, s{S_B}
v_lshrrev_b32 v11, 3, v{LANE}
v_lshlrev_b32 v11, 7, v11
v_and_b32 v12, 7, v{LANE}
v_lshl_add_u32 v11, v12, 2, v11""")
    a.srd(TS, P_OUT, 2048 * 1280)
    a("s_barrier")
    a.stamp(23)
    fr = []
    for s in range(48):
        c, sg = divmod(s, 4)
        slot = (c + N4) % NSLOT
        for m in range(5):
            f = dict(addr=VA + slot // 3, off=(slot % 3) * SLOT + sg * 5120 + m * 1024, abuf=AB,
                     acc=[ACC + 4 * m], b=[BW + 4 * (s % W)], first=(s == 0))
            if m == 0 and sg == 0 and c > 0:
                f["pre_read"] = ["s_barrier"]
            if m == 0 and s in (0, 12, 24, 36):
                f["pre_mma"] = a.stamp_lines(40 + s // 12)
            fr.append(f)
    for x in plan_b(fr, 5, 48, W, BW, S_B, int(mcommon.OPT.get("lead5", 6)), 1, line_touch(11, 254, 69, 48, S_CB)):
        a(x)
    a("s_barrier")
    stream(a, fr, D35, 2)
    a.stamp(24)
    a("s_nop 7")
    add_bf16(a, ACC, HRES, 10)
    PK = BW
    oaux = " " + mcommon.OPT["oaux"].replace("+", " ") if mcommon.OPT.get("oaux") else ""
    for j in range(10):
        a(f"v_cvt_pk_bf16_f32 v{PK + j}, v{ACC + 2 * j}, v{ACC + 2 * j + 1}")
    a(f"""
s_lshl_b32 s60, s{S_RB}, 6
s_lshl_b32 s61, s{S_W}, 4
s_add_u32 s60, s60, s61
v_add_u32 v10, s60, v{VT}
v_mul_u32_u24 v10, 1280, v10
v_lshl_add_u32 v11, v{VQ}, 3, v10
v_and_b32 v12, 1, v{VQ}
v_lshl_add_u32 v10, v12, 5, v10
v_lshrrev_b32 v12, 1, v{VQ}
v_lshl_add_u32 v10, v12, 4, v10
s_mul_i32 s60, s{S_CB}, 160
buffer_store_dwordx2 {vr(PK + 8, 2)}, v11, s[{TS}:{TS + 3}], s60 offen offset:128{oaux}""")
    for j in range(2):
        r = PK + 4 * j
        a(f"""
v_permlane16_swap_b32 v{r}, v{r + 2}
v_permlane16_swap_b32 v{r + 1}, v{r + 3}
buffer_store_dwordx4 {vr(r, 4)}, v10, s[{TS}:{TS + 3}], s60 offen offset:{64 * j}{oaux}""")
    if mcommon.STAMPS:
        a("s_waitcnt vmcnt(0)")
    a.stamp(25)
    a.stamp(26, True)
    a.stamp_out()
    if mcommon.OPT.get("probe"):
        i, j, mult, real = (int(x) for x in mcommon.OPT["probe"].split(","))
        op = "s_memrealtime" if real else "s_memtime"
        gapcode = ""
        if mcommon.OPT.get("gap"):
            gapcode = f"""s_mov_b32 s66, {DIAG + 0x100000}
v_mov_b32 v0, 0
buffer_load_dword v1, v0, s[92:95], s66 offen sc1
s_waitcnt vmcnt(0)
v_readfirstlane_b32 s60, v1
s_nop 3"""
        a(f"""
s_cmp_lg_u32 s2, {mcommon.OPT.get("probewg", 0)}
s_cbranch_scc1 L_end
s_cmp_lg_u32 s{S_W}, 0
s_cbranch_scc1 L_end
v_readlane_b32 s60, v{V_STAMP}, {i}
v_readlane_b32 s61, v{V_STAMP}, {j}
{gapcode}
{op} s[62:63]
s_waitcnt lgkmcnt(0)
s_sub_u32 s60, s61, s60
s_min_u32 s60, s60, 200000
s_mul_i32 s60, s60, {mult}
L_probe:
{op} s[64:65]
s_waitcnt lgkmcnt(0)
s_sub_u32 s64, s64, s62
s_cmp_lt_u32 s64, s60
s_cbranch_scc1 L_probe""")
```

```python
from mcommon import *
import mcommon

LDS_WR = 81920
LDS_KVW = 131072
LDS_Q = LDS_WR + 2 * 12288
LDS_PS = LDS_Q
W_LDS = [LDS_WR + 12288 * c for c in range(4)] + [LDS_KVW, LDS_KVW + 12288] + [12288 * c for c in range(4)]
LDS_MISC = 155648
LDS_PART = LDS_KVW + 26368
LDS_SYNC = 163600
LDS_READY = 163584
QSCALE = 20 ** -0.5 * LOG2E
SAFE_V = 2.0 ** 30
CA_INIT = (104, 136)


def phase1(a, tail, young_prep, young_tail):
    XR, T8, SUB = 16, 62, 63
    a(f"""
s_cmp_ge_u32 s2, 256
s_cbranch_scc1 L_end
s_load_dwordx8 s[36:43], s[0:1], 0
s_load_dwordx4 s[56:59], s[0:1], 80
s_load_dwordx2 s[44:45], s[0:1], 32
s_load_dwordx8 s[48:55], s[0:1], 48
v_lshrrev_b32 v1, 6, v0
v_and_b32 v{LANE}, 63, v0
v_readfirstlane_b32 s{S_W}, v1""")
    if mcommon.OPT.get("codepf", "1") == "1":
        a(f"""
s_getpc_b64 s[72:73]
L_pc:
s_sub_u32 s72, s72, L_pc-{a.name}
s_subb_u32 s73, s73, 0
s_lshr_b32 s60, s2, 3
s_lshl_b32 s60, s60, 3
s_add_u32 s60, s60, s{S_W}
s_lshl_b32 s60, s60, 7
v_lshlrev_b32 v4, 15, v{LANE}
v_add_u32 v4, s60, v4
v_min_u32 v4, L_code_end-{a.name}-4, v4
s_mov_b64 exec, 7
global_load_dword v253, v4, s[72:73]
s_mov_b64 exec, -1""")
    a(f"""
s_and_b32 s60, s2, 7
s_lshr_b32 s61, s2, 3
s_lshl_b32 s{S_RB}, s60, 2
s_and_b32 s62, s61, 3
s_add_u32 s{S_RB}, s{S_RB}, s62
s_lshr_b32 s{S_CB}, s61, 2
s_lshl_b32 s{S_IDX}, s60, 5
s_add_u32 s{S_IDX}, s{S_IDX}, s61
s_lshr_b32 s{S_HALF}, s{S_W}, 2
s_and_b32 s{S_P}, s{S_W}, 3
s_lshl_b32 s{S_HEAD}, s{S_CB}, 2
s_add_u32 s{S_HEAD}, s{S_HEAD}, s{S_P}
s_and_b32 s62, s60, 1
s_lshl_b32 s62, s62, 3
s_and_b32 s63, s61, 7
s_add_u32 s{S_RB2}, s62, s63
s_lshr_b32 s62, s60, 1
s_lshl_b32 s62, s62, 2
s_lshr_b32 s63, s61, 3
s_add_u32 s{S_FB}, s62, s63
v_lshlrev_b32 v{VL16}, 4, v{LANE}
s_mul_i32 s32, s{S_CB}, 160
v_mov_b32 v4, {LDS_READY}
v_mov_b32 v6, 0
v_mov_b32 v7, 0
v_mov_b32 v8, 0
v_mov_b32 v9, 0
ds_write_b128 v4, v[6:9]
ds_write_b128 v4, v[6:9] offset:16
ds_write_b128 v4, v[6:9] offset:32
s_and_b32 s60, s{S_CB}, 6
s_add_u32 s60, s60, s{S_W}
s_and_b32 s31, s60, 7
s_lshl_b32 s60, s{S_RB}, 6
s_lshl_b32 s61, s31, 3
s_add_u32 s60, s60, s61
v_lshrrev_b32 v{T8}, 3, v{LANE}
v_and_b32 v{SUB}, 7, v{LANE}
v_add_u32 v5, s60, v{T8}
v_mul_u32_u24 v5, 1280, v5
v_lshl_add_u32 v5, v{SUB}, 4, v5
s_waitcnt lgkmcnt(0)
s_barrier""")
    a.stamp(0)
    a.stamp(1, True)
    a.srd(XS, P_X, 2048 * 1280)
    a.srd(WS, P_WS, WS_USED)
    a(f"""
s_and_b32 s60, s{S_IDX}, 31
s_lshl_b32 s60, s60, 3
s_add_u32 s35, s60, s{S_W}
s_cmp_lg_u32 s35, {31 * 8 + 3}
s_cbranch_scc1 L_p1_noclear
s_lshr_b32 s61, s{S_IDX}, 5
s_mul_i32 s60, s61, {FLG_BYTES // 8}
s_add_u32 s60, s60, {FLG}
v_mov_b32 v180, 0
v_mov_b32 v181, 0
v_mov_b32 v182, 0
v_mov_b32 v183, 0""")
    for i in range(FLG_BYTES // 8192):
        if i and i % 4 == 0:
            a("s_add_u32 s60, s60, 4096")
        a(f"buffer_store_dwordx4 v[180:183], v{VL16}, s[{WS}:{WS + 3}], s60 offen offset:{1024 * (i % 4)} sc1")
    a("L_p1_noclear:")
    xaux = " nt" if mcommon.OPT.get("xnt", "1") == "1" else ""
    for i in range(10):
        a(f"buffer_load_dwordx4 {vr(XR + 4 * i, 4)}, v5, s[{XS}:{XS + 3}], 0 offen offset:{128 * i}{xaux}")
    a(f"""
s_bitcmp1_b32 s{S_CB}, 0
s_cselect_b32 s{P_WK}, s{P_WV}, s{P_WK}
s_cselect_b32 s{P_WK + 1}, s{P_WV + 1}, s{P_WK + 1}""")
    a.srd(KS, P_WK, 640 * 40)
    a(f"""
s_mul_i32 s66, s{S_P}, 7168
s_add_u32 s65, s66, {LDS_KVW}
s_cmp_ge_u32 s{S_W}, 4
s_cbranch_scc1 L_p1_nokvw""")
    for i in range(7):
        if i == 4:
            a("s_add_u32 s65, s65, 4096\ns_add_u32 s66, s66, 4096")
        a.dma(VL16, KS, "s66", "s65" if i % 4 == 0 else None, imm=1024 * (i % 4))
    a("L_p1_nokvw:")
    a.srd(TS, P_WQ, 640 * 1280)
    a.srd(DS, P_DBG, 256)

    def w_voffs(sbase):
        for i in range(3):
            a(f"""
v_add_u32 v6, s{sbase}, v{LANE}
v_add_u32 v6, {64 * i}, v6
v_mul_u32_u24 v7, 43691, v6
v_lshrrev_b32 v7, 19, v7
v_mul_u32_u24 v8, 12, v7
v_sub_u32 v8, v6, v8
v_mul_u32_u24 v7, 1280, v7
v_lshl_add_u32 v{9 + i}, v8, 4, v7""")

    a(f"s_mul_i32 s61, s{S_P}, 192")
    w_voffs(61)
    SA, SB, QA, QB, RS, NB = 56, 57, 58, 59, 60, 61
    a(f"""
v_mov_b32 v{SA}, 0
v_mov_b32 v{SB}, 0
v_mov_b32 v{QA}, 0
v_mov_b32 v{QB}, 0
s_mov_b32 s67, 0x3f803f80
s_lshr_b32 s60, s31, 2
s_mul_i32 s60, s60, 40960
s_and_b32 s61, s31, 3
s_lshl_b32 s61, s61, 7
s_add_u32 s60, s60, s61
v_xor_b32 v6, v{T8}, v{SUB}
v_lshlrev_b32 v6, 4, v6
v_lshlrev_b32 v7, 9, v{SUB}
v_add3_u32 v13, v6, v7, s60""")
    for cls, younger in enumerate((7, 12)):
        if cls == 0:
            a(f"s_cmp_ge_u32 s{S_W}, 4\ns_cbranch_scc1 L_p1_stat_y")
        else:
            a(f"s_mul_i32 s63, s{S_P}, 3072\ns_add_u32 s63, s63, {LDS_WR}")
            for c in range(4):
                a(f"s_add_u32 s64, s32, {c * 64 * 1280}")
                for i in range(3):
                    a(f"s_add_u32 m0, s63, {c * 12288 + i * 1024}\ns_nop 0")
                    a(f"buffer_load_dwordx4 v{9 + i}, s[{TS}:{TS + 3}], s64 offen lds")
        for i in range(10):
            a(f"s_waitcnt vmcnt({9 + younger - i})")
            if i == 0:
                a.stamp(2)
            for j in range(4):
                r = XR + 4 * i + j
                s, q = (SA, QA) if j % 2 == 0 else (SB, QB)
                a(f"v_dot2_f32_bf16 v{s}, v{r}, s67, v{s}")
                a(f"v_dot2_f32_bf16 v{q}, v{r}, v{r}, v{q}")
        if cls == 0:
            a(f"v_lshlrev_b32 v7, 2, v{LANE}\nbuffer_load_dword v82, v7, s[{DS}:{DS + 3}], 0 offen sc1")
            a("s_branch L_p1_stat_done\nL_p1_stat_y:")
    a("L_p1_stat_done:")
    a.stamp(3)
    a(f"""
s_cmp_lg_u32 s35, {31 * 8 + 3}
s_cbranch_scc1 L_p1_noreport
s_lshr_b32 s61, s{S_IDX}, 5
s_lshl_b32 s61, s61, 2""")
    a.set_flag(180, 181, DS, "s61")
    a(f"""
L_p1_noreport:
s_nop 2
v_add_f32 v{SA}, v{SA}, v{SB}
v_add_f32 v{QA}, v{QA}, v{QB}""")
    for m in ("quad_perm:[1,0,3,2]", "quad_perm:[2,3,0,1]", "row_half_mirror"):
        a(f"""
s_nop 1
v_add_f32_dpp v{SA}, v{SA}, v{SA} {m} row_mask:0xf bank_mask:0xf
v_add_f32_dpp v{QA}, v{QA}, v{QA} {m} row_mask:0xf bank_mask:0xf""")
    a(f"""
s_nop 0
v_mul_f32 v{SA}, {f32(1 / 640)}, v{SA}
v_mul_f32 v{QA}, {f32(1 / 640)}, v{QA}
v_fma_f32 v{QA}, -v{SA}, v{SA}, v{QA}
v_max_f32 v{QA}, 0, v{QA}
v_add_f32 v{QA}, {f32(1e-5)}, v{QA}
v_rsq_f32 v{RS}, v{QA}
s_nop 0
v_mul_f32 v{NB}, v{SA}, v{RS}
v_sub_f32 v{NB}, 0, v{NB}""")
    TN = [64, 72]

    def unpack(i):
        for j in range(4):
            r, t = XR + 4 * i + j, TN[i % 2] + 2 * j
            a(f"v_lshlrev_b32 v{t}, 16, v{r}\nv_and_b32 v{t + 1}, 0xffff0000, v{r}")

    unpack(0)
    for i in range(10):
        for j in range(4):
            t = TN[i % 2] + 2 * j
            a(f"v_pk_fma_f32 v[{t}:{t + 1}], v[{t}:{t + 1}], v[{RS}:{RS + 1}], v[{RS}:{RS + 1}] op_sel:[0,0,1] op_sel_hi:[1,0,1]")
        if i < 9:
            unpack(i + 1)
        for j in range(4):
            t = TN[i % 2] + 2 * j
            a(f"v_cvt_pk_bf16_f32 v{XR + 4 * i + j}, v{t}, v{t + 1}")
        a(f"ds_write_b128 v13, {vr(XR + 4 * i, 4)} offset:{4096 * i}")
    a.stamp(4)
    BA, WA, KA, H, TOK = 84, 8, 14, 80, 81
    ACC0, ACC1, BUF = 16, 32, 48
    S_WN, S_WM = 33, 34
    a(f"""
s_and_b32 s{S_WN}, s{S_W}, 1
s_bfe_u32 s{S_WM}, s{S_W}, 0x10001
v_lshrrev_b32 v{H}, 5, v{LANE}
v_and_b32 v{TOK}, 31, v{LANE}
s_mul_i32 s60, s{S_WN}, 40960
v_and_b32 v12, 24, v{TOK}
v_and_b32 v13, 7, v{TOK}
v_lshlrev_b32 v93, 9, v{H}""")
    for q in range(4):
        a(f"""
v_or_b32 v15, {2 * q}, v{H}
v_xor_b32 v15, v15, v13
v_or_b32 v15, v15, v12
v_lshl_add_u32 v15, v15, 4, v93
v_add_u32 v15, s60, v15
v_add_u32 v{BA + q}, {1024 * q}, v15""")
    a(f"""
v_bfe_u32 v12, v{LANE}, 2, 2
v_lshl_add_u32 v12, v{H}, 3, v12
v_bfe_u32 v13, v{LANE}, 4, 1
v_lshlrev_b32 v13, 5, v13
v_and_b32 v15, 3, v{LANE}
v_lshl_add_u32 v13, v15, 3, v13
v_mul_u32_u24 v15, 192, v12
v_add_u32 v15, v15, v13
s_lshl_b32 s60, s{S_WM}, 7
v_add_u32 v94, s60, v15
v_add_u32 v{WA}, {LDS_WR}, v94
v_add_u32 v95, {LDS_KVW}, v94
v_mul_u32_u24 v15, 40, v12
v_add_u32 v15, v15, v13
v_add_u32 v{KA}, {LDS_KVW}, v15""")
    def ring():
        sq = []

        def chunk(c):
            a(f"s_add_u32 s64, s32, {c * 64 * 1280}")
            for i in range(3):
                a(f"s_add_u32 m0, s31, {W_LDS[c] + i * 1024}\ns_nop 0")
                a(f"buffer_load_dwordx4 v{96 + i}, s[{TS}:{TS + 3}], s64 offen lds")
                sq.append(c)

        def wait_for(tag):
            last = max(i for i, x in enumerate(sq) if x == tag)
            a(f"s_waitcnt vmcnt({len(sq) - 1 - last})")

        a(f"s_mul_i32 s31, s{S_P}, 3072\nv_mov_b32 v96, v9\nv_mov_b32 v97, v10\nv_mov_b32 v98, v11")
        a(f"buffer_load_dword v8, v7, s[{DS}:{DS + 3}], 0 offen sc1")
        sq.append("clr")
        chunk(4)
        chunk(5)
        young_prep(a, 1)
        a("s_barrier")
        for c in range(6, 10):
            chunk(c)
        wait_for(5)
        a("s_barrier")
        a(f"""
v_cmp_gt_u32 s[60:61], 8, v{LANE}
v_cmp_ne_u32 vcc, 1, v8
s_nop 4
s_and_b64 s[60:61], vcc, s[60:61]
s_cbranch_scc0 L_clr_ok""")
        a.poll(7, 8, DS, "0", 8)
        a("L_clr_ok:")
        young_prep(a, 0)
        young_prep(a, 2)
        wait_for(7)
        a("s_barrier")
        young_prep(a, 10)
        wait_for(9)
        a("s_barrier")
        young_prep(a, 11)

    KACC, AB, BB, VB0, VA0, Q4, T16 = 16, 24, 96, 88, 90, 91, 92

    def lds_wait(off, regs, tag):
        a(f"""
v_mov_b32 v12, {LDS_SYNC}
s_mov_b32 s60, 0
L_lw_{tag}:
ds_read_b128 v[76:79], v12 offset:{off}
s_add_u32 s60, s60, 1
s_waitcnt lgkmcnt(0)""")
        a(f"v_and_b32 v76, v{regs[0]}, v{regs[1]}")
        for r in regs[2:]:
            a(f"v_and_b32 v76, v76, v{r}")
        a(f"""
s_cmp_ge_u32 s60, {SPIN_LIMIT * 16}
s_cbranch_scc1 L_lw_done_{tag}
v_readfirstlane_b32 s61, v76
s_nop 3
s_cmp_eq_u32 s61, 0
s_cbranch_scc1 L_lw_{tag}
L_lw_done_{tag}:""")

    def lds_set(off):
        a(f"""
s_lshl_b32 s60, s{S_P}, 2
s_add_u32 s60, s60, {LDS_SYNC + off}
v_mov_b32 v76, s60
v_mov_b32 v77, 1
ds_write_b32 v76, v77""")

    def project():
        a(f"""
v_lshrrev_b32 v{Q4}, 4, v{LANE}
v_and_b32 v{T16}, 15, v{LANE}
s_lshr_b32 s63, s{S_CB}, 1
s_and_b32 s60, s63, 1
s_lshr_b32 s61, s63, 1
s_mul_i32 s62, s61, 40960
s_lshl_b32 s64, s60, 8
s_add_u32 s62, s62, s64
s_mul_i32 s64, s{S_P}, 10240
s_add_u32 s62, s62, s64
s_and_b32 s64, s{S_P}, 1
s_lshl_b32 s64, s64, 2
v_and_b32 v12, 8, v{T16}
v_and_b32 v13, 7, v{T16}
v_lshlrev_b32 v15, 9, v{Q4}
v_add_u32 v15, s62, v15
v_xor_b32 v13, v13, v{Q4}
v_or_b32 v14, v12, v13
v_xor_b32 v14, s64, v14
v_lshl_add_u32 v{VB0}, v14, 4, v15
v_xor_b32 v14, 4, v14
v_lshl_add_u32 v{VB0 + 1}, v14, 4, v15
v_bfe_u32 v12, v{LANE}, 2, 2
v_lshl_add_u32 v12, v{Q4}, 3, v12
v_mul_u32_u24 v12, 40, v12
v_and_b32 v13, 3, v{LANE}
v_lshl_add_u32 v12, v13, 3, v12
s_mul_i32 s64, s{S_P}, 6400
s_add_u32 s64, s64, {LDS_KVW}
v_add_u32 v{VA0}, s64, v12""")

        def rd(S):
            b = AB + 8 * S
            a(f"ds_read_b128 {vr(BB + 4 * S, 4)}, v{VB0 + S % 2} offset:{2048 * S}")
            for mt in range(2):
                a(f"ds_read_b64_tr_b16 {vr(b + 4 * mt, 2)}, v{VA0} offset:{1280 * S + 32 * mt}")
                a(f"ds_read_b64_tr_b16 {vr(b + 4 * mt + 2, 2)}, v{VA0} offset:{1280 * S + 32 * mt + 160}")
        for S in range(3):
            rd(S)
        a(f"""
s_lshl_b32 s64, s{S_RB}, 1
s_add_u32 s64, s64, s61
s_mul_i32 s65, s64, 3072
s_add_u32 s65, s65, {KV}
s_lshl_b32 s64, s{S_RB}, 2
s_add_u32 s64, s64, s63
s_lshl_b32 s64, s64, 2
s_add_u32 s64, s64, {KN}
s_mov_b32 s35, s60
s_lshl_b32 s61, s{S_P}, 11
s_add_u32 s61, s61, {LDS_PART - 2048}
v_add_u32 v12, s61, v{VL16}
s_bitcmp1_b32 s{S_CB}, 0
s_cbranch_scc1 L_kv_v""")
        for kind in "kv":
            for S in range(5):
                a(f"s_waitcnt lgkmcnt({5 * min(2, 4 - S)})")
                b, bb = AB + 8 * S, BB + 4 * S
                for mt in range(2):
                    c = "0" if S == 0 else KACC + 4 * mt
                    a(mfma16(KACC + 4 * mt, b + 4 * mt, bb, c) if kind == "k" else mfma16(KACC + 4 * mt, bb, b + 4 * mt, c))
                if S + 3 < 5:
                    rd(S + 3)
            if kind == "k":
                a("s_branch L_kv_part\nL_kv_v:")
        a(f"""
L_kv_part:
s_cmp_eq_u32 s{S_P}, 0
s_nop 7
s_cbranch_scc1 L_kv_kept
ds_write_b128 v12, {vr(KACC, 4)}
ds_write_b128 v12, {vr(KACC + 4, 4)} offset:1024
s_waitcnt lgkmcnt(0)""")
        lds_set(16)
        if mcommon.OPT.get("wtouch", "1") == "1":
            a(f"""
s_and_b32 s60, s{S_RB}, 3
s_mul_i32 s60, s60, 3
s_add_u32 s60, s60, s{S_P}
s_sub_u32 s60, s60, 1
s_mul_i32 s60, s60, {32 * 1280}
s_add_u32 s60, s60, {256 * 1280}
s_add_u32 s60, s60, s32
v_lshrrev_b32 v12, 1, v{LANE}
v_mul_u32_u24 v12, 1280, v12
v_and_b32 v13, 1, v{LANE}
v_mul_u32_u24 v13, 156, v13
v_add_u32 v12, v12, v13
buffer_load_dword v83, v12, s[{TS}:{TS + 3}], s60 offen""")
        a("s_branch L_kv_done\nL_kv_kept:")

    def gather():
        a(f"v_add_u32 v12, {LDS_PART}, v{VL16}")
        for q in range(6):
            a(f"ds_read_b128 {vr(32 + 4 * q, 4)}, v12 offset:{1024 * q}")
        for q in range(3):
            a(f"s_waitcnt lgkmcnt({4 - 2 * q})")
            for j in range(8):
                a(f"v_add_f32 v{KACC + j}, v{KACC + j}, v{32 + 8 * q + j}")

    def finish(kind):
        a(f"""
v_and_b32 v12, 1, v{Q4}
v_lshlrev_b32 v12, 9, v12
v_lshrrev_b32 v13, 1, v{Q4}
v_lshl_add_u32 v12, v13, 3, v12
v_lshl_add_u32 v12, v{T16}, 4, v12
s_mov_b32 s60, s35""")
        for j in range(4):
            a(f"v_cvt_pk_bf16_f32 v{24 + j}, v{KACC + 2 * j}, v{KACC + 2 * j + 1}")
        if kind == "k":
            a(f"""
s_lshl_b32 s61, s60, 8
s_add_u32 s61, s61, s65
buffer_store_dwordx2 v[24:25], v12, s[{WS}:{WS + 3}], s61 offen sc1
v_lshlrev_b32 v13, 3, v{T16}
v_lshl_add_u32 v13, v{Q4}, 28, v13
s_lshl_b32 s61, s60, 9
s_add_u32 s61, s61, s65
v_cmp_eq_u32 s[66:67], 0, v{Q4}
v_mul_f32 v28, v{KACC + 4}, v{KACC + 4}
buffer_store_dwordx2 v[26:27], v13, s[{WS}:{WS + 3}], s61 offen offset:{1024 + 336} sc1""")
            for j in range(5, 8):
                a(f"v_fmac_f32 v28, v{KACC + j}, v{KACC + j}")
            a("v_cndmask_b32 v28, 0, v28, s[66:67]")
            for j in range(4):
                a(f"v_fmac_f32 v28, v{KACC + j}, v{KACC + j}")
            a.quad_sum(28, 29)
        else:
            a(f"""
s_lshl_b32 s61, s60, 10
s_add_u32 s61, s61, s65
buffer_store_dwordx2 v[24:25], v12, s[{WS}:{WS + 3}], s61 offen offset:1024 sc1
v_cmp_gt_u32 s[66:67], 4, v{T16}
v_cmp_eq_u32 s[68:69], 4, v{T16}
v_mov_b32 v29, 0x3f803f80
s_cmp_eq_u32 s60, 0
s_cselect_b32 s62, 0x001f001f, -1
v_cndmask_b32 v29, 0, v29, s[68:69]
v_cndmask_b32 v26, v29, v26, s[66:67]
v_cndmask_b32 v27, v29, v27, s[66:67]
v_max3_f32 v28, |v{KACC + 4}|, |v{KACC + 5}|, |v{KACC + 6}|
v_max_f32 v28, |v{KACC + 7}|, v28
s_mov_b32 exec_lo, s62
s_mov_b32 exec_hi, s62
buffer_store_dwordx2 v[26:27], v12, s[{WS}:{WS + 3}], s61 offen offset:1280 sc1
s_mov_b64 exec, -1
v_cndmask_b32 v28, 0, v28, s[66:67]
v_max3_f32 v28, |v{KACC}|, |v{KACC + 1}|, v28
v_max3_f32 v28, |v{KACC + 2}|, |v{KACC + 3}|, v28""")
        a.wave_max(28)
        a(f"""
v_mov_b32 v12, 0
s_mov_b32 exec_lo, 0
s_mov_b32 exec_hi, 0x80000000
buffer_store_dword v28, v12, s[{WS}:{WS + 3}], s64 offen{'' if kind == 'k' else ' offset:512'} sc1
s_mov_b64 exec, -1""")

    a(f"""
s_cmp_lt_u32 s{S_W}, 4
s_cbranch_scc1 L_p1_compute""")
    a(f"""
v_lshlrev_b32 v7, 2, v{LANE}
s_waitcnt vmcnt(0) lgkmcnt(0)""")
    a.stamp(56)
    a(f"""
s_barrier""")
    ring()
    a("L_p1_ring_done:")
    young_tail(a)
    a(f"""
L_p1_compute:
s_waitcnt vmcnt(1) lgkmcnt(0)""")
    a.stamp(27)
    lds_set(0)
    lds_wait(0, (76, 77, 78, 79), "a")
    a.stamp(28)
    project()
    a.stamp(29)
    lds_wait(16, (77, 78, 79), "b")
    gather()
    a(f"s_bitcmp1_b32 s{S_CB}, 0\ns_cbranch_scc1 L_kv_fin_v")
    finish("k")
    a("s_branch L_kv_pub\nL_kv_fin_v:")
    finish("v")
    a(f"""
L_kv_pub:""")
    a.stamp(7)
    a("L_kv_done:")
    a(f"s_min_u32 s35, s{S_W}, 1\ns_waitcnt lgkmcnt(0)\ns_barrier")
    a.stamp(5)
    a(f"""
s_cmp_eq_u32 s{S_WM}, 0
s_cbranch_scc0 L_p1_mq""")

    checks = list(range(int(mcommon.OPT.get("kv0", 2)), int(mcommon.OPT.get("kv1", 24)) + 1, 2))
    BR = 96
    nb = int(mcommon.OPT.get("nb", 5))
    last_b = (38 - 2 + nb - 1) // nb

    def mainloop(kind):
        lds = []

        def a_reads(s):
            b = BUF + 8 * (s % 4)
            c, sg = divmod(s, 4)
            base = W_LDS[c] + sg * 3072
            if base >= LDS_KVW:
                reg, off = 95, base - LDS_KVW
            elif base >= LDS_WR:
                reg, off = WA, base - LDS_WR
            else:
                reg, off = 94, base
            out = []
            for tl in range(2 if kind == "m01" else 1):
                out += [(f"ds_read_b64_tr_b16 {vr(b + 4 * tl, 2)}, v{reg} offset:{off + 64 * tl}", ("a", s)),
                        (f"ds_read_b64_tr_b16 {vr(b + 4 * tl + 2, 2)}, v{reg} offset:{off + 64 * tl + 768}", ("a", s))]
            return out

        def b_read(s):
            return (f"ds_read_b128 {vr(BR + 4 * (s % 39), 4)}, v{BA + s % 4} offset:{(s // 4) * 4096}", ("b", s))

        def emit(ops):
            for x, tag in ops:
                a(x)
                if tag:
                    lds.append(tag)

        emit([b_read(0)] + a_reads(0) + [b_read(1)] + a_reads(1))
        nxt = 2
        for s in range(40):
            last = max(i for i, x in enumerate(lds) if x in (("a", s), ("b", s)))
            a(f"s_waitcnt lgkmcnt({min(len(lds) - 1 - last, 15)})")
            b, br = BUF + 8 * (s % 4), BR + 4 * (s % 39)
            r = a_reads(s + 2) if s + 2 < 40 else []
            if s + 2 in (16, 24, 32):
                r = [("s_barrier", None)] + r
            for _ in range(nb):
                if nxt < 40 and (nxt < 39 or s >= 1):
                    r.append(b_read(nxt))
                    nxt += 1
            if 20 <= s < 36:
                r += [(f"v_mov_b32 v{CA_INIT[0] + 2 * (s - 20) + k}, 0", None) for k in range(2)]
            c0, c1 = ("0", "0") if s == 0 else (ACC0, ACC1)
            if kind == "m01":
                a(mfma(ACC1, b + 4, br, c1))
                h = (len(r) + 1) // 2
                emit(r[:h])
                r = r[h:]
            a(mfma(ACC0, b, br, c0))
            emit(r)
            if s == last_b:
                assert nxt == 40
                a("s_waitcnt lgkmcnt(0)\ns_barrier")
            if kind == "m01" and s in checks:
                if s != checks[-1]:
                    a(f"s_getreg_b32 s60, hwreg(HW_REG_IB_STS, 0, 4)\ns_or_b32 s60, s60, s35\ns_cmp_eq_u32 s60, 0")
                else:
                    a("s_cmp_eq_u32 s35, 0")
                a(f"s_cbranch_scc1 L_kv_publish{s}\nL_kv_published{s}:")
        a.stamp(6)

    def qoff(cg):
        return (cg // 5) * 3072 + [0, 512, 8, 520, 1024][cg % 5]

    def qwrite(tiles):
        a(f"""
s_mul_i32 s60, s{S_WN}, 1536
v_lshl_add_u32 v12, v{TOK}, 4, s60
v_xor_b32 v13, 1, v{H}
s_mov_b32 s62, {f32(QSCALE)}
s_nop 7""")
        k = 0
        for acc, m, groups in tiles:
            for g in range(groups):
                lo, up = qoff(8 * m + 2 * g), qoff(8 * m + 2 * g + 1)
                base = min(lo, up)
                sel = H if up > lo else 13
                r = acc + 4 * g
                t = 4 + 2 * (k % 2)
                k += 1
                a(f"""
s_mov_b32 s61, {abs(up - lo)}
v_mul_f32 v{r}, s62, v{r}
v_mul_f32 v{r + 1}, s62, v{r + 1}
v_mul_f32 v{r + 2}, s62, v{r + 2}
v_mul_f32 v{r + 3}, s62, v{r + 3}
v_mad_u32_u24 v14, v{sel}, s61, v12
v_add_u32 v14, {LDS_Q + base}, v14
v_cvt_pk_bf16_f32 v{t}, v{r}, v{r + 1}
v_cvt_pk_bf16_f32 v{t + 1}, v{r + 2}, v{r + 3}
ds_write_b64 v14, {vr(t, 2)}""")

    mainloop("m01")
    qwrite([(ACC1, 1, 4), (ACC0, 0, 4)])
    a("s_branch L_p1_q_done\nL_p1_mq:")
    mainloop("q")
    qwrite([(ACC0, 2, 2)])
    a("L_p1_q_done:")
    for ck in checks:
        tail(f"""
L_kv_publish{ck}:
v_cmp_gt_u32 s[60:61], 8, v{LANE}
s_waitcnt vmcnt(0)
v_cmp_ne_u32 vcc, 1, v82
s_mov_b32 s35, 1
s_nop 3
s_and_b64 s[60:61], vcc, s[60:61]
s_cbranch_scc0 L_kv_clr{ck}""")
        tail.poll(7, 82, DS, "0", 8)
        tail(f"""
L_kv_clr{ck}:
s_lshl_b32 s61, s{S_RB}, 7
s_add_u32 s61, s61, {KVFLG}
v_mov_b32 v12, 0
v_mov_b32 v13, 1
s_mov_b64 exec, 1
buffer_atomic_add v13, v12, s[{WS}:{WS + 3}], s61 offen sc1
s_mov_b64 exec, -1""")
        tail.stamp(31)
        tail(f"s_branch L_kv_published{ck}")
```

```python
from mcommon import *
import mcommon
from m1 import LDS_Q, LDS_PS, LDS_WR, LDS_MISC, LDS_READY, SAFE_V

SLOT_KV = 24576
X_OFF = LDS_WR
KV_SLOT = [X_OFF, 0, SLOT_KV, X_OFF, 0, SLOT_KV, 0, SLOT_KV]
LDS_WO = 49152
SAFE_BOUND = 80.0 / 1.03
RES = 230

VA, VV0, VK4, H, TOK = 4, 5, 6, 8, 9
VAX, VV0X, VK4X = 28, 29, 30
QA, QB = 16, 22
S0, S1 = 32, 48
P = 64
OA, OB = 72, 88
CA, CB = 104, 120
KB = [136, 142]
VB = [148, 156]
T = 164
S_SRC, S_DST, S_PSB = 32, 33, 34
S_PSI = 47
S_PD, S_PS, S_PI, S_PE = 72, 82, 87, 88
V_PS, V_TR = 12, 13


def ps_setup(a):
    a(f"""
s_and_b32 s60, s2, 7
s_lshr_b32 s61, s2, 3
s_mul_i32 s62, s60, 12
s_mul_i32 s63, s60, 17
s_add_u32 s63, s63, 96
s_add_u32 s62, s62, s61
s_sub_u32 s62, s62, 8
s_add_u32 s64, s63, s61
s_sub_u32 s65, s64, 20
s_add_u32 s64, s64, 12
s_cmp_lt_u32 s61, 20
s_cselect_b32 s{S_PSI}, s62, s65
s_cmp_lt_u32 s61, 8
s_cselect_b32 s{S_PSI}, s64, s{S_PSI}
s_sub_u32 s61, s61, 5
s_cmp_lt_u32 s61, 3
s_cselect_b32 s{S_PSI}, 255, s{S_PSI}
s_mul_i32 s{S_PSB}, s{S_P}, 10240
s_add_u32 s{S_PSB}, s{S_PSB}, {LDS_PS}
v_lshrrev_b32 v{V_PS}, 2, v{LANE}
v_and_b32 v15, 3, v{LANE}
v_lshlrev_b32 v{V_TR}, 6, v{V_PS}
v_lshl_add_u32 v{V_TR}, v15, 3, v{V_TR}
v_add_u32 v{V_TR}, s{S_PSB}, v{V_TR}
s_cmp_ge_u32 s{S_PSI}, 96
s_cbranch_scc1 L_ps_b
s_cmp_ge_u32 s{S_PSI}, 48
s_cselect_b32 s60, s{P_W3}, s{P_W1}
s_cselect_b32 s61, s{P_W3 + 1}, s{P_W1 + 1}
s_cselect_b32 s62, 48, 0
s_cselect_b32 s66, 1024, 0
s_mov_b32 s{KS + 2}, {640 * 3072}
s_mov_b32 s{S_PI}, {16 * 3072}
s_sub_u32 s62, s{S_PSI}, s62
s_lshl_b32 s63, s62, 6
s_mul_i32 s64, s{S_P}, {32 * 3072}
s_add_u32 s63, s63, s64
v_mul_u32_u24 v{V_PS}, 3072, v{V_PS}
s_add_u32 s66, s66, {W13F}""")
    for i in range(5):
        a(f"s_add_u32 s{S_PS + i}, s63, {128 * 3072 * i}")
    for tl in range(2):
        a(f"""
s_lshl_b32 s63, s62, 1
s_add_u32 s63, s63, {tl}
s_mul_i32 s64, s63, 43691
s_lshr_b32 s64, s64, 18
s_mul_i32 s65, s64, 6
s_sub_u32 s65, s63, s65
s_mul_i32 s64, s64, {21 * 12288}
s_lshl_b32 s65, s65, 11
s_add_u32 s64, s64, s65
s_add_u32 s64, s64, s66
s_add_u32 s{S_PE + tl}, s64, {20 * 12288}
s_mul_i32 s65, s{S_P}, 12288
s_add_u32 s64, s64, s65""")
        for i in range(5):
            a(f"s_add_u32 s{S_PD + 2 * i + tl}, s64, {4 * 12288 * i}")
    a(f"""
s_branch L_ps_go
L_ps_b:
s_mov_b32 s{S_PE}, {OOB}
s_mov_b32 s{S_PE + 1}, {OOB}
s_sub_u32 s62, s{S_PSI}, 96
s_and_b32 s63, s62, 1
s_lshr_b32 s62, s62, 1
s_mul_i32 s63, s63, 10
s_add_u32 s63, s63, s{S_P}
s_cmp_lt_u32 s{S_P}, 2
s_cselect_b32 s67, 3, 2
s_cmp_ge_u32 s{S_PSI}, 232
s_cselect_b32 s67, 0, s67
s_cmp_ge_u32 s62, 20
s_cbranch_scc1 L_ps_w2
s_mov_b32 s60, s{P_WO}
s_mov_b32 s61, s{P_WO + 1}
s_mov_b32 s{KS + 2}, {640 * 1280}
s_mul_i32 s66, s62, 5120
s_add_u32 s66, s66, {WOF}
s_mov_b32 s68, 102400
v_lshrrev_b32 v14, 2, v{V_PS}
v_and_b32 v{V_PS}, 3, v{V_PS}
s_cmp_ge_u32 s62, 16
s_cbranch_scc1 L_ps_rem
s_mul_i32 s64, s62, 40
s_mov_b32 s{S_PI}, {8 * 1280}
v_lshrrev_b32 v10, 1, v14
v_mul_u32_u24 v10, 20, v10
v_and_b32 v14, 1, v14
v_lshl_add_u32 v14, v14, 2, v10
v_add3_u32 v{V_PS}, v14, v{V_PS}, s64
s_branch L_ps_rows
L_ps_rem:
s_sub_u32 s64, s62, 16
s_mul_i32 s64, s64, 160
s_add_u32 s64, s64, 16
s_mov_b32 s{S_PI}, {20 * 1280}
v_mul_u32_u24 v14, 40, v14
v_add3_u32 v{V_PS}, v14, v{V_PS}, s64
s_branch L_ps_rows
L_ps_w2:
s_mov_b32 s60, s{P_W2}
s_mov_b32 s61, s{P_W2 + 1}
s_mov_b32 s{KS + 2}, {1536 * 1280}
s_sub_u32 s62, s62, 20
s_lshl_b32 s64, s62, 5
s_mov_b32 s{S_PI}, {16 * 1280}
v_add_u32 v{V_PS}, s64, v{V_PS}
s_mul_i32 s64, s62, 43691
s_lshr_b32 s64, s64, 17
s_mul_i32 s65, s64, 3
s_sub_u32 s65, s62, s65
s_lshl_b32 s65, s65, 4
s_add_u32 s64, s64, s65
s_mul_i32 s66, s64, 5120
s_add_u32 s66, s66, {W2F}
s_mov_b32 s68, 245760
L_ps_rows:
v_mul_u32_u24 v{V_PS}, 1280, v{V_PS}""")
    for i in range(5):
        a(f"""
s_add_u32 s62, s63, {4 * i}
s_lshl_b32 s64, s62, 6
s_cmp_gt_u32 s67, {i}
s_cselect_b32 s{S_PS + i}, s64, {OOB}""")
        for tl in range(2):
            a(f"""
s_lshl_b32 s64, s62, 1
s_add_u32 s64, s64, {tl}
s_mul_i32 s65, s64, 52429
s_lshr_b32 s65, s65, 18
s_mul_i32 s69, s65, 5
s_sub_u32 s64, s64, s69
s_mul_i32 s65, s65, s68
s_lshl_b32 s64, s64, 10
s_add_u32 s64, s64, s65
s_add_u32 s64, s64, s66
s_cmp_gt_u32 s67, {i}
s_cselect_b32 s{S_PD + 2 * i + tl}, s64, {OOB}""")
    a(f"""
L_ps_go:
s_mov_b32 s{KS}, s60
s_mov_b32 s{KS + 1}, s61
s_mov_b32 s{KS + 3}, {SRD3}
v_lshl_add_u32 v{V_PS}, v15, 4, v{V_PS}""")


def addresses(a):
    a(f"""
v_lshrrev_b32 v{H}, 5, v{LANE}
v_and_b32 v{TOK}, 31, v{LANE}
s_mul_i32 s60, s{S_HALF}, 12288
v_add_u32 v{VA}, s60, v{VL16}
v_cmp_lt_u32 s[62:63], 20, v{TOK}
v_add_u32 v14, 1024, v{VA}
s_add_u32 s61, s60, {1024 + 336}
v_cndmask_b32 v{VV0}, v{VA}, v14, s[62:63]
v_lshrrev_b32 v14, 4, v{TOK}
v_lshlrev_b32 v14, 9, v14
v_and_b32 v15, 15, v{TOK}
v_lshl_add_u32 v14, v15, 3, v14
v_add_u32 v{VK4}, s61, v14
v_add_u32 v{VAX}, {X_OFF}, v{VA}
v_add_u32 v{VV0X}, {X_OFF}, v{VV0}
v_add_u32 v{VK4X}, {X_OFF}, v{VK4}
s_mul_i32 s{S_DST}, s{S_P}, 3072
s_add_u32 s{S_SRC}, s{S_DST}, {KV}
s_mul_i32 s61, s{S_HALF}, 1536
s_add_u32 s62, s{S_DST}, s61
s_add_u32 s62, s62, {LDS_Q}
s_sub_u32 s63, s{S_DST}, s61
s_add_u32 s63, s63, {LDS_Q + 1536}
v_add_u32 v209, s62, v{VL16}
v_add_u32 v210, s63, v{VL16}
v_lshlrev_b32 v14, 4, v{TOK}
v_add_u32 v211, s62, v14
v_add_u32 v212, s63, v14
v_mov_b32 v7, {LDS_MISC}""")


def young_prep(a, part):
    if part == 0:
        addresses(a)
    if part == 1:
        ps_setup(a)
    if part == 2:
        for r in range(CA, CA + 32):
            a(f"v_mov_b32 v{r}, 0")
    if part == 10:
        a(f"""
v_lshlrev_b32 v11, 7, v{LANE}
s_mov_b32 s61, {KVFLG}
s_cmp_eq_u32 s{S_W}, 7
s_cselect_b32 exec_lo, -1, 0
s_mov_b32 exec_hi, 0
buffer_load_dword v{T + 10}, v11, s[{WS}:{WS + 3}], s61 offen sc1
s_mov_b64 exec, -1""")
    if part == 11:
        a(f"""
s_cmp_lg_u32 s{S_W}, 7
s_cbranch_scc1 L_kv_noearly
s_mov_b32 exec_hi, 0
s_waitcnt vmcnt(0)
v_cmp_ne_u32 vcc, 8, v{T + 10}
v_mov_b32 v14, 1
v_mov_b32 v15, {LDS_READY}
s_nop 2
s_cbranch_vccnz L_kv_notyet
ds_write_b32 v15, v14
L_kv_notyet:
s_mov_b64 exec, -1
L_kv_noearly:""")


def young_tail(a):
    a(f"""
v_lshlrev_b32 v14, 7, v{LANE}
v_lshlrev_b32 v11, 3, v{LANE}
s_mov_b32 s61, {KVFLG}
v_mov_b32 v15, {LDS_READY}
s_cmp_lg_u32 s{S_W}, 7
s_cbranch_scc1 L_kv_lds
ds_read_b32 v10, v15
s_waitcnt lgkmcnt(0)
v_readfirstlane_b32 s62, v10
s_nop 3
s_cmp_lg_u32 s62, 0
s_cbranch_scc1 L_kv_seen""")
    a.poll(14, T, WS, "s61", 32, "8")
    a(f"""
v_mov_b32 v14, 1
ds_write_b32 v15, v14
s_branch L_kv_seen
L_kv_lds:
s_mov_b32 s60, 0
L_kv_spin:
ds_read_b32 v14, v15
s_add_u32 s60, s60, 1
s_waitcnt lgkmcnt(0)
v_readfirstlane_b32 s62, v14
s_cmp_ge_u32 s60, {SPIN_LIMIT * 16}
s_cbranch_scc1 L_kv_seen
s_nop 1
s_cmp_eq_u32 s62, 0
s_cbranch_scc1 L_kv_spin
L_kv_seen:""")
    a.stamp(58)
    a(f"""
s_mov_b32 s62, {KN}
buffer_load_dwordx2 v[{T + 4}:{T + 5}], v11, s[{WS}:{WS + 3}], s62 offen sc1
buffer_load_dwordx2 v[{T + 6}:{T + 7}], v11, s[{WS}:{WS + 3}], s62 offen offset:512 sc1""")
    for g in stage_groups(0):
        for x in g:
            a(x)
    a(f"""
v_mov_b32 v{T + 3}, {f32(SAFE_V)}
s_waitcnt vmcnt(6)
v_max_f32 v14, v{T + 4}, v{T + 5}
v_cmp_nle_f32 s[66:67], v{T + 6}, v{T + 3}
v_cmp_nle_f32 s[64:65], v{T + 7}, v{T + 3}""")
    a.wave_max(14)
    a(f"""
s_or_b64 s[66:67], s[66:67], s[64:65]
s_cselect_b32 s62, 0x7f800000, 0
s_nop 0
v_readlane_b32 s63, v14, 63
s_nop 3
s_or_b32 s62, s62, s63
v_mov_b32 v14, s62
ds_write_b32 v7, v14
s_waitcnt vmcnt(0)""")
    a.stamp(59)
    a("s_branch L_p1_x2")


def stage_groups(t):
    out = []
    for hf in range(2):
        for i in range(3):
            g = [f"s_add_u32 m0, s{S_DST}, {KV_SLOT[t] + hf * 12288}",
                 f"s_add_u32 s61, s{S_SRC}, {t * 12288 + hf * 32 * 3072}"] if i == 0 else []
            o = f" offset:{1024 * i}" if i else ""
            out.append(g + [f"buffer_load_dwordx4 v{VL16}, s[{WS}:{WS + 3}], s61 offen{o} sc1 lds"])
    return out


def phase2(a, tail):
    addresses(a)
    a("""
L_p1_x2:
s_waitcnt lgkmcnt(0)
s_barrier""")
    a.stamp(8)

    def tile_reads(buf, off):
        if off >= X_OFF:
            va, vv, vk, off = VAX, VV0X, VK4X, off - X_OFF
        else:
            va, vv, vk = VA, VV0, VK4
        return [f"ds_read_b128 {vr(KB[buf], 4)}, v{va} offset:{off}",
                f"ds_read_b64 {vr(KB[buf] + 4, 2)}, v{vk} offset:{off}",
                f"ds_read_b128 {vr(VB[buf], 4)}, v{vv} offset:{off + 1024}",
                f"ds_read_b128 {vr(VB[buf] + 4, 4)}, v{va} offset:{off + 2048}"]

    a(f"""
ds_read_b128 {vr(QA, 4)}, v209
ds_read_b64 {vr(QA + 4, 2)}, v211 offset:1024
ds_read_b128 {vr(QB, 4)}, v210
ds_read_b64 {vr(QB + 4, 2)}, v212 offset:1024
ds_read_b32 v10, v7""")
    for x in tile_reads(0, KV_SLOT[0]):
        a(x)
    a(f"""
v_cmp_eq_u32 s[64:65], 0, v{H}
v_mov_b32 v14, 0
v_mov_b32 v15, 0
v_mov_b32 v{T + 2}, {f32(SAFE_BOUND ** 2)}
s_waitcnt lgkmcnt(4)""")
    for r in (QA + 4, QA + 5, QB + 4, QB + 5):
        a(f"v_cndmask_b32 v{r}, 0, v{r}, s[64:65]")
    for j in range(6):
        a(f"v_dot2_f32_bf16 v14, v{QA + j}, v{QA + j}, v14")
        a(f"v_dot2_f32_bf16 v15, v{QB + j}, v{QB + j}, v15")
    a("s_nop 2")
    a.half_sum(14, T)
    a.half_sum(15, T)
    a(f"""
v_max_f32 v14, v14, v15
v_mul_f32 v14, v10, v14
v_cmp_nle_f32 vcc, v14, v{T + 2}
s_nop 4
s_cbranch_vccnz L_truemax
L_att_start:
s_waitcnt lgkmcnt(0)
{mfma(S0, KB[0], QA, CA)}
{mfma8(S0, KB[0] + 4, QA + 4, S0)}
s_cmp_ge_u32 s{S_W}, 4
s_nop 7
s_nop 2
s_cbranch_scc1 L_att_young""")
    prio = mcommon.OPT.get("prio", "flip")

    def job(cur, nxt, q, c, kb, o_cur, v_cur, o_prev, v_prev, fill, first=False, last=False, fresh=False):
        def ex(g):
            for x in fill[g]:
                a(x)
        if not last:
            a(mfma(nxt, kb, q, c))
        for j in range(0, 4):
            a(f"v_exp_f32 v{cur + j}, v{cur + j}")
        if not first:
            a(mfma(o_prev, v_prev + 4, P + 4, o_prev))
        ex(0)
        for j in range(4, 8):
            a(f"v_exp_f32 v{cur + j}, v{cur + j}")
        a(mfma8(nxt, kb + 4, q + 4, nxt) if not last else "s_nop 0")
        ex(1)
        for j in range(0, 4):
            a(f"v_cvt_pk_bf16_f32 v{P + j}, v{cur + 2 * j}, v{cur + 2 * j + 1}")
        for j in range(8, 12):
            a(f"v_exp_f32 v{cur + j}, v{cur + j}")
        a(mfma(o_cur, v_cur, P, "0" if fresh else o_cur))
        ex(2)
        for j in range(12, 16):
            a(f"v_exp_f32 v{cur + j}, v{cur + j}")
        ex(3)
        for j in range(4, 8):
            a(f"v_cvt_pk_bf16_f32 v{P + j}, v{cur + 2 * j}, v{cur + 2 * j + 1}")

    def stream(svc, waits, stamps):
        for t in range(8):
            for u in range(4):
                b, nb = u % 2, (u + 1) % 2
                ja = 8 * t + 2 * u
                last = t == 7 and u == 3
                fa = [[], [], [], []]
                if u < 3:
                    r = tile_reads(nb, KV_SLOT[t] + (u + 1) * 3072)
                    fa = [r[0:2], [r[2]], [r[3]], []]
                elif not last:
                    r = tile_reads(nb, KV_SLOT[t + 1])
                    fa = [waits.get(t, []) + ["s_barrier"] + r[0:2], [r[2]], [r[3]], []]
                fa = [fa[g] + svc.get((ja, g), []) for g in range(4)]
                if prio == "flip" or (prio == "flip2" and u % 2 == 0):
                    a("s_setprio 1")
                if prio == "flip2" and u % 2 == 1:
                    a("s_setprio 0")
                job(S0, S1, QB, CB, KB[b], OA, VB[b], OB, VB[nb], fa, first=(ja == 0), fresh=(ja == 0))
                if prio == "flip":
                    a("s_setprio 0")
                if not last:
                    a("s_waitcnt lgkmcnt(0)")
                job(S1, S0, QA, CA, KB[nb], OB, VB[b], OA, VB[b], [svc.get((ja + 1, g), []) for g in range(4)], last=last, fresh=(ja == 0))
            if stamps and t in (0, 3):
                a.stamp(11 if t == 0 else 12)
        a(f"s_nop 0\n{mfma(OB, VB[1] + 4, P + 4, OB)}")

    def put(svc, j, g, ins):
        svc.setdefault((j, g), []).extend(ins)

    if prio == "old":
        a("s_setprio 1")
    a.stamp(10)
    a.stamp(60, True)
    svc = {}
    def spread(svc, j0, groups, per_job=3):
        for k, g in enumerate(groups):
            put(svc, j0 + k // per_job, k % per_job, g)
        return j0 + (len(groups) + per_job - 1) // per_job

    spread(svc, 0, stage_groups(1) + stage_groups(2))
    spread(svc, 7, stage_groups(3))
    for t in range(2, 6):
        spread(svc, 8 * t + 7, stage_groups(t + 2))
    put(svc, 56, 3, f"""s_lshl_b32 s60, s{S_RB}, 6
s_lshl_b32 s61, s{S_W}, 4
s_add_u32 s60, s60, s61
v_and_b32 v10, 15, v{LANE}
v_add_u32 v10, s60, v10
v_mul_u32_u24 v10, 1280, v10
v_lshrrev_b32 v12, 4, v{LANE}
v_lshl_add_u32 v10, v12, 3, v10
s_mul_i32 s60, s{S_CB}, 160""".split("\n"))
    spread(svc, 57, [[f"buffer_load_dwordx2 {vr(RES + 2 * m, 2)}, v10, s[{XS}:{XS + 3}], s60 offen offset:{32 * m}"] for m in range(5)])
    stream(svc, {t: [f"s_waitcnt vmcnt({ {0: 6, 1: 6}.get(t, 0) })"] for t in range(7)}, True)
    a.stamp(13)
    a("s_branch L_att_done")

    a("L_att_young:")
    if prio == "young":
        a("s_setprio 1")
    svc = {}
    jt = int(mcommon.OPT.get("touch_at", 7))
    jl = int(mcommon.OPT.get("ps_issue", 17))
    jp = int(mcommon.OPT.get("ps_proc", 22))
    put(svc, jt, 0, f"""s_lshl_b32 s60, s2, 2
s_add_u32 s60, s60, s{S_P}
s_mul_i32 s61, s60, {15 * 128}
v_lshlrev_b32 v10, 7, v{LANE}
v_add_u32 v15, s61, v10
s_mul_i32 s61, s60, {25 * 32}
v_add_u32 v14, s61, v10
v_and_b32 v14, 0xffffff80, v14""".split("\n"))
    put(svc, jt, 2, f"""s_mov_b64 exec, 0x7fff
global_load_dword v{T + 30}, v15, s[{P_W1}:{P_W1 + 1}]
global_load_dword v{T + 31}, v15, s[{P_W3}:{P_W3 + 1}]
global_load_dword v{T + 32}, v15, s[{P_W2}:{P_W2 + 1}]
s_mov_b64 exec, 0x7f
global_load_dword v{T + 33}, v14, s[{P_WO}:{P_WO + 1}]
s_mov_b64 exec, -1""".split("\n"))
    g = []
    for i in range(5):
        g.append([f"s_add_u32 m0, s{S_PSB}, {2048 * i}", f"s_add_u32 s61, s{S_PS + i}, s{S_PI}",
                  f"buffer_load_dwordx4 v{V_PS}, s[{KS}:{KS + 3}], s{S_PS + i} offen lds"])
        g.append([f"s_add_u32 m0, s{S_PSB}, {2048 * i + 1024}", "s_nop 0",
                  f"buffer_load_dwordx4 v{V_PS}, s[{KS}:{KS + 3}], s61 offen lds"])
    spread(svc, jl, g)
    CS, ONE = T + 16, T + 24
    put(svc, jp - 1, 3, [f"v_mov_b32 v{ONE}, 0x3f803f80", f"v_mov_b32 v{ONE + 1}, 0x3f803f80"])
    stride = int(mcommon.OPT.get("ps_stride", 2))
    assert jl + 3 < jp and jp % 2 == 0 and stride % 2 == 0
    for i in range(5):
        ja = jp + stride * i
        put(svc, ja, 1, ["s_waitcnt vmcnt(8)"])
        r = T + 8 * (i % 2)
        for tl in range(2):
            put(svc, ja, 2 + tl, [f"ds_read_b64_tr_b16 {vr(r + 4 * tl, 2)}, v{V_TR} offset:{2048 * i + 32 * tl}",
                                  f"ds_read_b64_tr_b16 {vr(r + 4 * tl + 2, 2)}, v{V_TR} offset:{2048 * i + 32 * tl + 1024}"])
            cs = CS + 4 * tl
            c0 = "0" if i == 0 else vr(cs, 4)
            put(svc, ja + 1, 2 * tl, [f"v_mfma_f32_4x4x4_16b_bf16 {vr(cs, 4)}, {vr(ONE, 2)}, {vr(r + 4 * tl, 2)}, {c0}"])
            put(svc, ja + 1 + (tl * 2 if i < 4 and stride >= 4 else 0), 2 * tl,
                [f"buffer_store_dwordx4 {vr(r + 4 * tl, 4)}, v{VL16}, s[{WS}:{WS + 3}], s{S_PD + 2 * i + tl} offen sc1"])
            put(svc, ja + 1, 2 * tl + 1, [f"v_mfma_f32_4x4x4_16b_bf16 {vr(cs, 4)}, {vr(ONE, 2)}, {vr(r + 4 * tl + 2, 2)}, {vr(cs, 4)}"])
    jf = jp + 4 * stride + 2
    fin = []
    for tl in range(2):
        c, t1, o = CS + 4 * tl, T + 26 + tl, T + 4 * tl
        for width in (32, 16):
            fin += [[f"v_mov_b32 v{t1}, v{c}"], [f"v_permlane{width}_swap_b32 v{c}, v{t1}"], [f"v_add_f32 v{c}, v{c}, v{t1}"]]
        fin += [[f"v_cvt_pk_bf16_f32 v{o}, v{c}, v{c}", f"v_mov_b32 v{o + 2}, 0"],
                [f"v_and_b32 v{t1}, 0xffff0000, v{o}", f"v_sub_f32 v{t1}, v{c}, v{t1}"],
                [f"v_cvt_pk_bf16_f32 v{o + 1}, v{t1}, v{o + 2}", f"v_mov_b32 v{o + 3}, 0"]]
    fin += [[f"v_lshrrev_b32 v10, 4, v{LANE}", f"v_cmp_ne_u32 vcc, s{S_P}, v10"],
            ["v_cndmask_b32 v10, 0, 1, vcc", f"v_lshl_add_u32 v10, v10, 30, v{VL16}"],
            [f"buffer_store_dwordx4 {vr(T + 4 * tl, 4)}, v10, s[{WS}:{WS + 3}], s{S_PE + tl} offen sc1" for tl in range(2)]]
    fin = [fin[k] + fin[9 + k] for k in range(9)] + fin[18:]
    for k, g in enumerate(fin):
        put(svc, jf + k // 4, k % 4, g)
    tf = (jf + (len(fin) - 1) // 4 + 2) // 8
    tf += int(mcommon.OPT.get("ps_tf", 0))
    jg = 8 * tf + 6
    put(svc, jg, 3, f"""s_lshl_b32 s60, s{S_IDX}, 2
s_add_u32 s60, s60, {PSFLG}
v_mov_b32 v10, 0
v_mov_b32 v14, 1
s_cmp_eq_u32 s{S_P}, 0
s_cselect_b32 exec_lo, 1, 0
s_mov_b32 exec_hi, 0
buffer_store_dword v14, v10, s[{WS}:{WS + 3}], s60 offen sc1
s_mov_b64 exec, -1""".split("\n"))
    jc = jg + int(mcommon.OPT.get("ps_gap", 5))
    put(svc, jc, 3, [f"s_mov_b32 s62, {PSFLG}",
                     f"buffer_load_dwordx4 {vr(T, 4)}, v{VL16}, s[{WS}:{WS + 3}], s62 offen sc1"])
    put(svc, jc + 3, 3, f"""s_waitcnt vmcnt(0)
v_and_b32 v{T}, v{T}, v{T + 1}
v_and_b32 v{T + 2}, v{T + 2}, v{T + 3}
v_and_b32 v{T}, v{T}, v{T + 2}
v_cmp_ne_u32 vcc, 1, v{T}
s_mul_i32 s60, s{S_P}, 25600
s_mul_i32 s61, s{S_CB}, 102400
s_add_u32 s61, s61, s60
s_add_u32 s63, s61, {WOF}
s_add_u32 s64, s60, {LDS_WO}
s_cbranch_vccnz L_ps_wait
L_ps_ready:""".split("\n"))
    j = jc + 4
    assert j >= 32, "the start-up K/V slots must be free"
    g = []
    for i in range(25):
        pre = [f"s_add_u32 m0, s64, {4096 * (i // 4)}", f"s_add_u32 s61, s63, {4096 * (i // 4)}"] if i % 4 == 0 else []
        o = f" offset:{1024 * (i % 4)}" if i % 4 else ""
        g.append(pre + [f"buffer_load_dwordx4 v{VL16}, s[{WS}:{WS + 3}], s61 offen{o} sc1 lds"])
    j = spread(svc, j, g, int(mcommon.OPT.get("wo_per", 3)))
    assert j < 63
    put(svc, j, 3, f"""s_lshr_b32 s60, s{S_FB}, 2
s_mul_i32 s60, s60, {4 * 21 * 12288}
s_and_b32 s61, s{S_IDX}, 31
s_lshl_b32 s61, s61, 2
s_add_u32 s61, s61, s{S_P}
s_mul_i32 s61, s61, {63 * 128}
s_add_u32 s60, s60, s61
s_add_u32 s60, s60, {W13F}
v_lshlrev_b32 v10, 7, v{LANE}
buffer_load_dword v{T + 8}, v10, s[{WS}:{WS + 3}], s60 offen sc1""".split("\n"))
    abl = mcommon.OPT.get("abl", "")
    if "p" in abl:
        svc = {k: v for k, v in svc.items() if k[0] >= jg}
    if "w" in abl:
        svc = {k: v for k, v in svc.items() if k[0] <= jc + 3}
    if "t" in abl:
        svc = {k: v for k, v in svc.items() if k[0] != jt}
    for ch, pat in (("l", "s[16:19]"), ("m", "4x4x4"), ("x", "_tr_b16"), ("k", "vmcnt(8)")):
        if ch in abl:
            svc = {k: [x for x in v if pat not in x] for k, v in svc.items()}
    if "f" in abl:
        svc = {k: v for k, v in svc.items() if not (jf <= k[0] < jf + 3)}
    if "o" in abl:
        svc = {k: [x.replace("s[4:7], s7", "s[4:7], s8") if False else x for x in v] for k, v in svc.items()}
        svc = {k: [x.replace(f"v{VL16}, s[{WS}:{WS + 3}], s7", f"v5, s[{WS}:{WS + 3}], s7").replace(f"v{VL16}, s[{WS}:{WS + 3}], s8", f"v5, s[{WS}:{WS + 3}], s8") for x in v] for k, v in svc.items()}
    if mcommon.OPT.get("psaux"):
        svc = {k: [x.replace(" sc1", " " + mcommon.OPT["psaux"].replace("+", " ")) if "buffer_store_dwordx4" in x else x for x in v] for k, v in svc.items()}
    if "n" in abl:
        svc = {k: [x.replace(" sc1", "") if "buffer_store_dwordx4" in x else x for x in v] for k, v in svc.items()}
    if "s" in abl:
        svc = {k: [x for x in v if "buffer_store_dwordx4" not in x] for k, v in svc.items()}
    print('re-layout schedule: fin', jf, 'flag', jg, 'check', jc, 'wo end', j)
    stream(svc, {tf: ["s_waitcnt vmcnt(0)"]}, False)
    a(f"""
L_att_done:
s_setprio 0
s_mul_i32 s60, s{S_W}, 3072
s_xor_b32 s61, s{S_W}, 4
s_mul_i32 s61, s61, 3072
v_add_u32 v10, s60, v{VL16}
v_add_u32 v11, s61, v{VL16}
s_lshl_b32 s62, s{S_RB}, 1
s_add_u32 s62, s62, s{S_HALF}
s_lshl_b32 s35, s{S_RB}, 7
s_lshl_b32 s63, s{S_CB}, 2
s_add_u32 s35, s35, s63
s_add_u32 s35, s35, {OFLG}
s_mul_i32 s62, s62, 40960
s_add_u32 s62, s62, {OF}
s_lshl_b32 s63, s{S_HEAD}, 9
s_add_u32 s63, s63, s62
s_lshr_b32 s64, s{S_HEAD}, 3
s_add_u32 s64, s64, 16
s_lshl_b32 s64, s64, 10
s_add_u32 s64, s64, s62
s_bfe_u32 s65, s{S_HEAD}, 0x20001
s_lshl_b32 s65, s65, 8
s_add_u32 s64, s64, s65
s_and_b32 s65, s{S_HEAD}, 1
s_lshl_b32 s65, s65, 3
s_add_u32 s64, s64, s65
v_lshrrev_b32 v12, 4, v{TOK}
v_mul_u32_u24 v12, 20480, v12
v_and_b32 v13, 15, v{TOK}
v_lshl_add_u32 v12, v13, 4, v12
v_lshl_add_u32 v13, v{H}, 8, v12
v_lshl_add_u32 v12, v{H}, 30, v12""")
    for j in range(3):
        a(f"ds_write_b128 v10, {vr(OB + 4 * j, 4)} offset:{1024 * j}")
    a("s_waitcnt lgkmcnt(0)\ns_barrier")
    a.stamp(30)
    a.stamp(54, True)
    for j in range(3):
        a(f"ds_read_b128 {vr(T + 12 + 4 * j, 4)}, v11 offset:{1024 * j}")
    a("s_waitcnt lgkmcnt(0)")
    for j in range(12):
        a(f"v_add_f32 v{OA + j}, v{OA + j}, v{T + 12 + j}")
    a(f"""
v_mov_b32 v14, v{OA + 8}
v_mov_b32 v15, v{OA + 8}
s_nop 1
v_permlane32_swap_b32 v14, v15
s_nop 1
v_rcp_f32 v15, v15
s_nop 0""")
    for j in range(12):
        a(f"v_mul_f32 v{OA + j}, v{OA + j}, v15")
    for j in range(6):
        a(f"v_cvt_pk_bf16_f32 v{T + j}, v{OA + 2 * j}, v{OA + 2 * j + 1}")
    a(f"""
buffer_store_dwordx4 {vr(T, 4)}, v13, s[{WS}:{WS + 3}], s63 offen sc1""")
    if "r" not in mcommon.OPT.get("abl", ""):
        a(f"buffer_store_dwordx2 {vr(T + 4, 2)}, v12, s[{WS}:{WS + 3}], s64 offen sc1")
    if "v" in mcommon.OPT.get("abl", ""):
        a("s_waitcnt vmcnt(2)")
    a.stamp(14)
    a("s_waitcnt vmcnt(0)")
    a.stamp(55)
    a(f"s_cmp_lg_u32 s{S_W}, 0\nv_mov_b32 v10, 0\nv_mov_b32 v12, 1\ns_cselect_b32 s60, 0, 1\ns_barrier")
    a(f"""
s_mov_b32 exec_lo, s60
s_mov_b32 exec_hi, 0
buffer_store_dword v12, v10, s[{WS}:{WS + 3}], s35 offen sc1
s_mov_b64 exec, -1""")

    b = tail
    b(f"""
L_ps_wait:
s_mov_b32 s60, 0
L_ps_spin:
buffer_load_dwordx4 {vr(T, 4)}, v{VL16}, s[{WS}:{WS + 3}], s62 offen sc1
s_add_u32 s60, s60, 1
s_waitcnt vmcnt(0)
v_and_b32 v{T}, v{T}, v{T + 1}
v_and_b32 v{T + 2}, v{T + 2}, v{T + 3}
v_and_b32 v{T}, v{T}, v{T + 2}
v_cmp_ne_u32 vcc, 1, v{T}
s_nop 4
s_cbranch_vccz L_ps_ready
s_cmp_lt_u32 s60, {SPIN_LIMIT}
s_cbranch_scc1 L_ps_spin
s_branch L_ps_ready""")
    MA, MB = T + 8, T + 9
    b(f"""
L_truemax:
v_mov_b32 v{MA}, 0xff800000
v_mov_b32 v{MB}, 0xff800000
s_mul_i32 s60, s{S_HALF}, 12288
v_subrev_u32 v10, s60, v{VK4}
s_mov_b32 s60, {KV}
L_tm_loop:
buffer_load_dwordx4 {vr(T, 4)}, v{VL16}, s[{WS}:{WS + 3}], s60 offen sc1
buffer_load_dwordx2 {vr(T + 4, 2)}, v10, s[{WS}:{WS + 3}], s60 offen sc1
s_waitcnt vmcnt(0)
{mfma(S0, T, QA, "0")}
{mfma(S1, T, QB, "0")}
{mfma8(S0, T + 4, QA + 4, S0)}
{mfma8(S1, T + 4, QB + 4, S1)}
s_nop 7
s_nop 7""")
    for j in range(8):
        b(f"v_max3_f32 v{MA}, v{S0 + 2 * j}, v{S0 + 2 * j + 1}, v{MA}")
        b(f"v_max3_f32 v{MB}, v{S1 + 2 * j}, v{S1 + 2 * j + 1}, v{MB}")
    b(f"""
s_add_u32 s60, s60, 3072
s_cmp_lt_u32 s60, {KV + 64 * 3072}
s_cbranch_scc1 L_tm_loop""")
    b.half_max(MA, T)
    b.half_max(MB, T)
    for j in range(16):
        b(f"v_sub_f32 v{CA + j}, 0, v{MA}")
        b(f"v_sub_f32 v{CB + j}, 0, v{MB}")
    b("s_nop 1\ns_branch L_att_start")
```

```python
from mcommon import *
import mcommon

LDS_WR = 81920
LDS_KVW = 131072
LDS_Q = LDS_WR + 2 * 12288
LDS_PS = LDS_Q
W_LDS = [LDS_WR + 12288 * c for c in range(4)] + [LDS_KVW, LDS_KVW + 12288] + [12288 * c for c in range(4)]
LDS_MISC = 155648
LDS_PART = LDS_KVW + 26368
LDS_SYNC = 163600
LDS_READY = 163584
QSCALE = 20 ** -0.5 * LOG2E
SAFE_V = 2.0 ** 30
CA_INIT = (104, 136)


def phase1(a, tail, young_prep, young_tail):
    XR, T8, SUB = 16, 62, 63
    a(f"""
s_cmp_ge_u32 s2, 256
s_cbranch_scc1 L_end
s_load_dwordx8 s[36:43], s[0:1], 0
s_load_dwordx4 s[56:59], s[0:1], 80
s_load_dwordx2 s[44:45], s[0:1], 32
s_load_dwordx8 s[48:55], s[0:1], 48
v_lshrrev_b32 v1, 6, v0
v_and_b32 v{LANE}, 63, v0
v_readfirstlane_b32 s{S_W}, v1""")
    if mcommon.OPT.get("codepf", "1") == "1":
        a(f"""
s_getpc_b64 s[72:73]
L_pc:
s_sub_u32 s72, s72, L_pc-{a.name}
s_subb_u32 s73, s73, 0
s_lshr_b32 s60, s2, 3
s_lshl_b32 s60, s60, 3
s_add_u32 s60, s60, s{S_W}
s_lshl_b32 s60, s60, 7
v_lshlrev_b32 v4, 15, v{LANE}
v_add_u32 v4, s60, v4
v_min_u32 v4, L_code_end-{a.name}-4, v4
s_mov_b64 exec, 7
global_load_dword v253, v4, s[72:73]
s_mov_b64 exec, -1""")
    a(f"""
s_and_b32 s60, s2, 7
s_lshr_b32 s61, s2, 3
s_lshl_b32 s{S_RB}, s60, 2
s_and_b32 s62, s61, 3
s_add_u32 s{S_RB}, s{S_RB}, s62
s_lshr_b32 s{S_CB}, s61, 2
s_lshl_b32 s{S_IDX}, s60, 5
s_add_u32 s{S_IDX}, s{S_IDX}, s61
s_lshr_b32 s{S_HALF}, s{S_W}, 2
s_and_b32 s{S_P}, s{S_W}, 3
s_lshl_b32 s{S_HEAD}, s{S_CB}, 2
s_add_u32 s{S_HEAD}, s{S_HEAD}, s{S_P}
s_and_b32 s62, s60, 1
s_lshl_b32 s62, s62, 3
s_and_b32 s63, s61, 7
s_add_u32 s{S_RB2}, s62, s63
s_lshr_b32 s62, s60, 1
s_lshl_b32 s62, s62, 2
s_lshr_b32 s63, s61, 3
s_add_u32 s{S_FB}, s62, s63
v_lshlrev_b32 v{VL16}, 4, v{LANE}
s_mul_i32 s32, s{S_CB}, 160
v_mov_b32 v4, {LDS_READY}
v_mov_b32 v6, 0
v_mov_b32 v7, 0
v_mov_b32 v8, 0
v_mov_b32 v9, 0
ds_write_b128 v4, v[6:9]
ds_write_b128 v4, v[6:9] offset:16
ds_write_b128 v4, v[6:9] offset:32
s_and_b32 s60, s{S_CB}, 6
s_add_u32 s60, s60, s{S_W}
s_and_b32 s31, s60, 7
s_lshl_b32 s60, s{S_RB}, 6
s_lshl_b32 s61, s31, 3
s_add_u32 s60, s60, s61
v_lshrrev_b32 v{T8}, 3, v{LANE}
v_and_b32 v{SUB}, 7, v{LANE}
v_add_u32 v5, s60, v{T8}
v_mul_u32_u24 v5, 1280, v5
v_lshl_add_u32 v5, v{SUB}, 4, v5
s_waitcnt lgkmcnt(0)
s_barrier""")
    a.stamp(0)
    a.stamp(1, True)
    a.srd(XS, P_X, 2048 * 1280)
    a.srd(WS, P_WS, WS_USED)
    a(f"""
s_and_b32 s60, s{S_IDX}, 31
s_lshl_b32 s60, s60, 3
s_add_u32 s35, s60, s{S_W}
s_cmp_lg_u32 s35, {31 * 8 + 3}
s_cbranch_scc1 L_p1_noclear
s_lshr_b32 s61, s{S_IDX}, 5
s_mul_i32 s60, s61, {FLG_BYTES // 8}
s_add_u32 s60, s60, {FLG}
v_mov_b32 v180, 0
v_mov_b32 v181, 0
v_mov_b32 v182, 0
v_mov_b32 v183, 0""")
    for i in range(FLG_BYTES // 8192):
        if i and i % 4 == 0:
            a("s_add_u32 s60, s60, 4096")
        a(f"buffer_store_dwordx4 v[180:183], v{VL16}, s[{WS}:{WS + 3}], s60 offen offset:{1024 * (i % 4)} sc1")
    a("L_p1_noclear:")
    xaux = " nt" if mcommon.OPT.get("xnt", "1") == "1" else ""
    for i in range(10):
        a(f"buffer_load_dwordx4 {vr(XR + 4 * i, 4)}, v5, s[{XS}:{XS + 3}], 0 offen offset:{128 * i}{xaux}")
    a(f"""
s_bitcmp1_b32 s{S_CB}, 0
s_cselect_b32 s{P_WK}, s{P_WV}, s{P_WK}
s_cselect_b32 s{P_WK + 1}, s{P_WV + 1}, s{P_WK + 1}""")
    a.srd(KS, P_WK, 640 * 40)
    a(f"""
s_mul_i32 s66, s{S_P}, 7168
s_add_u32 s65, s66, {LDS_KVW}
s_cmp_ge_u32 s{S_W}, 4
s_cbranch_scc1 L_p1_nokvw""")
    for i in range(7):
        if i == 4:
            a("s_add_u32 s65, s65, 4096\ns_add_u32 s66, s66, 4096")
        a.dma(VL16, KS, "s66", "s65" if i % 4 == 0 else None, imm=1024 * (i % 4))
    a("L_p1_nokvw:")
    a.srd(TS, P_WQ, 640 * 1280)
    a.srd(DS, P_DBG, 256)

    def w_voffs(sbase):
        for i in range(3):
            a(f"""
v_add_u32 v6, s{sbase}, v{LANE}
v_add_u32 v6, {64 * i}, v6
v_mul_u32_u24 v7, 43691, v6
v_lshrrev_b32 v7, 19, v7
v_mul_u32_u24 v8, 12, v7
v_sub_u32 v8, v6, v8
v_mul_u32_u24 v7, 1280, v7
v_lshl_add_u32 v{9 + i}, v8, 4, v7""")

    a(f"s_mul_i32 s61, s{S_P}, 192")
    w_voffs(61)
    SA, SB, QA, QB, RS, NB = 56, 57, 58, 59, 60, 61
    a(f"""
v_mov_b32 v{SA}, 0
v_mov_b32 v{SB}, 0
v_mov_b32 v{QA}, 0
v_mov_b32 v{QB}, 0
s_mov_b32 s67, 0x3f803f80
s_lshr_b32 s60, s31, 2
s_mul_i32 s60, s60, 40960
s_and_b32 s61, s31, 3
s_lshl_b32 s61, s61, 7
s_add_u32 s60, s60, s61
v_xor_b32 v6, v{T8}, v{SUB}
v_lshlrev_b32 v6, 4, v6
v_lshlrev_b32 v7, 9, v{SUB}
v_add3_u32 v13, v6, v7, s60""")
    for cls, younger in enumerate((7, 12)):
        if cls == 0:
            a(f"s_cmp_ge_u32 s{S_W}, 4\ns_cbranch_scc1 L_p1_stat_y")
        else:
            a(f"s_mul_i32 s63, s{S_P}, 3072\ns_add_u32 s63, s63, {LDS_WR}")
            for c in range(4):
                a(f"s_add_u32 s64, s32, {c * 64 * 1280}")
                for i in range(3):
                    a(f"s_add_u32 m0, s63, {c * 12288 + i * 1024}\ns_nop 0")
                    a(f"buffer_load_dwordx4 v{9 + i}, s[{TS}:{TS + 3}], s64 offen lds")
        for i in range(10):
            a(f"s_waitcnt vmcnt({9 + younger - i})")
            if i == 0:
                a.stamp(2)
            for j in range(4):
                r = XR + 4 * i + j
                s, q = (SA, QA) if j % 2 == 0 else (SB, QB)
                a(f"v_dot2_f32_bf16 v{s}, v{r}, s67, v{s}")
                a(f"v_dot2_f32_bf16 v{q}, v{r}, v{r}, v{q}")
        if cls == 0:
            a(f"v_lshlrev_b32 v7, 2, v{LANE}\nbuffer_load_dword v82, v7, s[{DS}:{DS + 3}], 0 offen sc1")
            a("s_branch L_p1_stat_done\nL_p1_stat_y:")
    a("L_p1_stat_done:")
    a.stamp(3)
    a(f"""
s_cmp_lg_u32 s35, {31 * 8 + 3}
s_cbranch_scc1 L_p1_noreport
s_lshr_b32 s61, s{S_IDX}, 5
s_lshl_b32 s61, s61, 2""")
    a.set_flag(180, 181, DS, "s61")
    a(f"""
L_p1_noreport:
s_nop 2
v_add_f32 v{SA}, v{SA}, v{SB}
v_add_f32 v{QA}, v{QA}, v{QB}""")
    for m in ("quad_perm:[1,0,3,2]", "quad_perm:[2,3,0,1]", "row_half_mirror"):
        a(f"""
s_nop 1
v_add_f32_dpp v{SA}, v{SA}, v{SA} {m} row_mask:0xf bank_mask:0xf
v_add_f32_dpp v{QA}, v{QA}, v{QA} {m} row_mask:0xf bank_mask:0xf""")
    a(f"""
s_nop 0
v_mul_f32 v{SA}, {f32(1 / 640)}, v{SA}
v_mul_f32 v{QA}, {f32(1 / 640)}, v{QA}
v_fma_f32 v{QA}, -v{SA}, v{SA}, v{QA}
v_max_f32 v{QA}, 0, v{QA}
v_add_f32 v{QA}, {f32(1e-5)}, v{QA}
v_rsq_f32 v{RS}, v{QA}
s_nop 0
v_mul_f32 v{NB}, v{SA}, v{RS}
v_sub_f32 v{NB}, 0, v{NB}""")
    TN = [64, 72]

    def unpack(i):
        for j in range(4):
            r, t = XR + 4 * i + j, TN[i % 2] + 2 * j
            a(f"v_lshlrev_b32 v{t}, 16, v{r}\nv_and_b32 v{t + 1}, 0xffff0000, v{r}")

    unpack(0)
    for i in range(10):
        for j in range(4):
            t = TN[i % 2] + 2 * j
            a(f"v_pk_fma_f32 v[{t}:{t + 1}], v[{t}:{t + 1}], v[{RS}:{RS + 1}], v[{RS}:{RS + 1}] op_sel:[0,0,1] op_sel_hi:[1,0,1]")
        if i < 9:
            unpack(i + 1)
        for j in range(4):
            t = TN[i % 2] + 2 * j
            a(f"v_cvt_pk_bf16_f32 v{XR + 4 * i + j}, v{t}, v{t + 1}")
        a(f"ds_write_b128 v13, {vr(XR + 4 * i, 4)} offset:{4096 * i}")
    a.stamp(4)
    BA, WA, KA, H, TOK = 84, 8, 14, 80, 81
    ACC0, ACC1, BUF = 16, 32, 48
    S_WN, S_WM = 33, 34
    a(f"""
s_and_b32 s{S_WN}, s{S_W}, 1
s_bfe_u32 s{S_WM}, s{S_W}, 0x10001
v_lshrrev_b32 v{H}, 5, v{LANE}
v_and_b32 v{TOK}, 31, v{LANE}
s_mul_i32 s60, s{S_WN}, 40960
v_and_b32 v12, 24, v{TOK}
v_and_b32 v13, 7, v{TOK}
v_lshlrev_b32 v93, 9, v{H}""")
    for q in range(4):
        a(f"""
v_or_b32 v15, {2 * q}, v{H}
v_xor_b32 v15, v15, v13
v_or_b32 v15, v15, v12
v_lshl_add_u32 v15, v15, 4, v93
v_add_u32 v15, s60, v15
v_add_u32 v{BA + q}, {1024 * q}, v15""")
    a(f"""
v_bfe_u32 v12, v{LANE}, 2, 2
v_lshl_add_u32 v12, v{H}, 3, v12
v_bfe_u32 v13, v{LANE}, 4, 1
v_lshlrev_b32 v13, 5, v13
v_and_b32 v15, 3, v{LANE}
v_lshl_add_u32 v13, v15, 3, v13
v_mul_u32_u24 v15, 192, v12
v_add_u32 v15, v15, v13
s_lshl_b32 s60, s{S_WM}, 7
v_add_u32 v94, s60, v15
v_add_u32 v{WA}, {LDS_WR}, v94
v_add_u32 v95, {LDS_KVW}, v94
v_mul_u32_u24 v15, 40, v12
v_add_u32 v15, v15, v13
v_add_u32 v{KA}, {LDS_KVW}, v15""")
    def ring():
        sq = []

        def chunk(c):
            a(f"s_add_u32 s64, s32, {c * 64 * 1280}")
            for i in range(3):
                a(f"s_add_u32 m0, s31, {W_LDS[c] + i * 1024}\ns_nop 0")
                a(f"buffer_load_dwordx4 v{96 + i}, s[{TS}:{TS + 3}], s64 offen lds")
                sq.append(c)

        def wait_for(tag):
            last = max(i for i, x in enumerate(sq) if x == tag)
            a(f"s_waitcnt vmcnt({len(sq) - 1 - last})")

        a(f"s_mul_i32 s31, s{S_P}, 3072\nv_mov_b32 v96, v9\nv_mov_b32 v97, v10\nv_mov_b32 v98, v11")
        a(f"buffer_load_dword v8, v7, s[{DS}:{DS + 3}], 0 offen sc1")
        sq.append("clr")
        chunk(4)
        chunk(5)
        young_prep(a, 1)
        a("s_barrier")
        for c in range(6, 10):
            chunk(c)
        wait_for(5)
        a("s_barrier")
        a(f"""
v_cmp_gt_u32 s[60:61], 8, v{LANE}
v_cmp_ne_u32 vcc, 1, v8
s_nop 4
s_and_b64 s[60:61], vcc, s[60:61]
s_cbranch_scc0 L_clr_ok""")
        a.poll(7, 8, DS, "0", 8)
        a("L_clr_ok:")
        young_prep(a, 0)
        young_prep(a, 2)
        wait_for(7)
        a("s_barrier")
        young_prep(a, 10)
        wait_for(9)
        a("s_barrier")
        young_prep(a, 11)

    KACC, AB, BB, VB0, VA0, Q4, T16 = 16, 24, 96, 88, 90, 91, 92

    def lds_wait(off, regs, tag):
        a(f"""
v_mov_b32 v12, {LDS_SYNC}
s_mov_b32 s60, 0
L_lw_{tag}:
ds_read_b128 v[76:79], v12 offset:{off}
s_add_u32 s60, s60, 1
s_waitcnt lgkmcnt(0)""")
        a(f"v_and_b32 v76, v{regs[0]}, v{regs[1]}")
        for r in regs[2:]:
            a(f"v_and_b32 v76, v76, v{r}")
        a(f"""
s_cmp_ge_u32 s60, {SPIN_LIMIT * 16}
s_cbranch_scc1 L_lw_done_{tag}
v_readfirstlane_b32 s61, v76
s_nop 3
s_cmp_eq_u32 s61, 0
s_cbranch_scc1 L_lw_{tag}
L_lw_done_{tag}:""")

    def lds_set(off):
        a(f"""
s_lshl_b32 s60, s{S_P}, 2
s_add_u32 s60, s60, {LDS_SYNC + off}
v_mov_b32 v76, s60
v_mov_b32 v77, 1
ds_write_b32 v76, v77""")

    def project():
        a(f"""
v_lshrrev_b32 v{Q4}, 4, v{LANE}
v_and_b32 v{T16}, 15, v{LANE}
s_lshr_b32 s63, s{S_CB}, 1
s_and_b32 s60, s63, 1
s_lshr_b32 s61, s63, 1
s_mul_i32 s62, s61, 40960
s_lshl_b32 s64, s60, 8
s_add_u32 s62, s62, s64
s_mul_i32 s64, s{S_P}, 10240
s_add_u32 s62, s62, s64
s_and_b32 s64, s{S_P}, 1
s_lshl_b32 s64, s64, 2
v_and_b32 v12, 8, v{T16}
v_and_b32 v13, 7, v{T16}
v_lshlrev_b32 v15, 9, v{Q4}
v_add_u32 v15, s62, v15
v_xor_b32 v13, v13, v{Q4}
v_or_b32 v14, v12, v13
v_xor_b32 v14, s64, v14
v_lshl_add_u32 v{VB0}, v14, 4, v15
v_xor_b32 v14, 4, v14
v_lshl_add_u32 v{VB0 + 1}, v14, 4, v15
v_bfe_u32 v12, v{LANE}, 2, 2
v_lshl_add_u32 v12, v{Q4}, 3, v12
v_mul_u32_u24 v12, 40, v12
v_and_b32 v13, 3, v{LANE}
v_lshl_add_u32 v12, v13, 3, v12
s_mul_i32 s64, s{S_P}, 6400
s_add_u32 s64, s64, {LDS_KVW}
v_add_u32 v{VA0}, s64, v12""")

        def rd(S):
            b = AB + 8 * S
            a(f"ds_read_b128 {vr(BB + 4 * S, 4)}, v{VB0 + S % 2} offset:{2048 * S}")
            for mt in range(2):
                a(f"ds_read_b64_tr_b16 {vr(b + 4 * mt, 2)}, v{VA0} offset:{1280 * S + 32 * mt}")
                a(f"ds_read_b64_tr_b16 {vr(b + 4 * mt + 2, 2)}, v{VA0} offset:{1280 * S + 32 * mt + 160}")
        for S in range(3):
            rd(S)
        a(f"""
s_lshl_b32 s64, s{S_RB}, 1
s_add_u32 s64, s64, s61
s_mul_i32 s65, s64, 3072
s_add_u32 s65, s65, {KV}
s_lshl_b32 s64, s{S_RB}, 2
s_add_u32 s64, s64, s63
s_lshl_b32 s64, s64, 2
s_add_u32 s64, s64, {KN}
s_mov_b32 s35, s60
s_lshl_b32 s61, s{S_P}, 11
s_add_u32 s61, s61, {LDS_PART - 2048}
v_add_u32 v12, s61, v{VL16}
s_bitcmp1_b32 s{S_CB}, 0
s_cbranch_scc1 L_kv_v""")
        for kind in "kv":
            for S in range(5):
                a(f"s_waitcnt lgkmcnt({5 * min(2, 4 - S)})")
                b, bb = AB + 8 * S, BB + 4 * S
                for mt in range(2):
                    c = "0" if S == 0 else KACC + 4 * mt
                    a(mfma16(KACC + 4 * mt, b + 4 * mt, bb, c) if kind == "k" else mfma16(KACC + 4 * mt, bb, b + 4 * mt, c))
                if S + 3 < 5:
                    rd(S + 3)
            if kind == "k":
                a("s_branch L_kv_part\nL_kv_v:")
        a(f"""
L_kv_part:
s_cmp_eq_u32 s{S_P}, 0
s_nop 7
s_cbranch_scc1 L_kv_kept
ds_write_b128 v12, {vr(KACC, 4)}
ds_write_b128 v12, {vr(KACC + 4, 4)} offset:1024
s_waitcnt lgkmcnt(0)""")
        lds_set(16)
        if mcommon.OPT.get("wtouch", "1") == "1":
            a(f"""
s_and_b32 s60, s{S_RB}, 3
s_mul_i32 s60, s60, 3
s_add_u32 s60, s60, s{S_P}
s_sub_u32 s60, s60, 1
s_mul_i32 s60, s60, {32 * 1280}
s_add_u32 s60, s60, {256 * 1280}
s_add_u32 s60, s60, s32
v_lshrrev_b32 v12, 1, v{LANE}
v_mul_u32_u24 v12, 1280, v12
v_and_b32 v13, 1, v{LANE}
v_mul_u32_u24 v13, 156, v13
v_add_u32 v12, v12, v13
buffer_load_dword v83, v12, s[{TS}:{TS + 3}], s60 offen""")
        a("s_branch L_kv_done\nL_kv_kept:")

    def gather():
        a(f"v_add_u32 v12, {LDS_PART}, v{VL16}")
        for q in range(6):
            a(f"ds_read_b128 {vr(32 + 4 * q, 4)}, v12 offset:{1024 * q}")
        for q in range(3):
            a(f"s_waitcnt lgkmcnt({4 - 2 * q})")
            for j in range(8):
                a(f"v_add_f32 v{KACC + j}, v{KACC + j}, v{32 + 8 * q + j}")

    def finish(kind):
        a(f"""
v_and_b32 v12, 1, v{Q4}
v_lshlrev_b32 v12, 9, v12
v_lshrrev_b32 v13, 1, v{Q4}
v_lshl_add_u32 v12, v13, 3, v12
v_lshl_add_u32 v12, v{T16}, 4, v12
s_mov_b32 s60, s35""")
        for j in range(4):
            a(f"v_cvt_pk_bf16_f32 v{24 + j}, v{KACC + 2 * j}, v{KACC + 2 * j + 1}")
        if kind == "k":
            a(f"""
s_lshl_b32 s61, s60, 8
s_add_u32 s61, s61, s65
buffer_store_dwordx2 v[24:25], v12, s[{WS}:{WS + 3}], s61 offen sc1
v_lshlrev_b32 v13, 3, v{T16}
v_lshl_add_u32 v13, v{Q4}, 28, v13
s_lshl_b32 s61, s60, 9
s_add_u32 s61, s61, s65
v_cmp_eq_u32 s[66:67], 0, v{Q4}
v_mul_f32 v28, v{KACC + 4}, v{KACC + 4}
buffer_store_dwordx2 v[26:27], v13, s[{WS}:{WS + 3}], s61 offen offset:{1024 + 336} sc1""")
            for j in range(5, 8):
                a(f"v_fmac_f32 v28, v{KACC + j}, v{KACC + j}")
            a("v_cndmask_b32 v28, 0, v28, s[66:67]")
            for j in range(4):
                a(f"v_fmac_f32 v28, v{KACC + j}, v{KACC + j}")
            a.quad_sum(28, 29)
        else:
            a(f"""
s_lshl_b32 s61, s60, 10
s_add_u32 s61, s61, s65
buffer_store_dwordx2 v[24:25], v12, s[{WS}:{WS + 3}], s61 offen offset:1024 sc1
v_cmp_gt_u32 s[66:67], 4, v{T16}
v_cmp_eq_u32 s[68:69], 4, v{T16}
v_mov_b32 v29, 0x3f803f80
s_cmp_eq_u32 s60, 0
s_cselect_b32 s62, 0x001f001f, -1
v_cndmask_b32 v29, 0, v29, s[68:69]
v_cndmask_b32 v26, v29, v26, s[66:67]
v_cndmask_b32 v27, v29, v27, s[66:67]
v_max3_f32 v28, |v{KACC + 4}|, |v{KACC + 5}|, |v{KACC + 6}|
v_max_f32 v28, |v{KACC + 7}|, v28
s_mov_b32 exec_lo, s62
s_mov_b32 exec_hi, s62
buffer_store_dwordx2 v[26:27], v12, s[{WS}:{WS + 3}], s61 offen offset:1280 sc1
s_mov_b64 exec, -1
v_cndmask_b32 v28, 0, v28, s[66:67]
v_max3_f32 v28, |v{KACC}|, |v{KACC + 1}|, v28
v_max3_f32 v28, |v{KACC + 2}|, |v{KACC + 3}|, v28""")
        a.wave_max(28)
        a(f"""
v_mov_b32 v12, 0
s_mov_b32 exec_lo, 0
s_mov_b32 exec_hi, 0x80000000
buffer_store_dword v28, v12, s[{WS}:{WS + 3}], s64 offen{'' if kind == 'k' else ' offset:512'} sc1
s_mov_b64 exec, -1""")

    a(f"""
s_cmp_lt_u32 s{S_W}, 4
s_cbranch_scc1 L_p1_compute""")
    a(f"""
v_lshlrev_b32 v7, 2, v{LANE}
s_waitcnt vmcnt(0) lgkmcnt(0)""")
    a.stamp(56)
    a(f"""
s_barrier""")
    ring()
    a("L_p1_ring_done:")
    young_tail(a)
    a(f"""
L_p1_compute:
s_waitcnt vmcnt(1) lgkmcnt(0)""")
    a.stamp(27)
    lds_set(0)
    lds_wait(0, (76, 77, 78, 79), "a")
    a.stamp(28)
    project()
    a.stamp(29)
    lds_wait(16, (77, 78, 79), "b")
    gather()
    a(f"s_bitcmp1_b32 s{S_CB}, 0\ns_cbranch_scc1 L_kv_fin_v")
    finish("k")
    a("s_branch L_kv_pub\nL_kv_fin_v:")
    finish("v")
    a(f"""
L_kv_pub:""")
    a.stamp(7)
    a("L_kv_done:")
    a(f"s_min_u32 s35, s{S_W}, 1\ns_waitcnt lgkmcnt(0)\ns_barrier")
    a.stamp(5)
    a(f"""
s_cmp_eq_u32 s{S_WM}, 0
s_cbranch_scc0 L_p1_mq""")

    checks = list(range(int(mcommon.OPT.get("kv0", 2)), int(mcommon.OPT.get("kv1", 24)) + 1, 2))
    BR = 96
    nb = int(mcommon.OPT.get("nb", 5))
    last_b = (38 - 2 + nb - 1) // nb

    def mainloop(kind):
        lds = []

        def a_reads(s):
            b = BUF + 8 * (s % 4)
            c, sg = divmod(s, 4)
            base = W_LDS[c] + sg * 3072
            if base >= LDS_KVW:
                reg, off = 95, base - LDS_KVW
            elif base >= LDS_WR:
                reg, off = WA, base - LDS_WR
            else:
                reg, off = 94, base
            out = []
            for tl in range(2 if kind == "m01" else 1):
                out += [(f"ds_read_b64_tr_b16 {vr(b + 4 * tl, 2)}, v{reg} offset:{off + 64 * tl}", ("a", s)),
                        (f"ds_read_b64_tr_b16 {vr(b + 4 * tl + 2, 2)}, v{reg} offset:{off + 64 * tl + 768}", ("a", s))]
            return out

        def b_read(s):
            return (f"ds_read_b128 {vr(BR + 4 * (s % 39), 4)}, v{BA + s % 4} offset:{(s // 4) * 4096}", ("b", s))

        def emit(ops):
            for x, tag in ops:
                a(x)
                if tag:
                    lds.append(tag)

        emit([b_read(0)] + a_reads(0) + [b_read(1)] + a_reads(1))
        nxt = 2
        for s in range(40):
            last = max(i for i, x in enumerate(lds) if x in (("a", s), ("b", s)))
            a(f"s_waitcnt lgkmcnt({min(len(lds) - 1 - last, 15)})")
            b, br = BUF + 8 * (s % 4), BR + 4 * (s % 39)
            r = a_reads(s + 2) if s + 2 < 40 else []
            if s + 2 in (16, 24, 32):
                r = [("s_barrier", None)] + r
            for _ in range(nb):
                if nxt < 40 and (nxt < 39 or s >= 1):
                    r.append(b_read(nxt))
                    nxt += 1
            if 20 <= s < 36:
                r += [(f"v_mov_b32 v{CA_INIT[0] + 2 * (s - 20) + k}, 0", None) for k in range(2)]
            c0, c1 = ("0", "0") if s == 0 else (ACC0, ACC1)
            if kind == "m01":
                a(mfma(ACC1, b + 4, br, c1))
                h = (len(r) + 1) // 2
                emit(r[:h])
                r = r[h:]
            a(mfma(ACC0, b, br, c0))
            emit(r)
            if s == last_b:
                assert nxt == 40
                a("s_waitcnt lgkmcnt(0)\ns_barrier")
            if kind == "m01" and s in checks:
                if s != checks[-1]:
                    a(f"s_getreg_b32 s60, hwreg(HW_REG_IB_STS, 0, 4)\ns_or_b32 s60, s60, s35\ns_cmp_eq_u32 s60, 0")
                else:
                    a("s_cmp_eq_u32 s35, 0")
                a(f"s_cbranch_scc1 L_kv_publish{s}\nL_kv_published{s}:")
        a.stamp(6)

    def qoff(cg):
        return (cg // 5) * 3072 + [0, 512, 8, 520, 1024][cg % 5]

    def qwrite(tiles):
        a(f"""
s_mul_i32 s60, s{S_WN}, 1536
v_lshl_add_u32 v12, v{TOK}, 4, s60
v_xor_b32 v13, 1, v{H}
s_mov_b32 s62, {f32(QSCALE)}
s_nop 7""")
        k = 0
        for acc, m, groups in tiles:
            for g in range(groups):
                lo, up = qoff(8 * m + 2 * g), qoff(8 * m + 2 * g + 1)
                base = min(lo, up)
                sel = H if up > lo else 13
                r = acc + 4 * g
                t = 4 + 2 * (k % 2)
                k += 1
                a(f"""
s_mov_b32 s61, {abs(up - lo)}
v_mul_f32 v{r}, s62, v{r}
v_mul_f32 v{r + 1}, s62, v{r + 1}
v_mul_f32 v{r + 2}, s62, v{r + 2}
v_mul_f32 v{r + 3}, s62, v{r + 3}
v_mad_u32_u24 v14, v{sel}, s61, v12
v_add_u32 v14, {LDS_Q + base}, v14
v_cvt_pk_bf16_f32 v{t}, v{r}, v{r + 1}
v_cvt_pk_bf16_f32 v{t + 1}, v{r + 2}, v{r + 3}
ds_write_b64 v14, {vr(t, 2)}""")

    mainloop("m01")
    qwrite([(ACC1, 1, 4), (ACC0, 0, 4)])
    a("s_branch L_p1_q_done\nL_p1_mq:")
    mainloop("q")
    qwrite([(ACC0, 2, 2)])
    a("L_p1_q_done:")
    for ck in checks:
        tail(f"""
L_kv_publish{ck}:
v_cmp_gt_u32 s[60:61], 8, v{LANE}
s_waitcnt vmcnt(0)
v_cmp_ne_u32 vcc, 1, v82
s_mov_b32 s35, 1
s_nop 3
s_and_b64 s[60:61], vcc, s[60:61]
s_cbranch_scc0 L_kv_clr{ck}""")
        tail.poll(7, 82, DS, "0", 8)
        tail(f"""
L_kv_clr{ck}:
s_lshl_b32 s61, s{S_RB}, 7
s_add_u32 s61, s61, {KVFLG}
v_mov_b32 v12, 0
v_mov_b32 v13, 1
s_mov_b64 exec, 1
buffer_atomic_add v13, v12, s[{WS}:{WS + 3}], s61 offen sc1
s_mov_b64 exec, -1""")
        tail.stamp(31)
        tail(f"s_branch L_kv_published{ck}")
```

```python
from mcommon import *
import mcommon
from m1 import LDS_Q, LDS_PS, LDS_WR, LDS_MISC, LDS_READY, SAFE_V

SLOT_KV = 24576
X_OFF = LDS_WR
KV_SLOT = [X_OFF, 0, SLOT_KV, X_OFF, 0, SLOT_KV, 0, SLOT_KV]
LDS_WO = 49152
SAFE_BOUND = 80.0 / 1.03
RES = 230

VA, VV0, VK4, H, TOK = 4, 5, 6, 8, 9
VAX, VV0X, VK4X = 28, 29, 30
QA, QB = 16, 22
S0, S1 = 32, 48
P = 64
OA, OB = 72, 88
CA, CB = 104, 120
KB = [136, 142]
VB = [148, 156]
T = 164
S_SRC, S_DST, S_PSB = 32, 33, 34
S_PSI = 47
S_PD, S_PS, S_PI, S_PE = 72, 82, 87, 88
V_PS, V_TR = 12, 13


def ps_setup(a):
    a(f"""
s_and_b32 s60, s2, 7
s_lshr_b32 s61, s2, 3
s_mul_i32 s62, s60, 12
s_mul_i32 s63, s60, 17
s_add_u32 s63, s63, 96
s_add_u32 s62, s62, s61
s_sub_u32 s62, s62, 8
s_add_u32 s64, s63, s61
s_sub_u32 s65, s64, 20
s_add_u32 s64, s64, 12
s_cmp_lt_u32 s61, 20
s_cselect_b32 s{S_PSI}, s62, s65
s_cmp_lt_u32 s61, 8
s_cselect_b32 s{S_PSI}, s64, s{S_PSI}
s_sub_u32 s61, s61, 5
s_cmp_lt_u32 s61, 3
s_cselect_b32 s{S_PSI}, 255, s{S_PSI}
s_mul_i32 s{S_PSB}, s{S_P}, 10240
s_add_u32 s{S_PSB}, s{S_PSB}, {LDS_PS}
v_lshrrev_b32 v{V_PS}, 2, v{LANE}
v_and_b32 v15, 3, v{LANE}
v_lshlrev_b32 v{V_TR}, 6, v{V_PS}
v_lshl_add_u32 v{V_TR}, v15, 3, v{V_TR}
v_add_u32 v{V_TR}, s{S_PSB}, v{V_TR}
s_cmp_ge_u32 s{S_PSI}, 96
s_cbranch_scc1 L_ps_b
s_cmp_ge_u32 s{S_PSI}, 48
s_cselect_b32 s60, s{P_W3}, s{P_W1}
s_cselect_b32 s61, s{P_W3 + 1}, s{P_W1 + 1}
s_cselect_b32 s62, 48, 0
s_cselect_b32 s66, 1024, 0
s_mov_b32 s{KS + 2}, {640 * 3072}
s_mov_b32 s{S_PI}, {16 * 3072}
s_sub_u32 s62, s{S_PSI}, s62
s_lshl_b32 s63, s62, 6
s_mul_i32 s64, s{S_P}, {32 * 3072}
s_add_u32 s63, s63, s64
v_mul_u32_u24 v{V_PS}, 3072, v{V_PS}
s_add_u32 s66, s66, {W13F}""")
    for i in range(5):
        a(f"s_add_u32 s{S_PS + i}, s63, {128 * 3072 * i}")
    for tl in range(2):
        a(f"""
s_lshl_b32 s63, s62, 1
s_add_u32 s63, s63, {tl}
s_mul_i32 s64, s63, 43691
s_lshr_b32 s64, s64, 18
s_mul_i32 s65, s64, 6
s_sub_u32 s65, s63, s65
s_mul_i32 s64, s64, {21 * 12288}
s_lshl_b32 s65, s65, 11
s_add_u32 s64, s64, s65
s_add_u32 s64, s64, s66
s_add_u32 s{S_PE + tl}, s64, {20 * 12288}
s_mul_i32 s65, s{S_P}, 12288
s_add_u32 s64, s64, s65""")
        for i in range(5):
            a(f"s_add_u32 s{S_PD + 2 * i + tl}, s64, {4 * 12288 * i}")
    a(f"""
s_branch L_ps_go
L_ps_b:
s_mov_b32 s{S_PE}, {OOB}
s_mov_b32 s{S_PE + 1}, {OOB}
s_sub_u32 s62, s{S_PSI}, 96
s_and_b32 s63, s62, 1
s_lshr_b32 s62, s62, 1
s_mul_i32 s63, s63, 10
s_add_u32 s63, s63, s{S_P}
s_cmp_lt_u32 s{S_P}, 2
s_cselect_b32 s67, 3, 2
s_cmp_ge_u32 s{S_PSI}, 232
s_cselect_b32 s67, 0, s67
s_cmp_ge_u32 s62, 20
s_cbranch_scc1 L_ps_w2
s_mov_b32 s60, s{P_WO}
s_mov_b32 s61, s{P_WO + 1}
s_mov_b32 s{KS + 2}, {640 * 1280}
s_mul_i32 s66, s62, 5120
s_add_u32 s66, s66, {WOF}
s_mov_b32 s68, 102400
v_lshrrev_b32 v14, 2, v{V_PS}
v_and_b32 v{V_PS}, 3, v{V_PS}
s_cmp_ge_u32 s62, 16
s_cbranch_scc1 L_ps_rem
s_mul_i32 s64, s62, 40
s_mov_b32 s{S_PI}, {8 * 1280}
v_lshrrev_b32 v10, 1, v14
v_mul_u32_u24 v10, 20, v10
v_and_b32 v14, 1, v14
v_lshl_add_u32 v14, v14, 2, v10
v_add3_u32 v{V_PS}, v14, v{V_PS}, s64
s_branch L_ps_rows
L_ps_rem:
s_sub_u32 s64, s62, 16
s_mul_i32 s64, s64, 160
s_add_u32 s64, s64, 16
s_mov_b32 s{S_PI}, {20 * 1280}
v_mul_u32_u24 v14, 40, v14
v_add3_u32 v{V_PS}, v14, v{V_PS}, s64
s_branch L_ps_rows
L_ps_w2:
s_mov_b32 s60, s{P_W2}
s_mov_b32 s61, s{P_W2 + 1}
s_mov_b32 s{KS + 2}, {1536 * 1280}
s_sub_u32 s62, s62, 20
s_lshl_b32 s64, s62, 5
s_mov_b32 s{S_PI}, {16 * 1280}
v_add_u32 v{V_PS}, s64, v{V_PS}
s_mul_i32 s64, s62, 43691
s_lshr_b32 s64, s64, 17
s_mul_i32 s65, s64, 3
s_sub_u32 s65, s62, s65
s_lshl_b32 s65, s65, 4
s_add_u32 s64, s64, s65
s_mul_i32 s66, s64, 5120
s_add_u32 s66, s66, {W2F}
s_mov_b32 s68, 245760
L_ps_rows:
v_mul_u32_u24 v{V_PS}, 1280, v{V_PS}""")
    for i in range(5):
        a(f"""
s_add_u32 s62, s63, {4 * i}
s_lshl_b32 s64, s62, 6
s_cmp_gt_u32 s67, {i}
s_cselect_b32 s{S_PS + i}, s64, {OOB}""")
        for tl in range(2):
            a(f"""
s_lshl_b32 s64, s62, 1
s_add_u32 s64, s64, {tl}
s_mul_i32 s65, s64, 52429
s_lshr_b32 s65, s65, 18
s_mul_i32 s69, s65, 5
s_sub_u32 s64, s64, s69
s_mul_i32 s65, s65, s68
s_lshl_b32 s64, s64, 10
s_add_u32 s64, s64, s65
s_add_u32 s64, s64, s66
s_cmp_gt_u32 s67, {i}
s_cselect_b32 s{S_PD + 2 * i + tl}, s64, {OOB}""")
    a(f"""
L_ps_go:
s_mov_b32 s{KS}, s60
s_mov_b32 s{KS + 1}, s61
s_mov_b32 s{KS + 3}, {SRD3}
v_lshl_add_u32 v{V_PS}, v15, 4, v{V_PS}""")


def addresses(a):
    a(f"""
v_lshrrev_b32 v{H}, 5, v{LANE}
v_and_b32 v{TOK}, 31, v{LANE}
s_mul_i32 s60, s{S_HALF}, 12288
v_add_u32 v{VA}, s60, v{VL16}
v_cmp_lt_u32 s[62:63], 20, v{TOK}
v_add_u32 v14, 1024, v{VA}
s_add_u32 s61, s60, {1024 + 336}
v_cndmask_b32 v{VV0}, v{VA}, v14, s[62:63]
v_lshrrev_b32 v14, 4, v{TOK}
v_lshlrev_b32 v14, 9, v14
v_and_b32 v15, 15, v{TOK}
v_lshl_add_u32 v14, v15, 3, v14
v_add_u32 v{VK4}, s61, v14
v_add_u32 v{VAX}, {X_OFF}, v{VA}
v_add_u32 v{VV0X}, {X_OFF}, v{VV0}
v_add_u32 v{VK4X}, {X_OFF}, v{VK4}
s_mul_i32 s{S_DST}, s{S_P}, 3072
s_add_u32 s{S_SRC}, s{S_DST}, {KV}
s_mul_i32 s61, s{S_HALF}, 1536
s_add_u32 s62, s{S_DST}, s61
s_add_u32 s62, s62, {LDS_Q}
s_sub_u32 s63, s{S_DST}, s61
s_add_u32 s63, s63, {LDS_Q + 1536}
v_add_u32 v209, s62, v{VL16}
v_add_u32 v210, s63, v{VL16}
v_lshlrev_b32 v14, 4, v{TOK}
v_add_u32 v211, s62, v14
v_add_u32 v212, s63, v14
v_mov_b32 v7, {LDS_MISC}""")


def young_prep(a, part):
    if part == 0:
        addresses(a)
    if part == 1:
        ps_setup(a)
    if part == 2:
        for r in range(CA, CA + 32):
            a(f"v_mov_b32 v{r}, 0")
    if part == 10:
        a(f"""
v_lshlrev_b32 v11, 7, v{LANE}
s_mov_b32 s61, {KVFLG}
s_cmp_eq_u32 s{S_W}, 7
s_cselect_b32 exec_lo, -1, 0
s_mov_b32 exec_hi, 0
buffer_load_dword v{T + 10}, v11, s[{WS}:{WS + 3}], s61 offen sc1
s_mov_b64 exec, -1""")
    if part == 11:
        a(f"""
s_cmp_lg_u32 s{S_W}, 7
s_cbranch_scc1 L_kv_noearly
s_mov_b32 exec_hi, 0
s_waitcnt vmcnt(0)
v_cmp_ne_u32 vcc, 8, v{T + 10}
v_mov_b32 v14, 1
v_mov_b32 v15, {LDS_READY}
s_nop 2
s_cbranch_vccnz L_kv_notyet
ds_write_b32 v15, v14
L_kv_notyet:
s_mov_b64 exec, -1
L_kv_noearly:""")


def young_tail(a):
    a(f"""
v_lshlrev_b32 v14, 7, v{LANE}
v_lshlrev_b32 v11, 3, v{LANE}
s_mov_b32 s61, {KVFLG}
v_mov_b32 v15, {LDS_READY}
s_cmp_lg_u32 s{S_W}, 7
s_cbranch_scc1 L_kv_lds
ds_read_b32 v10, v15
s_waitcnt lgkmcnt(0)
v_readfirstlane_b32 s62, v10
s_nop 3
s_cmp_lg_u32 s62, 0
s_cbranch_scc1 L_kv_seen""")
    a.poll(14, T, WS, "s61", 32, "8")
    a(f"""
v_mov_b32 v14, 1
ds_write_b32 v15, v14
s_branch L_kv_seen
L_kv_lds:
s_mov_b32 s60, 0
L_kv_spin:
ds_read_b32 v14, v15
s_add_u32 s60, s60, 1
s_waitcnt lgkmcnt(0)
v_readfirstlane_b32 s62, v14
s_cmp_ge_u32 s60, {SPIN_LIMIT * 16}
s_cbranch_scc1 L_kv_seen
s_nop 1
s_cmp_eq_u32 s62, 0
s_cbranch_scc1 L_kv_spin
L_kv_seen:""")
    a.stamp(58)
    a(f"""
s_mov_b32 s62, {KN}
buffer_load_dwordx2 v[{T + 4}:{T + 5}], v11, s[{WS}:{WS + 3}], s62 offen sc1
buffer_load_dwordx2 v[{T + 6}:{T + 7}], v11, s[{WS}:{WS + 3}], s62 offen offset:512 sc1""")
    for g in stage_groups(0):
        for x in g:
            a(x)
    a(f"""
v_mov_b32 v{T + 3}, {f32(SAFE_V)}
s_waitcnt vmcnt(6)
v_max_f32 v14, v{T + 4}, v{T + 5}
v_cmp_nle_f32 s[66:67], v{T + 6}, v{T + 3}
v_cmp_nle_f32 s[64:65], v{T + 7}, v{T + 3}""")
    a.wave_max(14)
    a(f"""
s_or_b64 s[66:67], s[66:67], s[64:65]
s_cselect_b32 s62, 0x7f800000, 0
s_nop 0
v_readlane_b32 s63, v14, 63
s_nop 3
s_or_b32 s62, s62, s63
v_mov_b32 v14, s62
ds_write_b32 v7, v14
s_waitcnt vmcnt(0)""")
    a.stamp(59)
    a("s_branch L_p1_x2")


def stage_groups(t):
    out = []
    for hf in range(2):
        for i in range(3):
            g = [f"s_add_u32 m0, s{S_DST}, {KV_SLOT[t] + hf * 12288}",
                 f"s_add_u32 s61, s{S_SRC}, {t * 12288 + hf * 32 * 3072}"] if i == 0 else []
            o = f" offset:{1024 * i}" if i else ""
            out.append(g + [f"buffer_load_dwordx4 v{VL16}, s[{WS}:{WS + 3}], s61 offen{o} sc1 lds"])
    return out


def phase2(a, tail):
    addresses(a)
    a("""
L_p1_x2:
s_waitcnt lgkmcnt(0)
s_barrier""")
    a.stamp(8)

    def tile_reads(buf, off):
        if off >= X_OFF:
            va, vv, vk, off = VAX, VV0X, VK4X, off - X_OFF
        else:
            va, vv, vk = VA, VV0, VK4
        return [f"ds_read_b128 {vr(KB[buf], 4)}, v{va} offset:{off}",
                f"ds_read_b64 {vr(KB[buf] + 4, 2)}, v{vk} offset:{off}",
                f"ds_read_b128 {vr(VB[buf], 4)}, v{vv} offset:{off + 1024}",
                f"ds_read_b128 {vr(VB[buf] + 4, 4)}, v{va} offset:{off + 2048}"]

    a(f"""
ds_read_b128 {vr(QA, 4)}, v209
ds_read_b64 {vr(QA + 4, 2)}, v211 offset:1024
ds_read_b128 {vr(QB, 4)}, v210
ds_read_b64 {vr(QB + 4, 2)}, v212 offset:1024
ds_read_b32 v10, v7""")
    for x in tile_reads(0, KV_SLOT[0]):
        a(x)
    a(f"""
v_cmp_eq_u32 s[64:65], 0, v{H}
v_mov_b32 v14, 0
v_mov_b32 v15, 0
v_mov_b32 v{T + 2}, {f32(SAFE_BOUND ** 2)}
s_waitcnt lgkmcnt(4)""")
    for r in (QA + 4, QA + 5, QB + 4, QB + 5):
        a(f"v_cndmask_b32 v{r}, 0, v{r}, s[64:65]")
    for j in range(6):
        a(f"v_dot2_f32_bf16 v14, v{QA + j}, v{QA + j}, v14")
        a(f"v_dot2_f32_bf16 v15, v{QB + j}, v{QB + j}, v15")
    a("s_nop 2")
    a.half_sum(14, T)
    a.half_sum(15, T)
    a(f"""
v_max_f32 v14, v14, v15
v_mul_f32 v14, v10, v14
v_cmp_nle_f32 vcc, v14, v{T + 2}
s_nop 4
s_cbranch_vccnz L_truemax
L_att_start:
s_waitcnt lgkmcnt(0)
{mfma(S0, KB[0], QA, CA)}
{mfma8(S0, KB[0] + 4, QA + 4, S0)}
s_cmp_ge_u32 s{S_W}, 4
s_nop 7
s_nop 2
s_cbranch_scc1 L_att_young""")
    prio = mcommon.OPT.get("prio", "flip")

    def job(cur, nxt, q, c, kb, o_cur, v_cur, o_prev, v_prev, fill, first=False, last=False, fresh=False):
        def ex(g):
            for x in fill[g]:
                a(x)
        if not last:
            a(mfma(nxt, kb, q, c))
        for j in range(0, 4):
            a(f"v_exp_f32 v{cur + j}, v{cur + j}")
        if not first:
            a(mfma(o_prev, v_prev + 4, P + 4, o_prev))
        ex(0)
        for j in range(4, 8):
            a(f"v_exp_f32 v{cur + j}, v{cur + j}")
        a(mfma8(nxt, kb + 4, q + 4, nxt) if not last else "s_nop 0")
        ex(1)
        for j in range(0, 4):
            a(f"v_cvt_pk_bf16_f32 v{P + j}, v{cur + 2 * j}, v{cur + 2 * j + 1}")
        for j in range(8, 12):
            a(f"v_exp_f32 v{cur + j}, v{cur + j}")
        a(mfma(o_cur, v_cur, P, "0" if fresh else o_cur))
        ex(2)
        for j in range(12, 16):
            a(f"v_exp_f32 v{cur + j}, v{cur + j}")
        ex(3)
        for j in range(4, 8):
            a(f"v_cvt_pk_bf16_f32 v{P + j}, v{cur + 2 * j}, v{cur + 2 * j + 1}")

    def stream(svc, waits, stamps):
        for t in range(8):
            for u in range(4):
                b, nb = u % 2, (u + 1) % 2
                ja = 8 * t + 2 * u
                last = t == 7 and u == 3
                fa = [[], [], [], []]
                if u < 3:
                    r = tile_reads(nb, KV_SLOT[t] + (u + 1) * 3072)
                    fa = [r[0:2], [r[2]], [r[3]], []]
                elif not last:
                    r = tile_reads(nb, KV_SLOT[t + 1])
                    fa = [waits.get(t, []) + ["s_barrier"] + r[0:2], [r[2]], [r[3]], []]
                fa = [fa[g] + svc.get((ja, g), []) for g in range(4)]
                if prio == "flip" or (prio == "flip2" and u % 2 == 0):
                    a("s_setprio 1")
                if prio == "flip2" and u % 2 == 1:
                    a("s_setprio 0")
                job(S0, S1, QB, CB, KB[b], OA, VB[b], OB, VB[nb], fa, first=(ja == 0), fresh=(ja == 0))
                if prio == "flip":
                    a("s_setprio 0")
                if not last:
                    a("s_waitcnt lgkmcnt(0)")
                job(S1, S0, QA, CA, KB[nb], OB, VB[b], OA, VB[b], [svc.get((ja + 1, g), []) for g in range(4)], last=last, fresh=(ja == 0))
            if stamps and t in (0, 3):
                a.stamp(11 if t == 0 else 12)
        a(f"s_nop 0\n{mfma(OB, VB[1] + 4, P + 4, OB)}")

    def put(svc, j, g, ins):
        svc.setdefault((j, g), []).extend(ins)

    if prio == "old":
        a("s_setprio 1")
    a.stamp(10)
    a.stamp(60, True)
    svc = {}
    def spread(svc, j0, groups, per_job=3):
        for k, g in enumerate(groups):
            put(svc, j0 + k // per_job, k % per_job, g)
        return j0 + (len(groups) + per_job - 1) // per_job

    spread(svc, 0, stage_groups(1) + stage_groups(2))
    spread(svc, 7, stage_groups(3))
    for t in range(2, 6):
        spread(svc, 8 * t + 7, stage_groups(t + 2))
    put(svc, 56, 3, f"""s_lshl_b32 s60, s{S_RB}, 6
s_lshl_b32 s61, s{S_W}, 4
s_add_u32 s60, s60, s61
v_and_b32 v10, 15, v{LANE}
v_add_u32 v10, s60, v10
v_mul_u32_u24 v10, 1280, v10
v_lshrrev_b32 v12, 4, v{LANE}
v_lshl_add_u32 v10, v12, 3, v10
s_mul_i32 s60, s{S_CB}, 160""".split("\n"))
    spread(svc, 57, [[f"buffer_load_dwordx2 {vr(RES + 2 * m, 2)}, v10, s[{XS}:{XS + 3}], s60 offen offset:{32 * m}"] for m in range(5)])
    stream(svc, {t: [f"s_waitcnt vmcnt({ {0: 6, 1: 6}.get(t, 0) })"] for t in range(7)}, True)
    a.stamp(13)
    a("s_branch L_att_done")

    a("L_att_young:")
    if prio == "young":
        a("s_setprio 1")
    svc = {}
    jt = int(mcommon.OPT.get("touch_at", 7))
    jl = int(mcommon.OPT.get("ps_issue", 17))
    jp = int(mcommon.OPT.get("ps_proc", 22))
    put(svc, jt, 0, f"""s_lshl_b32 s60, s2, 2
s_add_u32 s60, s60, s{S_P}
s_mul_i32 s61, s60, {15 * 128}
v_lshlrev_b32 v10, 7, v{LANE}
v_add_u32 v15, s61, v10
s_mul_i32 s61, s60, {25 * 32}
v_add_u32 v14, s61, v10
v_and_b32 v14, 0xffffff80, v14""".split("\n"))
    put(svc, jt, 2, f"""s_mov_b64 exec, 0x7fff
global_load_dword v{T + 30}, v15, s[{P_W1}:{P_W1 + 1}]
global_load_dword v{T + 31}, v15, s[{P_W3}:{P_W3 + 1}]
global_load_dword v{T + 32}, v15, s[{P_W2}:{P_W2 + 1}]
s_mov_b64 exec, 0x7f
global_load_dword v{T + 33}, v14, s[{P_WO}:{P_WO + 1}]
s_mov_b64 exec, -1""".split("\n"))
    g = []
    for i in range(5):
        g.append([f"s_add_u32 m0, s{S_PSB}, {2048 * i}", f"s_add_u32 s61, s{S_PS + i}, s{S_PI}",
                  f"buffer_load_dwordx4 v{V_PS}, s[{KS}:{KS + 3}], s{S_PS + i} offen lds"])
        g.append([f"s_add_u32 m0, s{S_PSB}, {2048 * i + 1024}", "s_nop 0",
                  f"buffer_load_dwordx4 v{V_PS}, s[{KS}:{KS + 3}], s61 offen lds"])
    spread(svc, jl, g)
    CS, ONE = T + 16, T + 24
    put(svc, jp - 1, 3, [f"v_mov_b32 v{ONE}, 0x3f803f80", f"v_mov_b32 v{ONE + 1}, 0x3f803f80"])
    stride = int(mcommon.OPT.get("ps_stride", 2))
    assert jl + 3 < jp and jp % 2 == 0 and stride % 2 == 0
    for i in range(5):
        ja = jp + stride * i
        put(svc, ja, 1, ["s_waitcnt vmcnt(8)"])
        r = T + 8 * (i % 2)
        for tl in range(2):
            put(svc, ja, 2 + tl, [f"ds_read_b64_tr_b16 {vr(r + 4 * tl, 2)}, v{V_TR} offset:{2048 * i + 32 * tl}",
                                  f"ds_read_b64_tr_b16 {vr(r + 4 * tl + 2, 2)}, v{V_TR} offset:{2048 * i + 32 * tl + 1024}"])
            cs = CS + 4 * tl
            c0 = "0" if i == 0 else vr(cs, 4)
            put(svc, ja + 1, 2 * tl, [f"v_mfma_f32_4x4x4_16b_bf16 {vr(cs, 4)}, {vr(ONE, 2)}, {vr(r + 4 * tl, 2)}, {c0}"])
            put(svc, ja + 1 + (tl * 2 if i < 4 and stride >= 4 else 0), 2 * tl,
                [f"buffer_store_dwordx4 {vr(r + 4 * tl, 4)}, v{VL16}, s[{WS}:{WS + 3}], s{S_PD + 2 * i + tl} offen sc1"])
            put(svc, ja + 1, 2 * tl + 1, [f"v_mfma_f32_4x4x4_16b_bf16 {vr(cs, 4)}, {vr(ONE, 2)}, {vr(r + 4 * tl + 2, 2)}, {vr(cs, 4)}"])
    jf = jp + 4 * stride + 2
    fin = []
    for tl in range(2):
        c, t1, o = CS + 4 * tl, T + 26 + tl, T + 4 * tl
        for width in (32, 16):
            fin += [[f"v_mov_b32 v{t1}, v{c}"], [f"v_permlane{width}_swap_b32 v{c}, v{t1}"], [f"v_add_f32 v{c}, v{c}, v{t1}"]]
        fin += [[f"v_cvt_pk_bf16_f32 v{o}, v{c}, v{c}", f"v_mov_b32 v{o + 2}, 0"],
                [f"v_and_b32 v{t1}, 0xffff0000, v{o}", f"v_sub_f32 v{t1}, v{c}, v{t1}"],
                [f"v_cvt_pk_bf16_f32 v{o + 1}, v{t1}, v{o + 2}", f"v_mov_b32 v{o + 3}, 0"]]
    fin += [[f"v_lshrrev_b32 v10, 4, v{LANE}", f"v_cmp_ne_u32 vcc, s{S_P}, v10"],
            ["v_cndmask_b32 v10, 0, 1, vcc", f"v_lshl_add_u32 v10, v10, 30, v{VL16}"],
            [f"buffer_store_dwordx4 {vr(T + 4 * tl, 4)}, v10, s[{WS}:{WS + 3}], s{S_PE + tl} offen sc1" for tl in range(2)]]
    fin = [fin[k] + fin[9 + k] for k in range(9)] + fin[18:]
    for k, g in enumerate(fin):
        put(svc, jf + k // 4, k % 4, g)
    tf = (jf + (len(fin) - 1) // 4 + 2) // 8
    tf += int(mcommon.OPT.get("ps_tf", 0))
    jg = 8 * tf + 6
    put(svc, jg, 3, f"""s_lshl_b32 s60, s{S_IDX}, 2
s_add_u32 s60, s60, {PSFLG}
v_mov_b32 v10, 0
v_mov_b32 v14, 1
s_cmp_eq_u32 s{S_P}, 0
s_cselect_b32 exec_lo, 1, 0
s_mov_b32 exec_hi, 0
buffer_store_dword v14, v10, s[{WS}:{WS + 3}], s60 offen sc1
s_mov_b64 exec, -1""".split("\n"))
    jc = jg + int(mcommon.OPT.get("ps_gap", 5))
    put(svc, jc, 3, [f"s_mov_b32 s62, {PSFLG}",
                     f"buffer_load_dwordx4 {vr(T, 4)}, v{VL16}, s[{WS}:{WS + 3}], s62 offen sc1"])
    put(svc, jc + 3, 3, f"""s_waitcnt vmcnt(0)
v_and_b32 v{T}, v{T}, v{T + 1}
v_and_b32 v{T + 2}, v{T + 2}, v{T + 3}
v_and_b32 v{T}, v{T}, v{T + 2}
v_cmp_ne_u32 vcc, 1, v{T}
s_mul_i32 s60, s{S_P}, 25600
s_mul_i32 s61, s{S_CB}, 102400
s_add_u32 s61, s61, s60
s_add_u32 s63, s61, {WOF}
s_add_u32 s64, s60, {LDS_WO}
s_cbranch_vccnz L_ps_wait
L_ps_ready:""".split("\n"))
    j = jc + 4
    assert j >= 32, "the start-up K/V slots must be free"
    g = []
    for i in range(25):
        pre = [f"s_add_u32 m0, s64, {4096 * (i // 4)}", f"s_add_u32 s61, s63, {4096 * (i // 4)}"] if i % 4 == 0 else []
        o = f" offset:{1024 * (i % 4)}" if i % 4 else ""
        g.append(pre + [f"buffer_load_dwordx4 v{VL16}, s[{WS}:{WS + 3}], s61 offen{o} sc1 lds"])
    j = spread(svc, j, g, int(mcommon.OPT.get("wo_per", 3)))
    assert j < 63
    put(svc, j, 3, f"""s_lshr_b32 s60, s{S_FB}, 2
s_mul_i32 s60, s60, {4 * 21 * 12288}
s_and_b32 s61, s{S_IDX}, 31
s_lshl_b32 s61, s61, 2
s_add_u32 s61, s61, s{S_P}
s_mul_i32 s61, s61, {63 * 128}
s_add_u32 s60, s60, s61
s_add_u32 s60, s60, {W13F}
v_lshlrev_b32 v10, 7, v{LANE}
buffer_load_dword v{T + 8}, v10, s[{WS}:{WS + 3}], s60 offen sc1""".split("\n"))
    abl = mcommon.OPT.get("abl", "")
    if "p" in abl:
        svc = {k: v for k, v in svc.items() if k[0] >= jg}
    if "w" in abl:
        svc = {k: v for k, v in svc.items() if k[0] <= jc + 3}
    if "t" in abl:
        svc = {k: v for k, v in svc.items() if k[0] != jt}
    for ch, pat in (("l", "s[16:19]"), ("m", "4x4x4"), ("x", "_tr_b16"), ("k", "vmcnt(8)")):
        if ch in abl:
            svc = {k: [x for x in v if pat not in x] for k, v in svc.items()}
    if "f" in abl:
        svc = {k: v for k, v in svc.items() if not (jf <= k[0] < jf + 3)}
    if "o" in abl:
        svc = {k: [x.replace("s[4:7], s7", "s[4:7], s8") if False else x for x in v] for k, v in svc.items()}
        svc = {k: [x.replace(f"v{VL16}, s[{WS}:{WS + 3}], s7", f"v5, s[{WS}:{WS + 3}], s7").replace(f"v{VL16}, s[{WS}:{WS + 3}], s8", f"v5, s[{WS}:{WS + 3}], s8") for x in v] for k, v in svc.items()}
    if mcommon.OPT.get("psaux"):
        svc = {k: [x.replace(" sc1", " " + mcommon.OPT["psaux"].replace("+", " ")) if "buffer_store_dwordx4" in x else x for x in v] for k, v in svc.items()}
    if "n" in abl:
        svc = {k: [x.replace(" sc1", "") if "buffer_store_dwordx4" in x else x for x in v] for k, v in svc.items()}
    if "s" in abl:
        svc = {k: [x for x in v if "buffer_store_dwordx4" not in x] for k, v in svc.items()}
    print('re-layout schedule: fin', jf, 'flag', jg, 'check', jc, 'wo end', j)
    stream(svc, {tf: ["s_waitcnt vmcnt(0)"]}, False)
    a(f"""
L_att_done:
s_setprio 0
s_mul_i32 s60, s{S_W}, 3072
s_xor_b32 s61, s{S_W}, 4
s_mul_i32 s61, s61, 3072
v_add_u32 v10, s60, v{VL16}
v_add_u32 v11, s61, v{VL16}
s_lshl_b32 s62, s{S_RB}, 1
s_add_u32 s62, s62, s{S_HALF}
s_lshl_b32 s35, s{S_RB}, 7
s_lshl_b32 s63, s{S_CB}, 2
s_add_u32 s35, s35, s63
s_add_u32 s35, s35, {OFLG}
s_mul_i32 s62, s62, 40960
s_add_u32 s62, s62, {OF}
s_lshl_b32 s63, s{S_HEAD}, 9
s_add_u32 s63, s63, s62
s_lshr_b32 s64, s{S_HEAD}, 3
s_add_u32 s64, s64, 16
s_lshl_b32 s64, s64, 10
s_add_u32 s64, s64, s62
s_bfe_u32 s65, s{S_HEAD}, 0x20001
s_lshl_b32 s65, s65, 8
s_add_u32 s64, s64, s65
s_and_b32 s65, s{S_HEAD}, 1
s_lshl_b32 s65, s65, 3
s_add_u32 s64, s64, s65
v_lshrrev_b32 v12, 4, v{TOK}
v_mul_u32_u24 v12, 20480, v12
v_and_b32 v13, 15, v{TOK}
v_lshl_add_u32 v12, v13, 4, v12
v_lshl_add_u32 v13, v{H}, 8, v12
v_lshl_add_u32 v12, v{H}, 30, v12""")
    for j in range(3):
        a(f"ds_write_b128 v10, {vr(OB + 4 * j, 4)} offset:{1024 * j}")
    a("s_waitcnt lgkmcnt(0)\ns_barrier")
    a.stamp(30)
    a.stamp(54, True)
    for j in range(3):
        a(f"ds_read_b128 {vr(T + 12 + 4 * j, 4)}, v11 offset:{1024 * j}")
    a("s_waitcnt lgkmcnt(0)")
    for j in range(12):
        a(f"v_add_f32 v{OA + j}, v{OA + j}, v{T + 12 + j}")
    a(f"""
v_mov_b32 v14, v{OA + 8}
v_mov_b32 v15, v{OA + 8}
s_nop 1
v_permlane32_swap_b32 v14, v15
s_nop 1
v_rcp_f32 v15, v15
s_nop 0""")
    for j in range(12):
        a(f"v_mul_f32 v{OA + j}, v{OA + j}, v15")
    for j in range(6):
        a(f"v_cvt_pk_bf16_f32 v{T + j}, v{OA + 2 * j}, v{OA + 2 * j + 1}")
    a(f"""
buffer_store_dwordx4 {vr(T, 4)}, v13, s[{WS}:{WS + 3}], s63 offen sc1""")
    if "r" not in mcommon.OPT.get("abl", ""):
        a(f"buffer_store_dwordx2 {vr(T + 4, 2)}, v12, s[{WS}:{WS + 3}], s64 offen sc1")
    if mcommon.OPT.get("odup"):
        x = mcommon.OPT["odup"].replace("plain", "")
        a(f"buffer_store_dwordx4 {vr(T, 4)}, v13, s[{WS}:{WS + 3}], s63 offen {x}")
    if "v" in mcommon.OPT.get("abl", ""):
        a("s_waitcnt vmcnt(2)")
    a.stamp(14)
    a("s_waitcnt vmcnt(0)")
    a.stamp(55)
    a(f"s_cmp_lg_u32 s{S_W}, 0\nv_mov_b32 v10, 0\nv_mov_b32 v12, 1\ns_cselect_b32 s60, 0, 1\ns_barrier")
    a(f"""
s_mov_b32 exec_lo, s60
s_mov_b32 exec_hi, 0
buffer_store_dword v12, v10, s[{WS}:{WS + 3}], s35 offen sc1
s_mov_b64 exec, -1""")

    b = tail
    b(f"""
L_ps_wait:
s_mov_b32 s60, 0
L_ps_spin:
buffer_load_dwordx4 {vr(T, 4)}, v{VL16}, s[{WS}:{WS + 3}], s62 offen sc1
s_add_u32 s60, s60, 1
s_waitcnt vmcnt(0)
v_and_b32 v{T}, v{T}, v{T + 1}
v_and_b32 v{T + 2}, v{T + 2}, v{T + 3}
v_and_b32 v{T}, v{T}, v{T + 2}
v_cmp_ne_u32 vcc, 1, v{T}
s_nop 4
s_cbranch_vccz L_ps_ready
s_cmp_lt_u32 s60, {SPIN_LIMIT}
s_cbranch_scc1 L_ps_spin
s_branch L_ps_ready""")
    MA, MB = T + 24, T + 25

    def tm_load(q):
        return (f"buffer_load_dwordx4 {vr(T + 6 * q, 4)}, v{VL16}, s[{WS}:{WS + 3}], s61 offen sc1\n"
                f"buffer_load_dwordx2 {vr(T + 6 * q + 4, 2)}, v10, s[{WS}:{WS + 3}], s61 offen sc1\n"
                f"s_add_u32 s61, s61, 3072")

    b(f"""
L_truemax:
v_mov_b32 v{MA}, 0xff800000
v_mov_b32 v{MB}, 0xff800000
s_mul_i32 s60, s{S_HALF}, 12288
v_subrev_u32 v10, s60, v{VK4}
s_mov_b32 s60, 0
s_mov_b32 s61, {KV}""")
    for q in range(4):
        b(tm_load(q))
    b("L_tm_loop:")
    for q in range(4):
        k = T + 6 * q
        b(f"""
s_waitcnt vmcnt(6)
{mfma(S0, k, QA, "0")}
{mfma(S1, k, QB, "0")}
{mfma8(S0, k + 4, QA + 4, S0)}
{mfma8(S1, k + 4, QB + 4, S1)}
s_cmp_ge_u32 s61, {KV + 64 * 3072}
s_cselect_b32 s61, {OOB}, s61""")
        b(tm_load(q))
        b("s_nop 5")
        for j in range(8):
            b(f"v_max3_f32 v{MA}, v{S0 + 2 * j}, v{S0 + 2 * j + 1}, v{MA}")
        for j in range(8):
            b(f"v_max3_f32 v{MB}, v{S1 + 2 * j}, v{S1 + 2 * j + 1}, v{MB}")
    b(f"""
s_add_u32 s60, s60, 4
s_cmp_lt_u32 s60, 64
s_cbranch_scc1 L_tm_loop
s_waitcnt vmcnt(0)""")
    b.half_max(MA, T)
    b.half_max(MB, T)
    for j in range(16):
        b(f"v_sub_f32 v{CA + j}, 0, v{MA}")
        b(f"v_sub_f32 v{CB + j}, 0, v{MB}")
    b("s_nop 1\ns_branch L_att_start")
```

```python
from mcommon import *
import mcommon
from m2 import LDS_WO, RES

SLOT, NSLOT = 20480, 8
N4, NITEM = 21, 33
HRES = 240
DIST = 6


def loader(a):
    S_S13, S_S2, S_H = 33, 34, 46
    seq = []

    def dmas(tag, n, src, off, lds, pace=None, part=None):
        a(f"""
s_mul_i32 s60, s{S_P}, {n * 1024}
s_add_u32 s61, s60, {off}
s_add_u32 s61, s61, {src}
s_add_u32 s60, s60, {lds}""")
        lo, hi = part or (0, n)
        for i in range(lo, hi):
            if i == 4:
                a("s_add_u32 s60, s60, 4096\ns_add_u32 s61, s61, 4096")
            if pace is not None:
                a(f"s_waitcnt vmcnt({pace})")
            a.dma(VL16, WS, "s61", "s60" if i % 4 == 0 or i == lo else None, imm=1024 * (i % 4), aux="sc1")
            seq.append(tag)

    def weights(g, pace=None, part=None):
        if g < N4:
            dmas(g, 3, f"s{S_S13}", g * 12288, (g % NSLOT) * SLOT, pace)
        else:
            dmas(g, 5, f"s{S_S2}", (g - N4) * 20480, (g % NSLOT) * SLOT, pace, part)

    def tokens(g):
        if g < 20:
            a(f"s_lshl_b32 s60, s{S_P}, 11\ns_add_u32 s60, s60, {(g % NSLOT) * SLOT + 12288}\ns_add_u32 s61, s{S_H}, {g * 1024}")
            a.dma(VL16, WS, "s61", "s60", aux="sc1")
            a("s_add_u32 s60, s60, 1024\ns_add_u32 s61, s61, 20480")
            a.dma(VL16, WS, "s61", "s60", aux="sc1")
            seq.extend([g, g])

    def wait(c):
        last = max(i for i, x in enumerate(seq) if x == c)
        a(f"s_waitcnt vmcnt({len(seq) - 1 - last})")

    def flag_load(sg):
        a(f"""
v_mov_b32 v13, 1
s_lshl_b32 s62, s{S_RB}, 9
s_add_u32 s62, s62, {HHFLG + 16384 * sg}
s_cmp_eq_u32 s{S_P}, 0
s_cselect_b32 s62, s62, {OOB}
s_mov_b32 exec_hi, 0
buffer_load_dword v13, v11, s[{WS}:{WS + 3}], s62 offen sc1
s_mov_b64 exec, -1""")
        seq.append(("fl", sg))

    def poll_flags(tag, base, n, barrier=True):
        a(f"s_cmp_lg_u32 s{S_P}, 0\ns_cbranch_scc1 L_seen_{tag}\n{base}")
        if mcommon.OPT.get("predrain", "1") == "1":
            a("s_waitcnt vmcnt(0)")
        a.poll(11, 10, WS, "s62", n)
        a(f"L_seen_{tag}:")
        if barrier:
            a("s_barrier")

    a(f"""
L_loader:
v_lshrrev_b32 v11, 3, v{LANE}
v_lshlrev_b32 v11, 7, v11
v_and_b32 v12, 7, v{LANE}
v_lshl_add_u32 v11, v12, 2, v11
s_mul_i32 s{S_S13}, s{S_FB}, {21 * 12288}
s_add_u32 s{S_S13}, s{S_S13}, {W13F}
s_mul_i32 s{S_S2}, s{S_CB}, 245760
s_add_u32 s{S_S2}, s{S_S2}, {W2F}
s_lshl_b32 s60, s{S_RB2}, 2
s_add_u32 s60, s60, s{S_P}
s_mul_i32 s60, s60, 40960
s_add_u32 s{S_H}, s60, {HF}""")
    pace = int(mcommon.OPT.get("pace", 5))
    early = int(mcommon.OPT.get("early", 7))
    npo = int(mcommon.OPT.get("opre", 2))
    for g in (0, 1)[:npo]:
        weights(g)
    poll_flags("o", f"s_lshl_b32 s62, s{S_RB}, 7\ns_add_u32 s62, s62, {OFLG}", 8)
    a("s_barrier")
    for g in range(max(npo, 0) if npo < 2 else 2, early):
        weights(g, pace)
    poll_flags("h", f"s_lshl_b32 s62, s{S_RB2}, 10\ns_add_u32 s62, s62, {HFLG}", 64)
    for g in range(7):
        tokens(g)
        if g >= early:
            weights(g)
    for c in range(NITEM):
        if c == N4:
            a("s_barrier")
            nb4 = int(mcommon.OPT.get("hhpre", 2))
            for g in (27, 28)[:nb4]:
                weights(g)
            poll_flags("hh0", f"s_lshl_b32 s62, s{S_RB}, 9\ns_add_u32 s62, s62, {HHFLG}", 32)
            for g in (27, 28)[nb4:]:
                weights(g)
        ck1, ck2 = int(mcommon.OPT.get("ck1", 23)), int(mcommon.OPT.get("ck2", 27))
        ld1, ld2 = int(mcommon.OPT.get("ld1", 21)), int(mcommon.OPT.get("ld2", 24))
        if c == 21 and ld1 == 20:
            flag_load(1)
        if c in (ck1, ck2):
            sg = 1 if c == ck1 else 2
            a(f"s_cmp_lg_u32 s{S_P}, 0\ns_cbranch_scc1 L_seen_hh{sg}")
            wait(("fl", sg))
            a(f"""
v_cmp_ne_u32 vcc, 1, v13
s_lshl_b32 s62, s{S_RB}, 9
s_add_u32 s62, s62, {HHFLG + 16384 * sg}
s_nop 2
s_cbranch_vccz L_seen_hh{sg}""")
            a.poll(11, 10, WS, "s62", 32)
            a(f"L_seen_hh{sg}:")
        wait(c)
        a("s_barrier")
        if c in (ld1, ld2) and c > 20:
            flag_load(1 if c == ld1 else 2)
        g = c + 6
        if c >= 23 and mcommon.OPT.get("w2pace", "1") == "1":
            k = c - 23
            if k < 8:
                weights(29 + k // 2, None, (0, 3) if k % 2 == 0 else (3, 5))
        elif c >= 1 and g < NITEM and g not in (27, 28):
            tokens(g)
            weights(g)
    if mcommon.OPT.get("p5loop", "0") == "1":
        a("s_barrier")
    a.stamp_out()
    a("s_endpgm")


def stream(a, frags, dist=DIST, group=2):
    n, nb = len(frags), dist + 1
    issued, last_of = 0, {}

    def read(i):
        nonlocal issued
        f = frags[i]
        for x in f.get("pre_read", []):
            a(x)
        for dst, addr, off in f.get("extra_reads", []):
            a(f"ds_read_b128 {vr(dst, 4)}, v{addr} offset:{off}")
            issued += 1
        a(f"ds_read_b128 {vr(f['abuf'] + 4 * (i % nb), 4)}, v{f['addr']} offset:{f['off']}")
        issued += 1
        last_of[i] = issued

    for i in range(min(dist, n)):
        read(i)
    for i, f in enumerate(frags):
        for x in f.get("pre_mma", []):
            a(x)
        if i % group == 0:
            a(f"s_waitcnt lgkmcnt({issued - last_of[min(i + group - 1, n - 1)]})")
        A = f["abuf"] + 4 * (i % nb)
        for k, (acc, b) in enumerate(zip(f["acc"], f["b"])):
            a(mfma16(acc, A, b, "0" if f["first"] else acc))
            if k == 0 and i + dist < n:
                read(i + dist)
        for x in f.get("post_mma", []):
            a(x)


def bloads(breg, s_base, step, nt, stride=1024):
    out = []
    for n in range(nt):
        per = 4096 // stride
        if step % per == 0 and step:
            out.append(f"s_add_u32 s{s_base + n}, s{s_base + n}, 4096")
        out.append(f"buffer_load_dwordx4 {vr(breg + 4 * n, 4)}, v{VL16}, s[{WS}:{WS + 3}], s{s_base + n} offen"
                   + (f" offset:{stride * (step % per)}" if step % per else "") + " sc1")
    return out


def plan_b(fr, per, nsteps, W, BW, S_B, lead, nt=2, extra=(), stride=1024):
    order = [(s, nt) for s in range(lead)] + [("x", sum("buffer_load" in x for x in extra))]
    first = [x for s in range(lead) for x in bloads(BW + 4 * nt * (s % W), S_B, s, nt, stride)] + list(extra)
    nxt = lead
    for s in range(nsteps):
        f0, fl = fr[s * per], fr[s * per + per - 1]
        pos = [k for k, _ in order].index(s)
        f0.setdefault("pre_mma", []).insert(0, f"s_waitcnt vmcnt({sum(c for _, c in order[pos + 1:])})")
        slots = [fr[s * per + per // 2 - 1], fl]
        for k, f in enumerate(slots):
            limit = s + W - 1 if k == 0 else s + W
            if nxt < nsteps and nxt <= limit:
                f.setdefault("post_mma", []).extend(bloads(BW + 4 * nt * (nxt % W), S_B, nxt, nt, stride))
                order.append((nxt, nt))
                nxt += 1
    assert nxt == nsteps
    return first


def line_touch(vtmp, vdst, s_base, nlines, s_part, stride=128):
    if mcommon.OPT.get("atouch", "0") != "1":
        return []
    out = [f"s_mul_i32 s68, s{s_part}, {nlines * stride}", f"s_add_u32 s68, s68, s{s_base}",
           f"v_lshlrev_b32 v{vtmp}, 7, v{LANE}"]
    left, k = nlines, 0
    while left > 0:
        n = min(left, 64)
        if n < 64:
            m = (1 << n) - 1
            out += [f"s_mov_b32 exec_lo, {m & 0xffffffff:#x}", f"s_mov_b32 exec_hi, {m >> 32:#x}"]
        if k:
            out.append("s_add_u32 s68, s68, 8192")
        out.append(f"buffer_load_dword v{vdst}, v{vtmp}, s[{WS}:{WS + 3}], s68 offen sc1")
        if n < 64:
            out.append("s_mov_b64 exec, -1")
        left -= n
        k += 1
    return out


def add_bf16(a, acc, src, n):
    for j in range(n):
        r, t = acc + 2 * j, 12 + 2 * (j % 2)
        a(f"""
v_lshlrev_b32 v{t}, 16, v{src + j}
v_and_b32 v{t + 1}, 0xffff0000, v{src + j}
v_pk_add_f32 v[{r}:{r + 1}], v[{r}:{r + 1}], v[{t}:{t + 1}]""")


def compute345(a):
    S_B, S_TT = 46, 34
    VQ, VT, V4, VA = 4, 5, 6, 7
    D35 = int(mcommon.OPT.get("d35", 9))
    BW, AB, ACC = 16, 96, 148
    a(f"""
v_lshrrev_b32 v{VQ}, 4, v{LANE}
v_and_b32 v{VT}, 15, v{LANE}
v_lshlrev_b32 v{V4}, 2, v{LANE}
s_lshl_b32 s{S_TT}, s{S_RB}, 2
s_add_u32 s{S_TT}, s{S_TT}, s{S_W}
s_lshl_b32 s62, s{S_RB}, 7
s_add_u32 s62, s62, {OFLG}
s_mul_i32 s63, s{S_TT}, 20480
s_add_u32 s{S_B}, s63, {OF}
v_add_u32 v{VA}, {LDS_WO}, v{VL16}
v_add_u32 v{VA + 1}, {LDS_WO + 51200}, v{VL16}
s_barrier""")
    a.stamp(16)
    a.stamp(61, True)
    fr = []
    for s in range(20):
        for m in range(5):
            f = dict(addr=VA + s // 10, off=(s % 10) * 5120 + m * 1024, abuf=AB, acc=[ACC + 4 * m],
                     b=[BW + 4 * s], first=(s == 0))
            if m == 0 and s in (0, 10):
                f["pre_mma"] = a.stamp_lines(45 + s // 10)
            fr.append(f)
    a(f"s_mov_b32 s69, s{S_B}")
    for x in plan_b(fr, 5, 20, 20, BW, S_B, int(mcommon.OPT.get("lead3", 6)), 1, line_touch(11, 254, 69, 20, S_CB)):
        a(x)
    stream(a, fr, D35, 2)
    a.stamp(17)
    a("s_nop 7")
    add_bf16(a, ACC, RES, 10)
    for j in range(10):
        a(f"v_cvt_pk_bf16_f32 v{HRES + j}, v{ACC + 2 * j}, v{ACC + 2 * j + 1}")
    a(f"""
s_mov_b32 s60, s{S_TT}
s_mul_i32 s61, s60, 20480
s_mul_i32 s62, s{S_CB}, 5
s_lshr_b32 s62, s62, 1
s_lshl_b32 s62, s62, 10
s_add_u32 s61, s61, s62
s_add_u32 s61, s61, {HF}
s_bitcmp1_b32 s{S_CB}, 0
s_cbranch_scc1 L_p3_odd
buffer_store_dwordx4 {vr(HRES, 4)}, v{VL16}, s[{WS}:{WS + 3}], s61 offen sc1
buffer_store_dwordx4 {vr(HRES + 4, 4)}, v{VL16}, s[{WS}:{WS + 3}], s61 offen offset:1024 sc1
buffer_store_dwordx2 {vr(HRES + 8, 2)}, v{VL16}, s[{WS}:{WS + 3}], s61 offen offset:2048 sc1
s_branch L_p3_st
L_p3_odd:
buffer_store_dwordx2 {vr(HRES, 2)}, v{VL16}, s[{WS}:{WS + 3}], s61 offen offset:8 sc1
buffer_store_dwordx4 {vr(HRES + 2, 4)}, v{VL16}, s[{WS}:{WS + 3}], s61 offen offset:1024 sc1
buffer_store_dwordx4 {vr(HRES + 6, 4)}, v{VL16}, s[{WS}:{WS + 3}], s61 offen offset:2048 sc1
L_p3_st:
v_pk_mul_f32 v[12:13], v[{ACC}:{ACC + 1}], v[{ACC}:{ACC + 1}]
v_mov_b32 v14, v{ACC}
v_mov_b32 v15, v{ACC + 1}""")
    for j in range(1, 10):
        r = ACC + 2 * j
        a(f"v_pk_fma_f32 v[12:13], v[{r}:{r + 1}], v[{r}:{r + 1}], v[12:13]")
        a(f"v_pk_add_f32 v[14:15], v[14:15], v[{r}:{r + 1}]")
    a(f"""
v_add_f32 v11, v12, v13
v_add_f32 v10, v14, v15
s_lshl_b32 s60, s60, 10
s_lshl_b32 s61, s{S_CB}, 3
s_add_u32 s60, s60, s61
s_add_u32 s60, s60, {ST}""")
    a.quad_sum(10, 12)
    a.quad_sum(11, 12)
    a(f"""
v_lshlrev_b32 v13, 6, v{VT}
v_lshl_add_u32 v13, v{VQ}, 28, v13
s_lshl_b32 s61, s{S_TT}, 7
s_lshl_b32 s62, s{S_CB}, 2
s_add_u32 s61, s61, s62
s_add_u32 s61, s61, {HFLG}
buffer_store_dwordx2 v[10:11], v13, s[{WS}:{WS + 3}], s60 offen sc1
s_barrier""")
    a.stamp(48)
    a("s_waitcnt vmcnt(0)")
    a.set_flag(10, 12, WS, "s61")
    a.stamp(18)
    ACC, BW, AB, VB, STT = 16, 112, 192, 220, 224
    a(f"""
s_lshl_b32 s60, s{S_RB2}, 2
s_add_u32 s31, s60, s{S_W}
s_lshl_b32 s63, s31, 11
s_add_u32 s63, s63, {ST}
v_lshlrev_b32 v13, 6, v{VT}
v_lshl_add_u32 v13, v{VQ}, 4, v13
s_lshl_b32 s64, s{S_W}, 11
s_add_u32 s64, s64, 12288""")
    for j in range(3):
        a(f"v_add_u32 v{VA + j}, {3 * SLOT * j}, v{VL16}\nv_add_u32 v{VB + j}, s64, v{VA + j}")
    a("s_barrier")
    a.stamp(49)
    a("s_barrier")
    a.stamp(19)
    a.stamp(62, True)
    a(f"""
buffer_load_dwordx4 {vr(STT, 4)}, v13, s[{WS}:{WS + 3}], s63 offen sc1
buffer_load_dwordx4 {vr(STT + 4, 4)}, v13, s[{WS}:{WS + 3}], s63 offen offset:1024 sc1""")

    def acc4(fp, gu, n):
        return 16 + ((fp * 2 + gu) * 2 + n) * 4

    BX = 176
    fr = []
    for s in range(21):
        slot = s % NSLOT
        off = (slot % 3) * SLOT
        for m in range(12):
            breg = BW + 8 * (s % 2) if s < 20 else BX
            f = dict(addr=VA + slot // 3, off=off + m * 1024, abuf=AB,
                     acc=[acc4(m // 2, m % 2, 0), acc4(m // 2, m % 2, 1)], b=[breg, breg + 4], first=(s == 0))
            if m == 0 and s > 0:
                f["pre_read"] = ["s_barrier"]
            if m == 0 and s < 20:
                f["extra_reads"] = [(breg, VB + slot // 3, off), (breg + 4, VB + slot // 3, off + 1024)]
            if m == 0 and s in (0, 4, 8, 12, 16):
                f["pre_mma"] = a.stamp_lines(32 + s // 4)
            fr.append(f)
    fr[35].setdefault("post_mma", []).append("s_waitcnt vmcnt(0)")
    st = []
    for n in range(2):
        r = STT + 4 * n
        st += [f"v_add_f32 v{r}, v{r}, v{r + 2}", f"v_add_f32 v{r + 1}, v{r + 1}, v{r + 3}"]
    for n in range(2):
        for k in range(2):
            r = STT + 4 * n + k
            for width in (32, 16):
                st += [f"v_mov_b32 v12, v{r}", "s_nop 1", f"v_permlane{width}_swap_b32 v{r}, v12", "s_nop 1",
                       f"v_add_f32 v{r}, v{r}, v12"]
        r = STT + 4 * n
        st += [f"v_mul_f32 v{r}, {f32(1 / 640)}, v{r}", f"v_mul_f32 v{r + 1}, {f32(1 / 640)}, v{r + 1}",
               f"v_fma_f32 v{r + 1}, -v{r}, v{r}, v{r + 1}", f"v_max_f32 v{r + 1}, 0, v{r + 1}",
               f"v_add_f32 v{r + 1}, {f32(1e-5)}, v{r + 1}", f"v_rsq_f32 v{r + 1}, v{r + 1}"]
    ext = []
    for n in range(2):
        mean, bb = STT + 4 * n, BX + 4 * n
        ext += [f"v_cvt_pk_bf16_f32 v12, v{mean}, v{mean}", "v_and_b32 v13, 0xffff0000, v12",
                f"v_sub_f32 v13, v13, v{mean}", f"v_xor_b32 v{bb + 1}, 0x80008000, v12",
                "v_cvt_pk_bf16_f32 v13, v13, v13", f"v_mov_b32 v{bb + 2}, 0", f"v_mov_b32 v{bb + 3}, 0",
                f"v_and_b32 v12, 0xffff, v{bb + 1}", "v_lshlrev_b32 v13, 16, v13", f"v_or_b32 v{bb}, v12, v13"]
    for k in range(0, len(st), 2):
        fr[36 + k // 2].setdefault("post_mma", []).extend(st[k:k + 2])
    for k in range(0, len(ext), 2):
        fr[15 * 12 + k // 2].setdefault("post_mma", []).extend(ext[k:k + 2])
    stream(a, fr)
    a.stamp(20)
    C = [224, 228]
    for n in range(2):
        a(f"""
v_rcp_f32 v{C[n] + 2}, v{C[n] + 1}
v_mul_f32 v{C[n]}, {f32(-LOG2E)}, v{C[n] + 1}
v_mul_f32 v{C[n] + 2}, {f32(-LOG2E)}, v{C[n] + 2}""")
    a(f"""
s_mul_i32 s60, s31, 96
s_add_u32 s60, s60, s{S_FB}
s_lshl_b32 s60, s60, 10
s_add_u32 s60, s60, {HHF}
s_add_u32 s61, s60, {48 * 1024}
s_lshl_b32 s62, s31, 8
s_lshr_b32 s63, s{S_FB}, 3
s_lshl_b32 s63, s63, 7
s_add_u32 s62, s62, s63
s_and_b32 s63, s{S_FB}, 7
s_lshl_b32 s63, s63, 2
s_add_u32 s62, s62, s63
s_add_u32 s62, s62, {HHFLG}""")
    TT, OO = 112, 128

    def third_flag(sg, younger):
        a(f"s_waitcnt vmcnt({younger})")
        a.set_flag(10, 11, WS, "s62")
        a("s_add_u32 s62, s62, 16384")

    f0pos = int(mcommon.OPT.get("f0pos", 1))
    k = 0
    for sg in range(3):
        for n in range(2):
            g = [acc4(2 * sg, 0, n), acc4(2 * sg, 0, n) + 2, acc4(2 * sg + 1, 0, n), acc4(2 * sg + 1, 0, n) + 2]
            u = [acc4(2 * sg, 1, n), acc4(2 * sg, 1, n) + 2, acc4(2 * sg + 1, 1, n), acc4(2 * sg + 1, 1, n) + 2]
            o = OO + 4 * (k % 4)
            k += 1
            c1, kk = C[n], C[n] + 2
            for j in range(4):
                a(f"v_pk_mul_f32 v[{g[j]}:{g[j] + 1}], v[{g[j]}:{g[j] + 1}], v[{c1}:{c1 + 1}] op_sel_hi:[1,0]")
            for j in range(4):
                a(f"v_exp_f32 v{TT + 2 * j}, v{g[j]}\nv_exp_f32 v{TT + 2 * j + 1}, v{g[j] + 1}")
            for j in range(4):
                a(f"v_pk_mul_f32 v[{g[j]}:{g[j] + 1}], v[{g[j]}:{g[j] + 1}], v[{u[j]}:{u[j] + 1}]")
            for j in range(4):
                t = TT + 2 * j
                a(f"v_pk_fma_f32 v[{t}:{t + 1}], v[{t}:{t + 1}], v[{kk}:{kk + 1}], v[{kk}:{kk + 1}] op_sel_hi:[1,0,0]")
            if (sg, n) == (2, f0pos):
                third_flag(0, 2 + f0pos)
            for j in range(8):
                a(f"v_rcp_f32 v{TT + j}, v{TT + j}")
            for j in range(4):
                t = TT + 2 * j
                a(f"v_pk_mul_f32 v[{g[j]}:{g[j] + 1}], v[{g[j]}:{g[j] + 1}], v[{t}:{t + 1}]")
            for j in range(4):
                a(f"v_cvt_pk_bf16_f32 v{o + j}, v{g[j]}, v{g[j] + 1}")
            a(f"buffer_store_dwordx4 {vr(o, 4)}, v{VL16}, s[{WS}:{WS + 3}], s{60 + n} offen sc1")
            if sg < 2:
                a(f"s_add_u32 s{60 + n}, s{60 + n}, 16384")
    a.stamp(21)
    a("s_barrier")
    third_flag(1, 3 - f0pos)
    third_flag(2, 0)
    a.stamp(22)
    ACC, AB, BW, W = 16, 40, 92, int(mcommon.OPT.get("w5", 9))
    assert W <= 17 - 4 * (int(mcommon.OPT.get("ck1", 23)) - 21) and W <= 33 - 4 * (int(mcommon.OPT.get("ck2", 27)) - 21)
    a(f"""
s_lshl_b32 s62, s{S_RB}, 9
s_add_u32 s62, s62, {HHFLG}
s_mul_i32 s63, s{S_TT}, {48 * 1024}
s_add_u32 s{S_B}, s63, {HHF}
s_mov_b32 s69, s{S_B}
v_lshrrev_b32 v11, 3, v{LANE}
v_lshlrev_b32 v11, 7, v11
v_and_b32 v12, 7, v{LANE}
v_lshl_add_u32 v11, v12, 2, v11""")
    a.srd(TS, P_OUT, 2048 * 1280)
    a("s_barrier")
    a.stamp(23)
    a.stamp(63, True)
    if mcommon.OPT.get("p5loop", "0") == "1":
        ACC, AB, BW, W, D, NBUF = 16, 40, 92, 8, 9, 10
        S_SL, S_IT, S_NX = 64, 65, 66
        VC = [VA, VA + 1]

        def rd(i):
            i %= 40
            return f"ds_read_b128 {vr(AB + 4 * (i % NBUF), 4)}, v{VC[i // 20]} offset:{(i % 20) // 5 * 5120 + i % 5 * 1024}"

        def bl(s):
            return f"buffer_load_dwordx4 {vr(BW + 4 * (s % W), 4)}, v{VL16}, s[{WS}:{WS + 3}], s{S_NX} offen" + (f" offset:{1024 * (s % 4)}" if s % 4 else "") + " sc1"

        a(f"s_mov_b32 s{S_NX}, s{S_B}")
        for s in range(W):
            if s == 4:
                a(f"s_add_u32 s{S_NX}, s{S_NX}, 4096")
            a(bl(s))
        a(f"""
s_add_u32 s{S_B}, s{S_B}, 8192
s_mov_b32 s{S_SL}, {(N4 % NSLOT) * SLOT}
s_mov_b32 s{S_IT}, 0
v_add_u32 v{VC[0]}, {(N4 % NSLOT) * SLOT}, v{VL16}
v_add_u32 v{VC[1]}, {((N4 + 1) % NSLOT) * SLOT}, v{VL16}""")
        for r in range(ACC, ACC + 20):
            a(f"v_mov_b32 v{r}, 0")
        a("s_barrier")
        for i in range(D):
            a(rd(i))
        a(".p2align 6\nL_p5_loop:")
        a(f"""
s_cmp_eq_u32 s{S_IT}, 5
s_cselect_b32 s{S_NX}, {OOB}, s{S_B}
s_add_u32 s{S_B}, s{S_B}, 8192""")
        for i in range(40):
            st, m = divmod(i, 5)
            if m == 0:
                a(f"s_waitcnt vmcnt({W - 1})")
            if i % 2 == 0:
                a(f"s_waitcnt lgkmcnt({D - 2})")
            a(mfma16(ACC + 4 * m, AB + 4 * (i % NBUF), BW + 4 * st, ACC + 4 * m))
            if (i + D) % 20 == 0:
                a("s_barrier")
            a(rd(i + D))
            if m == 4:
                if st == 4:
                    a(f"s_add_u32 s{S_NX}, s{S_NX}, 4096")
                a(bl(st))
            if i in (12, 32):
                k = 0 if i == 12 else 1
                a(f"""
s_add_u32 s{S_SL}, s{S_SL}, {(2 if k == 0 else 1) * SLOT}
s_cmp_ge_u32 s{S_SL}, {NSLOT * SLOT}
s_cselect_b32 s67, {NSLOT * SLOT}, 0
s_sub_u32 s{S_SL}, s{S_SL}, s67
v_add_u32 v{VC[k]}, s{S_SL}, v{VL16}""")
                if k == 1:
                    a(f"""
s_add_u32 s{S_SL}, s{S_SL}, {(NSLOT - 1) * SLOT}
s_cmp_ge_u32 s{S_SL}, {NSLOT * SLOT}
s_cselect_b32 s67, {NSLOT * SLOT}, 0
s_sub_u32 s{S_SL}, s{S_SL}, s67""")
        a(f"""
s_add_u32 s{S_IT}, s{S_IT}, 1
s_cmp_lt_u32 s{S_IT}, 6
s_cbranch_scc1 L_p5_loop
s_waitcnt vmcnt(0) lgkmcnt(0)""")
        a.stamp(24)
        a("s_nop 7")
    elif mcommon.OPT.get("p5split", "0") == "1":
        ACC, AB, BW, W = 16, 56, 92, int(mcommon.OPT.get("w5", 6))
        a(f"""
s_and_b32 s64, s{S_W}, 1
s_mul_i32 s63, s64, {1024 - 2 * 48 * 1024}
s_add_u32 s{S_B + 1}, s{S_B}, {48 * 1024}
s_add_u32 s{S_B + 1}, s{S_B + 1}, s63
s_lshl_b32 s63, s64, 10
s_add_u32 s{S_B}, s{S_B}, s63
s_mul_i32 s64, s64, 5120""")
        for j in range(3):
            a(f"v_add_u32 v{VA + j}, s64, v{VA + j}")
        fr = []
        for s in range(24):
            c, sg = divmod(s, 2)
            slot = (c + N4) % NSLOT
            for m in range(5):
                br = BW + 8 * (s % W)
                f = dict(addr=VA + slot // 3, off=(slot % 3) * SLOT + sg * 10240 + m * 1024, abuf=AB,
                         acc=[ACC + 4 * m, ACC + 20 + 4 * m], b=[br, br + 4], first=(s == 0))
                if m == 0 and sg == 0 and c > 0:
                    f["pre_read"] = ["s_barrier"]
                if m == 0 and s in (0, 6, 12, 18):
                    f["pre_mma"] = a.stamp_lines(40 + s // 6)
                fr.append(f)
        for x in plan_b(fr, 5, 24, W, BW, S_B, int(mcommon.OPT.get("lead5", 3)), 2, (), 2048):
            a(x)
        a("s_barrier")
        stream(a, fr, DIST, 2)
        a.stamp(24)
        red = 2 * SLOT
        a(f"""
s_mul_i32 s60, s{S_W}, 5120
s_xor_b32 s61, s{S_W}, 1
s_mul_i32 s61, s61, 5120
s_add_u32 s60, s60, {red}
s_add_u32 s61, s61, {red}
v_add_u32 v10, s60, v{VL16}
v_add_u32 v11, s61, v{VL16}
s_nop 1""")
        for m in range(5):
            a(f"ds_write_b128 v10, {vr(ACC + 20 + 4 * m, 4)} offset:{1024 * m}")
        a("s_waitcnt lgkmcnt(0)\ns_barrier")
        for m in range(5):
            a(f"ds_read_b128 {vr(56 + 4 * m, 4)}, v11 offset:{1024 * m}")
        for m in range(5):
            a(f"s_waitcnt lgkmcnt({4 - m})")
            for j in (0, 2):
                r, t = ACC + 4 * m + j, 56 + 4 * m + j
                a(f"v_pk_add_f32 v[{r}:{r + 1}], v[{r}:{r + 1}], v[{t}:{t + 1}]")
    else:
        fr = []
        for s in range(48):
            c, sg = divmod(s, 4)
            slot = (c + N4) % NSLOT
            for m in range(5):
                f = dict(addr=VA + slot // 3, off=(slot % 3) * SLOT + sg * 5120 + m * 1024, abuf=AB,
                         acc=[ACC + 4 * m], b=[BW + 4 * (s % W)], first=(s == 0))
                if m == 0 and sg == 0 and c > 0:
                    f["pre_read"] = ["s_barrier"]
                if m == 0 and s in (0, 12, 24, 36):
                    f["pre_mma"] = a.stamp_lines(40 + s // 12)
                fr.append(f)
        for x in plan_b(fr, 5, 48, W, BW, S_B, int(mcommon.OPT.get("lead5", 6)), 1, line_touch(11, 254, 69, 48, S_CB)):
            a(x)
        a("s_barrier")
        stream(a, fr, D35, 2)
        a.stamp(24)
        a("s_nop 7")
    add_bf16(a, ACC, HRES, 10)
    PK = BW
    oaux = " " + mcommon.OPT["oaux"].replace("+", " ") if mcommon.OPT.get("oaux") else ""
    for j in range(10):
        a(f"v_cvt_pk_bf16_f32 v{PK + j}, v{ACC + 2 * j}, v{ACC + 2 * j + 1}")
    a(f"""
s_lshl_b32 s60, s{S_RB}, 6
s_lshl_b32 s61, s{S_W}, 4
s_add_u32 s60, s60, s61
v_add_u32 v10, s60, v{VT}
v_mul_u32_u24 v10, 1280, v10
v_lshl_add_u32 v11, v{VQ}, 3, v10
v_and_b32 v12, 1, v{VQ}
v_lshl_add_u32 v10, v12, 5, v10
v_lshrrev_b32 v12, 1, v{VQ}
v_lshl_add_u32 v10, v12, 4, v10
s_mul_i32 s60, s{S_CB}, 160
buffer_store_dwordx2 {vr(PK + 8, 2)}, v11, s[{TS}:{TS + 3}], s60 offen offset:128{oaux}""")
    for j in range(2):
        r = PK + 4 * j
        a(f"""
v_permlane16_swap_b32 v{r}, v{r + 2}
v_permlane16_swap_b32 v{r + 1}, v{r + 3}
buffer_store_dwordx4 {vr(r, 4)}, v10, s[{TS}:{TS + 3}], s60 offen offset:{64 * j}{oaux}""")
    if mcommon.STAMPS:
        a("s_waitcnt vmcnt(0)")
    a.stamp(25)
    a.stamp(26, True)
    a.stamp_out()
    if mcommon.OPT.get("spanprobe"):
        mult = int(mcommon.OPT["spanprobe"])
        a(f"""
s_cmp_lg_u32 s{S_W}, 0
s_cbranch_scc1 L_end
v_readlane_b32 s60, v{V_STAMP}, 1
v_readlane_b32 s61, v{V_STAMP}, 26
s_nop 3
s_not_b32 s60, s60
v_mov_b32 v4, s60
v_mov_b32 v5, s61
v_mov_b32 v6, 1
v_mov_b32 v0, 0
s_mov_b64 exec, 1
buffer_atomic_umax v4, v0, s[{DS}:{DS + 3}], 0 offen offset:64 sc1
buffer_atomic_umax v5, v0, s[{DS}:{DS + 3}], 0 offen offset:68 sc1
s_waitcnt vmcnt(0)
buffer_atomic_add v6, v0, s[{DS}:{DS + 3}], 0 offen offset:72 sc1
s_waitcnt vmcnt(0)
s_mov_b64 exec, -1
s_cmp_lg_u32 s2, 0
s_cbranch_scc1 L_end
v_mov_b32 v0, 72""")
        a.poll(0, 4, DS, "0", 1, "0x100")
        a(f"""
v_mov_b32 v0, 64
buffer_load_dwordx2 v[4:5], v0, s[{DS}:{DS + 3}], 0 offen sc1
s_waitcnt vmcnt(0)
v_readfirstlane_b32 s60, v4
v_readfirstlane_b32 s61, v5
s_memrealtime s[62:63]
s_waitcnt lgkmcnt(0)
s_not_b32 s60, s60
s_sub_u32 s60, s61, s60
s_min_u32 s60, s60, 200000
s_mul_i32 s60, s60, {mult}
L_sprobe:
s_memrealtime s[64:65]
s_waitcnt lgkmcnt(0)
s_sub_u32 s64, s64, s62
s_cmp_lt_u32 s64, s60
s_cbranch_scc1 L_sprobe""")
    if mcommon.OPT.get("probe"):
        i, j, mult, real = (int(x) for x in mcommon.OPT["probe"].split(","))
        op = "s_memrealtime" if real else "s_memtime"
        gapcode = ""
        if mcommon.OPT.get("gap"):
            gapcode = f"""s_mov_b32 s66, {DIAG + 0x100000}
v_mov_b32 v0, 0
buffer_load_dword v1, v0, s[92:95], s66 offen sc1
s_waitcnt vmcnt(0)
v_readfirstlane_b32 s60, v1
s_nop 3"""
        a(f"""
s_cmp_lg_u32 s2, {mcommon.OPT.get("probewg", 0)}
s_cbranch_scc1 L_end
s_cmp_lg_u32 s{S_W}, 0
s_cbranch_scc1 L_end
v_readlane_b32 s60, v{V_STAMP}, {i}
v_readlane_b32 s61, v{V_STAMP}, {j}
{gapcode}
{op} s[62:63]
s_waitcnt lgkmcnt(0)
s_sub_u32 s60, s61, s60
s_min_u32 s60, s60, 200000
s_mul_i32 s60, s60, {mult}
L_probe:
{op} s[64:65]
s_waitcnt lgkmcnt(0)
s_sub_u32 s64, s64, s62
s_cmp_lt_u32 s64, s60
s_cbranch_scc1 L_probe""")
```

```python
import struct

NAME = "sequential_preLN__grouped_kv_mqa__glu_gated_swiglu__prompt"

KV = 0x0000000
KN = 0x0040000
FLG = 0x0050000
KVFLG = FLG
OFLG = FLG + 0x2000
PSFLG = FLG + 0x3000
HFLG = FLG + 0x4000
HHFLG = FLG + 0x8000
FLG_BYTES = 0x14000
OF = 0x0100000
HF = 0x0400000
ST = 0x0700000
WOF = 0x0800000
W13F = 0x0900000
W2F = 0x0D00000
HHF = 0x0F00000
WS_USED = 0x1500000
DIAG = 0x2000000
OOB = 0x40000000

SRD3 = "0x00020000"
LOG2E = 1.4426950408889634
SPIN_LIMIT = 1 << 18

STAMPS = False
OPT = {}


def f32(x):
    return "0x%08x" % struct.unpack("<I", struct.pack("<f", x))[0]


def vr(a, n=1):
    return f"v{a}" if n == 1 else f"v[{a}:{a + n - 1}]"


def mfma(d, a, b, c):
    cs = c if isinstance(c, str) else vr(c, 16)
    return f"v_mfma_f32_32x32x16_bf16 {vr(d, 16)}, {vr(a, 4)}, {vr(b, 4)}, {cs}"


def mfma8(d, a, b, c):
    cs = c if isinstance(c, str) else vr(c, 16)
    return f"v_mfma_f32_32x32x8_bf16 {vr(d, 16)}, {vr(a, 2)}, {vr(b, 2)}, {cs}"


def mfma16(d, a, b, c):
    cs = c if isinstance(c, str) else vr(c, 4)
    return f"v_mfma_f32_16x16x32_bf16 {vr(d, 4)}, {vr(a, 4)}, {vr(b, 4)}, {cs}"


WS, XS, TS, KS, DS = 4, 8, 12, 16, 20
S_W, S_RB, S_CB, S_IDX, S_HALF, S_P, S_HEAD = 24, 25, 26, 27, 28, 29, 30
S_RB2, S_FB = 70, 71
P_X, P_WQ, P_WK, P_WV, P_WO, P_W1, P_W3, P_W2, P_OUT, P_DBG, P_WS = 36, 38, 40, 42, 44, 48, 50, 52, 54, 56, 58
LANE, VL16 = 2, 3
V_STAMP = 255


class Asm:
    def __init__(self, name):
        self.lines = []
        self.name = name
        self.uid = 0

    def __call__(self, text):
        for ln in text.strip("\n").split("\n"):
            ln = ln.strip()
            if not ln:
                continue
            if ln.endswith(":") or ln.startswith("."):
                self.lines.append(ln)
            else:
                self.lines.append("    " + ln)

    def note(self, text):
        for ln in text.strip("\n").split("\n"):
            self.lines.append("; " + ln.strip())

    def text(self):
        return "\n".join(self.lines) + "\n"

    def L(self, tag):
        return f"L_{tag}"

    def fresh(self, tag):
        self.uid += 1
        return f"L_{tag}_{self.uid}"

    def srd(self, d, ptr, nbytes):
        self(f"""
s_mov_b32 s{d}, s{ptr}
s_mov_b32 s{d + 1}, s{ptr + 1}
s_mov_b32 s{d + 2}, {nbytes}
s_mov_b32 s{d + 3}, {SRD3}""")

    def dma(self, voff, srd, soff, m0, imm=0, aux=""):
        if m0 is not None:
            self(f"s_mov_b32 m0, {m0}")
            self("s_nop 0")
        o = f" offset:{imm}" if imm else ""
        x = f" {aux}" if aux else ""
        self(f"buffer_load_dwordx4 v{voff}, s[{srd}:{srd + 3}], {soff} offen{o}{x} lds")

    def wave_max(self, v):
        for m in ("row_shr:1", "row_shr:2", "row_shr:4", "row_shr:8"):
            self("s_nop 1")
            self(f"v_max_f32_dpp v{v}, v{v}, v{v} {m} row_mask:0xf bank_mask:0xf")
        self("s_nop 1")
        self(f"v_max_f32_dpp v{v}, v{v}, v{v} row_bcast:15 row_mask:0xa bank_mask:0xf")
        self("s_nop 1")
        self(f"v_max_f32_dpp v{v}, v{v}, v{v} row_bcast:31 row_mask:0xc bank_mask:0xf")

    def xlane(self, op, v, t, width):
        self(f"v_mov_b32 v{t}, v{v}")
        self("s_nop 1")
        self(f"v_permlane{width}_swap_b32 v{v}, v{t}")
        self("s_nop 1")
        self(f"{op} v{v}, v{v}, v{t}")

    def half_sum(self, v, t):
        self.xlane("v_add_f32", v, t, 32)

    def half_max(self, v, t):
        self.xlane("v_max_f32", v, t, 32)

    def quad_sum(self, v, t):
        self.xlane("v_add_f32", v, t, 32)
        self.xlane("v_add_f32", v, t, 16)

    def poll(self, voff, vtmp, srd, soff, nlanes, expect="1"):
        top, done = self.fresh("poll"), self.fresh("polled")
        mask = (1 << nlanes) - 1
        self(f"""
s_mov_b32 exec_lo, {mask & 0xffffffff:#x}
s_mov_b32 exec_hi, {mask >> 32:#x}
s_mov_b32 s60, 0
{top}:
buffer_load_dword v{vtmp}, v{voff}, s[{srd}:{srd + 3}], {soff} offen sc1
s_add_u32 s60, s60, 1
s_waitcnt vmcnt(0)
v_cmp_ne_u32 vcc, {expect}, v{vtmp}
s_nop 4
s_cbranch_vccz {done}
s_cmp_lt_u32 s60, {SPIN_LIMIT}
s_cbranch_scc1 {top}
{done}:
s_mov_b64 exec, -1""")

    def set_flag(self, vaddr, vone, srd, soff, short=False):
        op = "buffer_store_short" if short else "buffer_store_dword"
        self(f"""
v_mov_b32 v{vaddr}, 0
v_mov_b32 v{vone}, 1
s_mov_b64 exec, 1
{op} v{vone}, v{vaddr}, s[{srd}:{srd + 3}], {soff} offen sc1
s_mov_b64 exec, -1""")

    def stamp(self, i, real=False):
        if not STAMPS:
            return
        op = "s_memrealtime" if real else "s_memtime"
        self(f"{op} s[96:97]\ns_waitcnt lgkmcnt(0)\nv_writelane_b32 v{V_STAMP}, s96, {i}")

    def stamp_lines(self, i):
        if not STAMPS:
            return []
        return ["s_memtime s[96:97]", "s_waitcnt lgkmcnt(0)", f"v_writelane_b32 v{V_STAMP}, s96, {i}"]

    def stamp_out(self):
        if not STAMPS:
            return
        self(f"""
s_mov_b32 s92, s{P_WS}
s_mov_b32 s93, s{P_WS + 1}
s_mov_b32 s94, 0x4000000
s_mov_b32 s95, {SRD3}
s_lshl_b32 s90, s2, 3
s_add_u32 s90, s90, s{S_W}
s_lshl_b32 s90, s90, 8
s_add_u32 s90, s90, {DIAG}
v_lshlrev_b32 v0, 2, v{LANE}
buffer_store_dword v{V_STAMP}, v0, s[92:95], s90 offen""")
```

```python
import sys
import mcommon
from mcommon import *

DESIGN = """;
"""


def build(out):
    from m1 import phase1
    from m2 import phase2, young_prep, young_tail
    from m345 import loader, compute345
    header = open("cdna_kernels/" + NAME + ".s.ref").read().split("; Override launch geometry")[0]
    k = NAME + "_kernel"
    a, tail = Asm(k), Asm(k)
    tail.uid = 100000
    phase1(a, tail, young_prep, young_tail)
    phase2(a, tail)
    a(f"s_cmp_ge_u32 s{S_W}, 4\ns_cbranch_scc1 L_loader")
    compute345(a)
    a("L_end:\ns_endpgm")
    loader(a)
    pre = ""
    if mcommon.OPT.get("gap"):
        txt = header + f"; @launch kernel=pre_kernel grid=(1,1,1) block=(64,1,1) lds=0\n; @launch kernel={k} grid=(256,1,1) block=(512,1,1) lds=163840\n"
        pre = f""".text
.globl pre_kernel
.p2align 8
.type pre_kernel,@function
pre_kernel:
    s_load_dwordx2 s[4:5], s[0:1], 88
    s_waitcnt lgkmcnt(0)
    s_mov_b32 s8, s4
    s_mov_b32 s9, s5
    s_mov_b32 s10, 0x4000000
    s_mov_b32 s11, {SRD3}
    s_mov_b32 s12, {DIAG + 0x100000}
    v_mov_b32 v0, 0
    s_memrealtime s[6:7]
    s_waitcnt lgkmcnt(0)
    v_mov_b32 v1, s6
    buffer_store_dword v1, v0, s[8:11], s12 offen
    s_endpgm
.section .rodata,"a"
.p2align 6
.amdhsa_kernel pre_kernel
  .amdhsa_next_free_vgpr 8
  .amdhsa_next_free_sgpr 32
  .amdhsa_accum_offset 8
  .amdhsa_group_segment_fixed_size 0
  .amdhsa_kernarg_size 96
  .amdhsa_user_sgpr_count 2
  .amdhsa_user_sgpr_kernarg_segment_ptr 1
  .amdhsa_system_sgpr_workgroup_id_x 1
.end_amdhsa_kernel
"""
    else:
        txt = header + "; @launch grid=(256,1,1) block=(512,1,1) lds=163840\n" + DESIGN
    txt += f'.amdgcn_target "amdgcn-amd-amdhsa--gfx950"\n.text\n.globl {k}\n.p2align 8\n.type {k},@function\n{k}:\n'
    txt += a.text() + tail.text() + "L_code_end:\n" + pre
    txt += f""".section .rodata,"a"
.p2align 6
.amdhsa_kernel {k}
  .amdhsa_next_free_vgpr 256
  .amdhsa_next_free_sgpr 102
  .amdhsa_accum_offset 256
  .amdhsa_group_segment_fixed_size 0
  .amdhsa_kernarg_size 96
  .amdhsa_user_sgpr_count 2
  .amdhsa_user_sgpr_kernarg_segment_ptr 1
  .amdhsa_system_sgpr_workgroup_id_x 1
  .amdhsa_float_denorm_mode_32 3
.end_amdhsa_kernel
"""
    open(out, "w").write(txt)

if __name__ == "__main__":
    if "--diag" in sys.argv:
        sys.argv.remove("--diag"); mcommon.STAMPS = True
    while "--opt" in sys.argv:
        i = sys.argv.index("--opt"); kk, vv = sys.argv[i + 1].split("="); mcommon.OPT[kk] = vv; del sys.argv[i:i + 2]
    build(sys.argv[1])
```
